```python
import torch

def _softmax(x, axis=-1):
    return torch.softmax(x, dim=axis)
def _gelu(x):
    return torch.nn.functional.gelu(x, approximate="tanh")
def _silu(x):
    return torch.nn.functional.silu(x)
def _sigmoid(x):
    return torch.sigmoid(x)
def _layernorm(x, axis=-1, eps=1e-5):
    m = x.mean(dim=axis, keepdim=True)
    v = x.var(dim=axis, keepdim=True, unbiased=False)
    return (x - m) / torch.sqrt(v + eps)
def _scatter_add(tgt, idx, src, axis=0):
    return tgt.clone().index_add_(axis, idx, src)
def _segment_sum(src, seg, n):
    out = torch.zeros((n,) + src.shape[1:], dtype=src.dtype)
    return out.index_add_(0, seg, src)
def _pad(x, pw):
    flat = tuple(v for pair in reversed(pw) for v in pair)
    return torch.nn.functional.pad(x, flat)

kernel_name = 'concat_heads__mha_block_cached__mha_block_cached__decode'

def setup_inputs():

    _w = (lambda a: (lambda t: t.to(torch.bfloat16) if t.is_floating_point() else t)(torch.as_tensor(a)))
    def _A_setup():
        B, Sq, D = 1, 1, 512
        H, Sk, Dh = 32, 16384, 128
        return {
            "x": _w((lambda *s: torch.randn(*s, dtype=torch.bfloat16) * 0.8)(B, Sq, D)),
            "k_cache": _w((lambda *s: torch.randn(*s, dtype=torch.bfloat16) * 1.6)(B, H, Sk, Dh)),
            "v_cache": _w((lambda *s: torch.randn(*s, dtype=torch.bfloat16) * 0.2)(B, H, Sk, Dh)),
            "wq": _w((lambda *s: torch.randn(*s, dtype=torch.bfloat16) * 1.6)(D, H * Dh) * (D ** -0.5)),
            "wo": _w((lambda *s: torch.randn(*s, dtype=torch.bfloat16) * 0.2)(H * Dh, D) * ((H * Dh) ** -0.5)),
        }
    _A_in = _A_setup()

    def _B_setup():
        B, Sq, D = 1, 1, 512
        H, Sk, Dh = 32, 16384, 128
        return {
            "x": _w((lambda *s: torch.randn(*s, dtype=torch.bfloat16) * 0.8)(B, Sq, D)),
            "k_cache": _w((lambda *s: torch.randn(*s, dtype=torch.bfloat16) * 1.6)(B, H, Sk, Dh)),
            "v_cache": _w((lambda *s: torch.randn(*s, dtype=torch.bfloat16) * 0.2)(B, H, Sk, Dh)),
            "wq": _w((lambda *s: torch.randn(*s, dtype=torch.bfloat16) * 1.6)(D, H * Dh) * (D ** -0.5)),
            "wo": _w((lambda *s: torch.randn(*s, dtype=torch.bfloat16) * 0.2)(H * Dh, D) * ((H * Dh) ** -0.5)),
        }
    _B_in = _B_setup()

    return {
        "A_x": _A_in["x"],
        "A_k_cache": _A_in["k_cache"],
        "A_v_cache": _A_in["v_cache"],
        "A_wq": _A_in["wq"],
        "A_wo": _A_in["wo"],
        "B_x": _B_in["x"],
        "B_k_cache": _B_in["k_cache"],
        "B_v_cache": _B_in["v_cache"],
        "B_wq": _B_in["wq"],
        "B_wo": _B_in["wo"],
    }

def reference(A_x, A_k_cache, A_v_cache, A_wq, A_wo, B_x, B_k_cache, B_v_cache, B_wq, B_wo):
    def _A_ref(x, k_cache, v_cache, wq, wo):
        B, Sq, D = x.shape
        H, Dh = 32, 128
        q = (lambda x, *d: x.permute(*d))((x @ wq).reshape(B, Sq, H, Dh), 0, 2, 1, 3)
        scores = torch.einsum("bhqd,bhkd->bhqk", q, k_cache) * (Dh ** -0.5)
        p = _softmax(scores, axis=-1)
        o = torch.einsum("bhqk,bhkd->bhqd", p, v_cache)
        return (lambda x, *d: x.permute(*d))(o, 0, 2, 1, 3).reshape(B, Sq, H * Dh) @ wo

    def _B_ref(x, k_cache, v_cache, wq, wo):
        B, Sq, D = x.shape
        H, Dh = 32, 128
        q = (lambda x, *d: x.permute(*d))((x @ wq).reshape(B, Sq, H, Dh), 0, 2, 1, 3)
        scores = torch.einsum("bhqd,bhkd->bhqk", q, k_cache) * (Dh ** -0.5)
        p = _softmax(scores, axis=-1)
        o = torch.einsum("bhqk,bhkd->bhqd", p, v_cache)
        return (lambda x, *d: x.permute(*d))(o, 0, 2, 1, 3).reshape(B, Sq, H * Dh) @ wo

    a = _A_ref(A_x, A_k_cache, A_v_cache, A_wq, A_wo)
    b = _B_ref(B_x, B_k_cache, B_v_cache, B_wq, B_wo)
    return torch.concatenate([a, b], axis=-1)
```

```python
import re

TRANS = ("v_exp_f32", "v_log_f32", "v_rcp_f32", "v_rsq_f32", "v_sqrt_f32", "v_sin_f32", "v_cos_f32")

_REG = re.compile(r"(?<![\w.])([vsa])(?:(\d+)|\[(\d+):(\d+)\])(?![\w])")


def regs_of(text):
    out = set()
    for m in _REG.finditer(text):
        k = m.group(1)
        if m.group(2) is not None:
            out.add((k, int(m.group(2))))
        else:
            for i in range(int(m.group(3)), int(m.group(4)) + 1):
                out.add((k, i))
    if re.search(r"\bvcc\b", text):
        out.add(("s", "vcc"))
    if re.search(r"\bm0\b", text):
        out.add(("s", "m0"))
    if re.search(r"\bexec\b", text):
        out.add(("s", "exec"))
    return out


def split_ops(rest):
    ops, depth, cur = [], 0, ""
    for ch in rest:
        if ch == "[":
            depth += 1
        if ch == "]":
            depth -= 1
        if ch == "," and depth == 0:
            ops.append(cur.strip())
            cur = ""
        else:
            cur += ch
    if cur.strip():
        ops.append(cur.strip())
    return ops


class Ins:
    def __init__(self, line):
        self.line = line
        s = line.split(";")[0].strip()
        self.is_label = s.endswith(":")
        self.is_dir = s.startswith(".") and not self.is_label
        self.empty = s == ""
        self.mn = ""
        self.dst = set()
        self.src = set()
        self.states = 0
        self.ops = []
        self.valu = self.vmem = self.ds = self.dpp = self.trans = self.permlane = False
        self.readlane = self.writelane = self.mfma = self.store = self.wide_store = self.lds_dma = False
        if self.is_label or self.is_dir or self.empty:
            return
        parts = s.split(None, 1)
        self.mn = parts[0]
        rest = parts[1] if len(parts) > 1 else ""
        ops = split_ops(rest)
        mn = self.mn
        self.states = 1
        if mn == "s_nop":
            self.states = int(ops[0], 0) + 1
        self.valu = mn.startswith("v_")
        self.vmem = mn.startswith(("buffer_", "global_", "flat_"))
        self.ds = mn.startswith("ds_")
        self.dpp = "_dpp" in mn or "row_" in rest or "quad_perm" in rest
        self.trans = mn.replace("_e32", "").replace("_e64", "") in TRANS
        self.permlane = mn.startswith("v_permlane")
        self.readlane = mn.startswith(("v_readlane", "v_readfirstlane"))
        self.writelane = mn.startswith("v_writelane")
        self.mfma = mn.startswith("v_mfma")
        self.store = self.vmem and ("store" in mn or "atomic" in mn)
        self.wide_store = self.vmem and "store" in mn and ("x4" in mn or "x3" in mn)
        self.lds_dma = self.vmem and (" lds" in " " + rest or "load_lds" in mn)
        self.ops = ops
        if self.valu:
            if self.permlane:
                self.dst = regs_of(ops[0]) | regs_of(ops[1])
                self.src = set(self.dst)
            else:
                ndst = 1
                if mn.startswith(("v_add_co", "v_sub_co", "v_addc_co", "v_subb_co", "v_subrev_co", "v_div_scale", "v_mad_u64")):
                    ndst = 2
                for o in ops[:ndst]:
                    self.dst |= regs_of(o)
                for o in ops[ndst:]:
                    self.src |= regs_of(o)
                if mn.startswith(("v_fmac", "v_dot2c", "v_mac", "v_pk_fmac", "v_writelane")) or "_dpp" in mn:
                    self.src |= regs_of(ops[0])
                if mn.startswith("v_cmpx"):
                    self.dst.add(("s", "exec"))
        elif mn.startswith("s_"):
            if mn.startswith(("s_cmp", "s_waitcnt", "s_barrier", "s_branch", "s_cbranch", "s_endpgm", "s_nop", "s_sleep", "s_setprio", "s_bitcmp")):
                for o in ops:
                    self.src |= regs_of(o)
            else:
                self.dst = regs_of(ops[0]) if ops else set()
                for o in ops[1:]:
                    self.src |= regs_of(o)
                if "saveexec" in mn:
                    self.dst.add(("s", "exec"))
        elif self.vmem or self.ds:
            if self.vmem and "load" in mn and not self.lds_dma:
                self.dst = regs_of(ops[0])
                for o in ops[1:]:
                    self.src |= regs_of(o)
            elif self.ds and ("read" in mn or "permute" in mn or "swizzle" in mn or "rtn" in mn):
                self.dst = regs_of(ops[0])
                for o in ops[1:]:
                    self.src |= regs_of(o)
            else:
                for o in ops:
                    self.src |= regs_of(o)
                if self.vmem and "atomic" in mn and " sc0" in " " + rest:
                    self.dst = regs_of(ops[0])
            if self.wide_store:
                self.store_data = regs_of(ops[0]) if mn.startswith("buffer_") else regs_of(ops[1])


def need(prod, cons):
    n = 0
    if prod.empty or prod.is_label or prod.is_dir or not prod.mn:
        return 0
    pv = {r for r in prod.dst if r[0] in "va"}
    ps = {r for r in prod.dst if r[0] == "s"}
    if prod.valu:
        if cons.valu and cons.dpp and pv & cons.src:
            n = max(n, 2)
        if cons.valu and cons.readlane and pv & cons.src:
            n = max(n, 1)
        if cons.valu and cons.permlane and pv & cons.src:
            n = max(n, 2)
        if prod.trans and cons.valu and pv & cons.src:
            n = max(n, 1)
        if cons.valu and cons.mfma and pv & cons.src:
            n = max(n, 2)
        if ps and cons.vmem and ps & cons.src:
            n = max(n, 5)
        if ps and cons.valu and ps & cons.src:
            n = max(n, 4 if (cons.readlane or cons.writelane) else 2)
        if ps and cons.mn.startswith("s_") and ps & cons.src:
            n = max(n, 1)
        if ("s", "exec") in ps:
            if cons.valu and cons.dpp:
                n = max(n, 5)
            if cons.valu and (cons.readlane or cons.permlane or cons.writelane):
                n = max(n, 4)
        if prod.mn.startswith("v_dot") and pv & (cons.src | cons.dst):
            ab = set()
            if cons.mn == prod.mn:
                ab = regs_of(cons.ops[1]) | regs_of(cons.ops[2])
            if cons.mn != prod.mn or (pv & ab):
                n = max(n, 3)
        if prod.mfma:
            if pv & (cons.src | cons.dst):
                same_c = cons.mn and getattr(cons, "mfma", False) and prod.dst == cons.dst
                if not same_c:
                    n = max(n, 18)
    if prod.mn.startswith("s_") and ("s", "m0") in prod.dst and getattr(cons, "lds_dma", False):
        n = max(n, 1)
    if prod.mn.startswith("s_") and ("s", "exec") in prod.dst and cons.valu and cons.dpp:
        n = max(n, 1)
    if getattr(prod, "wide_store", False) and cons.valu and (prod.store_data & cons.dst):
        n = max(n, 2)
    return n


class Asm:
    def __init__(self):
        self.lines = []

    def __call__(self, s=""):
        for l in s.split("\n"):
            self.lines.append(l)

    def label(self, name):
        self.lines.append(name + ":")

    def i(self, fmt, *a):
        self.lines.append("    " + (fmt % a if a else fmt))

    def text(self, hazards=True):
        if not hazards:
            return "\n".join(self.lines) + "\n"
        out = []
        window = []
        for l in self.lines:
            ins = Ins(l)
            if ins.empty or ins.is_dir:
                out.append(l)
                continue
            if ins.is_label:
                out.append(l)
                continue
            pad = 0
            dist = 0
            for p in reversed(window):
                req = need(p, ins)
                if req > dist:
                    pad = max(pad, req - dist)
                dist += p.states
                if dist >= 20:
                    break
            while pad > 0:
                k = min(pad, 16)
                nop = Ins("s_nop %d" % (k - 1))
                out.append("    s_nop %d" % (k - 1))
                window.append(nop)
                pad -= k
            out.append(l)
            window.append(ins)
            if len(window) > 40:
                window = window[-40:]
        return "\n".join(out) + "\n"
```

```python
import sys, argparse, math
from asmlib import Asm

NAME = "concat_heads__mha_block_cached__mha_block_cached__decode"

HEADER = """; Kernarg layout (104 bytes, ptrs only, base s[0:1]):
"""

CLOG = math.log2(math.e) / math.sqrt(128.0)


def f32hex(x):
    import struct
    return "0x%08x" % struct.unpack("<I", struct.pack("<f", x))[0]


class P:
    pass


def gen(p):
    W, T = p.W, p.T
    NIT = 1024 // (W * T)
    assert NIT >= 2 and NIT * W * T == 1024
    NWQ = 512 // W // 4
    RPG = NWQ
    NX = max(1, RPG * 2 // 16)
    NWO = 128 // W
    CW = 512 // W
    LPR = CW // 8
    RPL = 64 // LPR
    WO_PER_IT = -(-NWO // (NIT - 1))
    kvf = p.kvflags
    L_WO = 0
    L_QP = 131072
    L_MX = L_QP + W * 512
    L_O = L_MX + 64
    L_END = L_O + 512 + 64
    LDS = (L_END + 255) // 256 * 256

    a = Asm()
    a(HEADER.rstrip())
    a("; @launch kernel=%s_kernel grid=(256,1,1) block=(%d,1,1) lds=%d" % (NAME, W * 64, LDS))
    a("; @launch kernel=final_reduce_kernel grid=(32,1,1) block=(256,1,1) lds=4096")
    a('.amdgcn_target "amdgcn-amd-amdhsa--gfx950"')
    a(".text")
    a(".globl %s_kernel" % NAME)
    a(".p2align 8")
    a(".type %s_kernel,@function" % NAME)
    a("%s_kernel:" % NAME)

    sWG = 2
    sXp, sKp, sVp, sWqp, sWop = 16, 18, 20, 22, 24
    sK, sV, sWq, sWo, sX, sWs = 44, 48, 52, 56, 60, 64
    sHead, sSplit, sBr, sWave = 68, 69, 70, 71
    sOff, sCnt, sT0, sT1, sC, sWoOff = 72, 73, 74, 75, 76, 77
    sP = 78
    sTS = 80
    vTid, vLane, vOffKV = 0, 1, 2
    nOff = max(1, T // 4)
    v = 2 + nOff
    vQ = (v + 1) // 2 * 2; v = vQ + 4
    vM, vL, vMc, vAl = v, v + 1, v + 2, v + 3; v += 4
    vT0 = v; v += 8
    assert vT0 % 2 == 0
    vAcc = v; v += 8
    vS = v; v += max(T, 2) + (max(T, 2) % 2)
    vWoOff = v; v += 2
    vK = (v + 3) // 4 * 4; v = vK + 4 * T
    vV = v; v += 4 * T
    vWq = v; vXr = vWq + 4 * NWQ
    vtop = vXr + 4 * NX
    vO = max(vWq, vK + 4 * NWO)
    NV = max(vtop, vO + NWO)
    assert NV <= 512 // max(1, W // 4), (NV, W)

    def ts(k):
        if p.diag:
            a.i("s_memrealtime s[%d:%d]", sTS + 2 * k, sTS + 2 * k + 1)

    a.i("s_cmp_ge_u32 s2, 256")
    a.i("s_cbranch_scc1 L_end")
    ts(0)
    a.i("s_load_dwordx16 s[16:31], s[0:1], 0")
    a.i("s_load_dwordx4 s[32:35], s[0:1], 64")
    a.i("s_load_dwordx2 s[40:41], s[0:1], 96")
    a.i("v_and_b32 v%d, 63, v0", vLane)
    a.i("v_lshrrev_b32 v%d, 6, v0", vT0)
    a.i("s_and_b32 s%d, s2, 31", sHead)
    a.i("s_lshr_b32 s%d, s2, 6", sSplit)
    a.i("s_bfe_u32 s%d, s2, 0x10005", sBr)
    a.i("v_readfirstlane_b32 s%d, v%d", sWave, vT0)
    a.i("v_lshlrev_b32 v%d, 2, v0", vT0 + 1)
    a.i("v_add_u32 v%d, %d, v%d", vT0 + 1, L_O, vT0 + 1)
    a.i("v_mov_b32 v%d, 0", vT0 + 2)
    a.i("v_cmp_gt_u32 vcc, 144, v0")
    a.i("s_and_saveexec_b64 s[74:75], vcc")
    a.i("s_cbranch_execz L_skipz")
    a.i("ds_write_b32 v%d, v%d", vT0 + 1, vT0 + 2)
    a.label("L_skipz")
    a.i("s_mov_b64 exec, s[74:75]")
    a.i("s_and_b32 s%d, s2, 63", sP)
    a.i("s_lshl_b32 s%d, s%d, 2", sP, sP)
    a.i("s_add_u32 s%d, s%d, s%d", sP, sP, sSplit)
    a.i("s_waitcnt lgkmcnt(0)")
    a.i("s_cmp_eq_u32 s%d, 0", sBr)
    a.i("s_cselect_b64 s[16:17], s[16:17], s[26:27]")
    a.i("s_cselect_b64 s[18:19], s[18:19], s[28:29]")
    a.i("s_cselect_b64 s[20:21], s[20:21], s[30:31]")
    a.i("s_cselect_b64 s[22:23], s[22:23], s[32:33]")
    a.i("s_cselect_b64 s[24:25], s[24:25], s[34:35]")
    def srd(base, ptr, offreg, nrec):
        if offreg is None:
            a.i("s_mov_b32 s%d, s%d", base, ptr)
            a.i("s_mov_b32 s%d, s%d", base + 1, ptr + 1)
        else:
            a.i("s_add_u32 s%d, s%d, s%d", base, ptr, offreg)
            a.i("s_addc_u32 s%d, s%d, 0", base + 1, ptr + 1)
        a.i("s_mov_b32 s%d, 0x%x", base + 2, nrec)
        a.i("s_mov_b32 s%d, 0x20000", base + 3)
    srd(sX, sXp, None, 1024)
    srd(sWq, sWqp, None, 512 * 8192)
    a.i("v_lshrrev_b32 v%d, 4, v%d", vT0, vLane)
    a.i("v_and_b32 v%d, 15, v%d", vT0 + 1, vLane)
    a.i("s_lshl_b32 s%d, s%d, %d", sT0, sWave, int(math.log2(RPG * 4 * 2)))
    a.i("v_lshlrev_b32 v%d, %d, v%d", vT0 + 2, int(math.log2(RPG * 2)), vT0)
    a.i("v_add_u32 v%d, s%d, v%d", vT0 + 2, sT0, vT0 + 2)
    for j in range(NX):
        a.i("buffer_load_dwordx4 v[%d:%d], v%d, s[%d:%d], 0 offen offset:%d", vXr + 4 * j, vXr + 4 * j + 3, vT0 + 2, sX, sX + 3, 16 * j)
    a.i("v_lshlrev_b32 v%d, %d, v%d", vT0 + 3, int(math.log2(RPG * 8192)), vT0)
    a.i("v_lshl_add_u32 v%d, v%d, 4, v%d", vT0 + 3, vT0 + 1, vT0 + 3)
    a.i("s_lshl_b32 s%d, s%d, %d", sT0, sWave, int(math.log2(RPG * 4 * 8192)))
    a.i("s_lshl_b32 s%d, s%d, 8", sT1, sHead)
    a.i("s_add_u32 s%d, s%d, s%d", sT0, sT0, sT1)
    for j in range(NWQ):
        a.i("buffer_load_dwordx4 v[%d:%d], v%d, s[%d:%d], s%d offen%s", vWq + 4 * j, vWq + 4 * j + 3, vT0 + 3, sWq, sWq + 3, sT0, p.wflags)
        if j != NWQ - 1:
            a.i("s_add_u32 s%d, s%d, 8192", sT0, sT0)
    a.i("s_lshl_b32 s%d, s%d, 22", sT0, sHead)
    a.i("s_lshl_b32 s%d, s%d, 20", sT1, sSplit)
    a.i("s_add_u32 s%d, s%d, s%d", sT0, sT0, sT1)
    srd(sK, sKp, sT0, 1 << 20)
    srd(sV, sVp, sT0, 1 << 20)
    if p.interleave:
        a.i("s_lshl_b32 s%d, s%d, %d", sT0, sWave, int(math.log2(T * 1024)))
        stride = W * T * 1024
    else:
        a.i("s_lshl_b32 s%d, s%d, %d", sT0, sWave, int(math.log2((1 << 20) // W)))
        stride = T * 1024
    a.i("v_lshlrev_b32 v%d, 4, v%d", vOffKV, vLane)
    a.i("v_add_u32 v%d, s%d, v%d", vOffKV, sT0, vOffKV)
    for j in range(1, nOff):
        a.i("v_add_u32 v%d, %d, v%d", vOffKV + j, 4096 * j, vOffKV)

    def kvload(ring, srdb, i, soff):
        a.i("buffer_load_dwordx4 v[%d:%d], v%d, s[%d:%d], %s offen offset:%d%s", ring + 4 * i, ring + 4 * i + 3,
            vOffKV + i // 4, srdb, srdb + 3, soff, (i % 4) * 1024, kvf)

    for i in range(T):
        kvload(vK, sK, i, "0")
    for i in range(T):
        kvload(vV, sV, i, "0")
    a.i("s_lshl_b32 s%d, s%d, 17", sT0, sHead)
    srd(sWo, sWop, sT0, 131072)
    a.i("v_lshrrev_b32 v%d, %d, v%d", vT0 + 4, int(math.log2(LPR)), vLane)
    a.i("v_and_b32 v%d, %d, v%d", vT0 + 5, LPR - 1, vLane)
    a.i("v_lshlrev_b32 v%d, 10, v%d", vT0 + 4, vT0 + 4)
    a.i("v_lshl_add_u32 v%d, v%d, 4, v%d", vWoOff, vT0 + 5, vT0 + 4)
    a.i("s_lshl_b32 s%d, s%d, %d", sT0, sWave, int(math.log2(CW * 2)))
    a.i("v_add_u32 v%d, s%d, v%d", vWoOff, sT0, vWoOff)
    a.i("s_mov_b32 s%d, 0", sWoOff)
    a.i("s_lshl_b32 s%d, s%d, %d", sT0, sWave, int(math.log2(NWO * 1024)))
    a.i("s_mov_b32 m0, s%d", sT0)
    srd(sWs, 40, None, 0x100000 if not p.diag else 0x200000)
    a.i("s_mov_b32 s%d, %s", sC, f32hex(CLOG))

    vA = vAcc
    for e in range(8):
        a.i("v_mov_b32 v%d, 0", vA + e)
    nafter = 2 * T
    for j in range(NWQ):
        a.i("s_waitcnt vmcnt(%d)", nafter + NWQ - 1 - j)
        xr = vXr + j // 2
        if j % 2 == 0:
            a.i("v_lshlrev_b32 v%d, 16, v%d", vT0, xr)
        else:
            a.i("v_and_b32 v%d, 0xffff0000, v%d", vT0, xr)
        for d in range(4):
            w = vWq + 4 * j + d
            a.i("v_lshlrev_b32 v%d, 16, v%d", vT0 + 2, w)
            a.i("v_and_b32 v%d, 0xffff0000, v%d", vT0 + 3, w)
            a.i("v_pk_fma_f32 v[%d:%d], v[%d:%d], v[%d:%d], v[%d:%d] op_sel_hi:[1,0,1]", vA + 2 * d, vA + 2 * d + 1,
                vT0 + 2, vT0 + 3, vT0, vT0 + 1, vA + 2 * d, vA + 2 * d + 1)
    def reduce_scatter(base):
        for e in range(4):
            a.i("v_permlane32_swap_b32 v%d, v%d", base + e, base + e + 4)
        for e in range(4):
            a.i("v_add_f32 v%d, v%d, v%d", base + e, base + e, base + e + 4)
        for e in range(2):
            a.i("v_permlane16_swap_b32 v%d, v%d", base + e, base + e + 2)
        for e in range(2):
            a.i("v_add_f32 v%d, v%d, v%d", base + e, base + e, base + e + 2)
    reduce_scatter(vA)
    a.i("v_lshrrev_b32 v%d, 4, v%d", vT0, vLane)
    a.i("v_and_b32 v%d, 15, v%d", vT0 + 1, vLane)
    a.i("v_lshlrev_b32 v%d, 3, v%d", vT0, vT0)
    a.i("v_lshl_add_u32 v%d, v%d, 5, v%d", vT0, vT0 + 1, vT0)
    a.i("s_lshl_b32 s%d, s%d, 9", sT0, sWave)
    a.i("s_add_u32 s%d, s%d, %d", sT0, sT0, L_QP)
    a.i("v_add_u32 v%d, s%d, v%d", vT0, sT0, vT0)
    a.i("ds_write_b64 v%d, v[%d:%d]", vT0, vA, vA + 1)
    a.i("s_waitcnt lgkmcnt(0)")
    a.i("s_barrier")
    a.i("v_lshlrev_b32 v%d, 5, v%d", vT0 + 1, vT0 + 1)
    a.i("v_add_u32 v%d, %d, v%d", vT0 + 1, L_QP, vT0 + 1)
    for w in range(W):
        a.i("ds_read_b128 v[%d:%d], v%d offset:%d", vWq + 8 * (w % 4), vWq + 8 * (w % 4) + 3, vT0 + 1, w * 512)
        a.i("ds_read_b128 v[%d:%d], v%d offset:%d", vWq + 8 * (w % 4) + 4, vWq + 8 * (w % 4) + 7, vT0 + 1, w * 512 + 16)
        if w % 4 == 3:
            a.i("s_waitcnt lgkmcnt(0)")
            for ww in range(4):
                for d in range(4):
                    src = vWq + 8 * ww + 2 * d
                    if w == 3 and ww == 0:
                        a.i("v_mov_b32 v%d, v%d", vA + 2 * d, src)
                        a.i("v_mov_b32 v%d, v%d", vA + 2 * d + 1, src + 1)
                    else:
                        a.i("v_pk_add_f32 v[%d:%d], v[%d:%d], v[%d:%d]", vA + 2 * d, vA + 2 * d + 1, vA + 2 * d, vA + 2 * d + 1, src, src + 1)
    for d in range(4):
        a.i("v_cvt_pk_bf16_f32 v%d, v%d, v%d", vQ + d, vA + 2 * d, vA + 2 * d + 1)
    for e in range(8):
        a.i("v_mov_b32 v%d, 0", vAcc + e)
    a.i("v_mov_b32 v%d, 0xff800000", vMc)
    a.i("v_mov_b32 v%d, 0xff800000", vM)
    a.i("v_mov_b32 v%d, 0", vL)
    ts(1)

    wolab = [0]
    def woload():
        wolab[0] += 1
        a.i("s_cmp_lt_u32 s%d, 0x20000", sWoOff)
        a.i("s_cbranch_scc0 L_wo%d", wolab[0])
        a.i("buffer_load_dwordx4 v%d, s[%d:%d], s%d offen%s lds", vWoOff, sWo, sWo + 3, sWoOff, p.wflags)
        a.i("s_add_u32 s%d, s%d, %d", sWoOff, sWoOff, RPL * 1024)
        a.i("s_add_u32 m0, m0, 1024")
        a.label("L_wo%d" % wolab[0])
    a.i("s_mov_b32 s%d, %d", sOff, stride)
    a.i("s_mov_b32 s%d, %d", sCnt, NIT - 1)

    def body(last):
        for i in range(T):
            if last:
                n = (T - 1 - i) + T
            else:
                n = 2 * T - 1
            a.i("s_waitcnt vmcnt(%d)", n)
            k = vK + 4 * i
            if not p.nocompute:
                a.i("v_dot2_f32_bf16 v%d, v%d, v%d, 0", vS + i, k, vQ)
                for d in range(1, 4):
                    a.i("v_dot2_f32_bf16 v%d, v%d, v%d, v%d", vS + i, k + d, vQ + d, vS + i)
            else:
                a.i("v_mov_b32 v%d, v%d", vS + i, k)
            if not last:
                kvload(vK, sK, i, "s%d" % sOff)
        if not last:
            for _ in range(WO_PER_IT):
                woload()
        if not p.nocompute:
            for r in (8, 4, 2, 1):
                for i in range(T):
                    a.i("v_add_f32_dpp v%d, v%d, v%d row_ror:%d row_mask:0xf bank_mask:0xf", vS + i, vS + i, vS + i, r)
            a.i("v_max3_f32 v%d, v%d, v%d, v%d", vM, vM, vS, vS + 1)
            for i in range(2, T, 2):
                a.i("v_max3_f32 v%d, v%d, v%d, v%d", vM, vM, vS + i, vS + i + 1)
            a.i("v_mul_f32 v%d, s%d, v%d", vT0, sC, vM)
            a.i("v_sub_f32 v%d, v%d, v%d", vAl, vMc, vT0)
            a.i("v_mov_b32 v%d, v%d", vMc, vT0)
            a.i("v_exp_f32 v%d, v%d", vAl, vAl)
            for i in range(T):
                a.i("v_fma_f32 v%d, v%d, s%d, -v%d", vS + i, vS + i, sC, vMc)
            for i in range(T):
                a.i("v_exp_f32 v%d, v%d", vS + i, vS + i)
            a.i("v_mul_f32 v%d, v%d, v%d", vL, vL, vAl)
            for d in range(4):
                a.i("v_pk_mul_f32 v[%d:%d], v[%d:%d], v[%d:%d] op_sel:[0,%d] op_sel_hi:[1,%d]", vAcc + 2 * d, vAcc + 2 * d + 1,
                    vAcc + 2 * d, vAcc + 2 * d + 1, vAl & ~1, (vAl & ~1) + 1, vAl & 1, vAl & 1)
            for i in range(T):
                a.i("v_add_f32 v%d, v%d, v%d", vL, vL, vS + i)
        for i in range(T):
            if last:
                n = T - 1 - i
            else:
                n = 2 * T - 1
            a.i("s_waitcnt vmcnt(%d)", n)
            vv = vV + 4 * i
            if not p.nocompute:
                sp = (vS + i) & ~1
                hi = (vS + i) & 1
                for d in range(4):
                    t = vT0 + 2 * (d % 4)
                    a.i("v_lshlrev_b32 v%d, 16, v%d", t, vv + d)
                    a.i("v_and_b32 v%d, 0xffff0000, v%d", t + 1, vv + d)
                for d in range(4):
                    t = vT0 + 2 * (d % 4)
                    a.i("v_pk_fma_f32 v[%d:%d], v[%d:%d], v[%d:%d], v[%d:%d] op_sel:[0,%d,0] op_sel_hi:[1,%d,1]", vAcc + 2 * d, vAcc + 2 * d + 1,
                        t, t + 1, sp, sp + 1, vAcc + 2 * d, vAcc + 2 * d + 1, hi, hi)
            else:
                a.i("v_add_f32 v%d, v%d, v%d", vAcc + (i % 8), vAcc + (i % 8), vv)
            if not last:
                kvload(vV, sV, i, "s%d" % sOff)

    a(".p2align 6")
    a.label("L_loop")
    body(False)
    a.i("s_add_u32 s%d, s%d, %d", sOff, sOff, stride)
    a.i("s_sub_u32 s%d, s%d, 1", sCnt, sCnt)
    a.i("s_cmp_lg_u32 s%d, 0", sCnt)
    a.i("s_cbranch_scc1 L_loop")
    body(True)
    ts(2)

    a.i("s_lshl_b32 s%d, s%d, %d", sT0, sWave, int(math.log2(NWO * 1024)))
    a.i("v_lshlrev_b32 v%d, 4, v%d", vWoOff, vLane)
    a.i("v_add_u32 v%d, s%d, v%d", vWoOff, sT0, vWoOff)
    for i in range(NWO):
        a.i("ds_read_b128 v[%d:%d], v%d offset:%d", vK + 4 * i, vK + 4 * i + 3, vWoOff, i * 1024)
    a.i("v_mov_b32 v%d, v%d", vT0, vM)
    a.i("v_mov_b32 v%d, v%d", vT0 + 1, vM)
    a.i("v_permlane32_swap_b32 v%d, v%d", vT0, vT0 + 1)
    a.i("v_max_f32 v%d, v%d, v%d", vT0, vT0, vT0 + 1)
    a.i("v_mov_b32 v%d, v%d", vT0 + 1, vT0)
    a.i("v_permlane16_swap_b32 v%d, v%d", vT0, vT0 + 1)
    a.i("v_max_f32 v%d, v%d, v%d", vT0, vT0, vT0 + 1)
    a.i("s_lshl_b32 s%d, s%d, 2", sT0, sWave)
    a.i("s_add_u32 s%d, s%d, %d", sT0, sT0, L_MX)
    a.i("v_mov_b32 v%d, s%d", vT0 + 2, sT0)
    a.i("ds_write_b32 v%d, v%d", vT0 + 2, vT0)
    a.i("v_mov_b32 v%d, %d", vT0 + 3, L_MX)
    a.i("s_waitcnt lgkmcnt(0)")
    a.i("s_barrier")
    nmx = W // 4
    a.i("ds_read_b128 v[%d:%d], v%d", vT0 + 4, vT0 + 7, vT0 + 3)
    a.i("s_waitcnt lgkmcnt(0)")
    a.i("v_max3_f32 v%d, v%d, v%d, v%d", vT0, vT0 + 4, vT0 + 5, vT0 + 6)
    a.i("v_max_f32 v%d, v%d, v%d", vT0, vT0, vT0 + 7)
    for j in range(1, nmx):
        a.i("ds_read_b128 v[%d:%d], v%d offset:%d", vT0 + 4, vT0 + 7, vT0 + 3, 16 * j)
        a.i("s_waitcnt lgkmcnt(0)")
        a.i("v_max3_f32 v%d, v%d, v%d, v%d", vT0, vT0, vT0 + 4, vT0 + 5)
        a.i("v_max3_f32 v%d, v%d, v%d, v%d", vT0, vT0, vT0 + 6, vT0 + 7)
    a.i("v_mul_f32 v%d, s%d, v%d", vM, sC, vT0)
    a.i("v_sub_f32 v%d, v%d, v%d", vAl, vMc, vM)
    a.i("v_exp_f32 v%d, v%d", vAl, vAl)
    a.i("v_mul_f32 v%d, v%d, v%d", vL, vL, vAl)
    for e in range(8):
        a.i("v_mul_f32 v%d, v%d, v%d", vAcc + e, vAcc + e, vAl)
    reduce_scatter(vAcc)
    a.i("v_mov_b32 v%d, v%d", vT0 + 1, vL)
    a.i("v_permlane32_swap_b32 v%d, v%d", vL, vT0 + 1)
    a.i("v_add_f32 v%d, v%d, v%d", vL, vL, vT0 + 1)
    a.i("v_mov_b32 v%d, v%d", vT0 + 1, vL)
    a.i("v_permlane16_swap_b32 v%d, v%d", vL, vT0 + 1)
    a.i("v_add_f32 v%d, v%d, v%d", vL, vL, vT0 + 1)
    a.i("v_lshrrev_b32 v%d, 4, v%d", vT0 + 2, vLane)
    a.i("v_and_b32 v%d, 15, v%d", vT0 + 3, vLane)
    a.i("v_lshlrev_b32 v%d, 3, v%d", vT0 + 4, vT0 + 3)
    a.i("v_lshl_add_u32 v%d, v%d, 1, v%d", vT0 + 4, vT0 + 2, vT0 + 4)
    for e in range(2):
        a.i("v_add_u32 v%d, %d, v%d", vT0 + 5, e, vT0 + 4)
        a.i("v_and_b32 v%d, %d, v%d", vT0 + 6, RPL - 1, vT0 + 5)
        a.i("v_lshrrev_b32 v%d, %d, v%d", vT0 + 5, int(math.log2(RPL)), vT0 + 5)
        a.i("v_mul_u32_u24 v%d, %d, v%d", vT0 + 6, NWO * 4, vT0 + 6)
        a.i("v_lshl_add_u32 v%d, v%d, 2, v%d", vT0 + 6, vT0 + 5, vT0 + 6)
        a.i("v_add_u32 v%d, %d, v%d", vT0 + 6, L_O, vT0 + 6)
        a.i("ds_add_f32 v%d, v%d", vT0 + 6, vAcc + e)
    a.i("v_mov_b32 v%d, %d", vT0 + 6, L_O + 512)
    a.i("v_cmp_eq_u32 vcc, 0, v%d", vLane)
    a.i("s_and_saveexec_b64 s[74:75], vcc")
    a.i("ds_add_f32 v%d, v%d", vT0 + 6, vL)
    a.i("s_mov_b64 exec, s[74:75]")
    a.i("s_waitcnt lgkmcnt(0)")
    a.i("s_barrier")
    a.i("v_lshrrev_b32 v%d, %d, v%d", vT0, int(math.log2(LPR)), vLane)
    a.i("v_mul_u32_u24 v%d, %d, v%d", vT0, NWO * 4, vT0)
    a.i("v_add_u32 v%d, %d, v%d", vT0, L_O, vT0)
    for j in range(NWO // 4):
        a.i("ds_read_b128 v[%d:%d], v%d offset:%d", vO + 4 * j, vO + 4 * j + 3, vT0, 16 * j)
    a.i("v_mov_b32 v%d, %d", vT0 + 6, L_O + 512)
    a.i("ds_read_b32 v%d, v%d", vL, vT0 + 6)
    for e in range(8):
        a.i("v_mov_b32 v%d, 0", vAcc + e)
    a.i("s_waitcnt lgkmcnt(0)")
    for i in range(NWO):
        sp = (vO + i) & ~1
        hi = (vO + i) & 1
        for d in range(4):
            t = vT0 + 2 * d
            a.i("v_lshlrev_b32 v%d, 16, v%d", t, vK + 4 * i + d)
            a.i("v_and_b32 v%d, 0xffff0000, v%d", t + 1, vK + 4 * i + d)
        for d in range(4):
            t = vT0 + 2 * d
            a.i("v_pk_fma_f32 v[%d:%d], v[%d:%d], v[%d:%d], v[%d:%d] op_sel:[0,%d,0] op_sel_hi:[1,%d,1]", vAcc + 2 * d, vAcc + 2 * d + 1,
                t, t + 1, sp, sp + 1, vAcc + 2 * d, vAcc + 2 * d + 1, hi, hi)
    if LPR == 8:
        reduce_scatter(vAcc)
        for e in range(2):
            a.i("v_add_f32_dpp v%d, v%d, v%d row_ror:8 row_mask:0xf bank_mask:0xf", vAcc + e, vAcc + e, vAcc + e)
        ccmask = 7
    elif LPR == 4:
        reduce_scatter(vAcc)
        for r in (8, 4):
            for e in range(2):
                a.i("v_add_f32_dpp v%d, v%d, v%d row_ror:%d row_mask:0xf bank_mask:0xf", vAcc + e, vAcc + e, vAcc + e, r)
        ccmask = 3
    elif LPR == 16:
        reduce_scatter(vAcc)
        ccmask = 15
    else:
        raise ValueError
    a.i("v_lshrrev_b32 v%d, 4, v%d", vT0, vLane)
    a.i("v_and_b32 v%d, %d, v%d", vT0 + 1, ccmask, vLane)
    a.i("v_lshlrev_b32 v%d, 3, v%d", vT0, vT0)
    a.i("v_lshl_add_u32 v%d, v%d, 5, v%d", vT0, vT0 + 1, vT0)
    a.i("s_lshl_b32 s%d, s%d, %d", sT0, sWave, int(math.log2(CW * 4)))
    a.i("s_lshl_b32 s%d, s%d, 11", sT1, sP)
    a.i("s_add_u32 s%d, s%d, s%d", sT0, sT0, sT1)
    a.i("v_and_b32 v%d, 15, v%d", vT0 + 2, vLane)
    a.i("v_cmp_ge_u32 vcc, %d, v%d", ccmask, vT0 + 2)
    a.i("s_and_saveexec_b64 s[82:83], vcc" if not p.diag else "s_and_saveexec_b64 s[90:91], vcc")
    a.i("buffer_store_dwordx2 v[%d:%d], v%d, s[%d:%d], s%d offen", vAcc, vAcc + 1, vT0, sWs, sWs + 3, sT0)
    a.i("s_mov_b64 exec, s[82:83]" if not p.diag else "s_mov_b64 exec, s[90:91]")
    a.i("v_cmp_eq_u32 vcc, 0, v0")
    a.i("s_and_saveexec_b64 s[74:75], vcc")
    a.i("s_cbranch_execz L_noml")
    a.i("s_lshl_b32 s%d, s%d, 3", sT1, sP)
    a.i("s_add_u32 s%d, s%d, 0x80000", sT1, sT1)
    a.i("v_mov_b32 v%d, v%d", vT0 + 2, vM)
    a.i("v_mov_b32 v%d, v%d", vT0 + 3, vL)
    a.i("v_mov_b32 v%d, 0", vT0)
    a.i("buffer_store_dwordx2 v[%d:%d], v%d, s[%d:%d], s%d offen", vT0 + 2, vT0 + 3, vT0, sWs, sWs + 3, sT1)
    if p.diag:
        ts(3)
        a.i("s_waitcnt lgkmcnt(0)")
        for k in range(8):
            a.i("v_mov_b32 v%d, s%d", vK + k, sTS + k)
        a.i("s_lshl_b32 s%d, s2, 5", sT1)
        a.i("s_add_u32 s%d, s%d, 0x100000", sT1, sT1)
        a.i("buffer_store_dwordx4 v[%d:%d], v%d, s[%d:%d], s%d offen", vK, vK + 3, vT0, sWs, sWs + 3, sT1)
        a.i("buffer_store_dwordx4 v[%d:%d], v%d, s[%d:%d], s%d offen offset:16", vK + 4, vK + 7, vT0, sWs, sWs + 3, sT1)
    a.label("L_noml")
    a.label("L_end")
    a.i("s_endpgm")

    a(".globl final_reduce_kernel")
    a(".p2align 8")
    a(".type final_reduce_kernel,@function")
    a("final_reduce_kernel:")
    a.i("s_cmp_ge_u32 s2, 32")
    a.i("s_cbranch_scc1 F_end")
    a.i("s_load_dwordx2 s[4:5], s[0:1], 80")
    a.i("s_load_dwordx2 s[6:7], s[0:1], 96")
    a.i("s_lshr_b32 s16, s2, 4")
    a.i("s_and_b32 s17, s2, 15")
    a.i("v_lshrrev_b32 v1, 3, v0")
    a.i("v_and_b32 v2, 7, v0")
    a.i("s_lshl_b32 s18, s16, 5")
    a.i("v_add_u32 v1, s18, v1")
    a.i("v_lshlrev_b32 v3, 5, v1")
    a.i("v_lshlrev_b32 v4, 13, v1")
    a.i("v_lshl_add_u32 v4, v2, 4, v4")
    a.i("s_lshl_b32 s19, s17, 7")
    a.i("s_mov_b32 s20, 0x80000")
    a.i("s_waitcnt lgkmcnt(0)")
    a.i("s_mov_b32 s8, s6")
    a.i("s_mov_b32 s9, s7")
    a.i("s_mov_b32 s10, 0x100000")
    a.i("s_mov_b32 s11, 0x20000")
    a.i("s_mov_b32 s12, s4")
    a.i("s_mov_b32 s13, s5")
    a.i("s_mov_b32 s14, 2048")
    a.i("s_mov_b32 s15, 0x20000")
    a.i("buffer_load_dwordx4 v[8:11], v3, s[8:11], s20 offen")
    a.i("buffer_load_dwordx4 v[12:15], v3, s[8:11], s20 offen offset:16")
    for s in range(2):
        a.i("buffer_load_dwordx4 v[%d:%d], v4, s[8:11], s19 offen offset:%d", 16 + 4 * s, 19 + 4 * s, 2048 * s)
    a.i("v_add_u32 v5, 4096, v4")
    for s in range(2, 4):
        a.i("buffer_load_dwordx4 v[%d:%d], v5, s[8:11], s19 offen offset:%d", 16 + 4 * s, 19 + 4 * s, 2048 * (s - 2))
    a.i("s_waitcnt vmcnt(4)")
    a.i("v_max3_f32 v6, v8, v10, v12")
    a.i("v_max_f32 v6, v6, v14")
    for s in range(4):
        a.i("v_sub_f32 v%d, v%d, v6", 8 + 2 * s, 8 + 2 * s)
    for s in range(4):
        a.i("v_exp_f32 v%d, v%d", 8 + 2 * s, 8 + 2 * s)
    a.i("v_mul_f32 v7, v8, v9")
    a.i("v_fmac_f32 v7, v10, v11")
    a.i("v_fmac_f32 v7, v12, v13")
    a.i("v_fmac_f32 v7, v14, v15")
    a.i("v_rcp_f32 v7, v7")
    for s in range(4):
        a.i("v_mul_f32 v%d, v%d, v7", 8 + 2 * s, 8 + 2 * s)
    a.i("s_waitcnt vmcnt(0)")
    for e in range(4):
        a.i("v_mul_f32 v%d, v8, v%d", 32 + e, 16 + e)
        a.i("v_fmac_f32 v%d, v10, v%d", 32 + e, 20 + e)
        a.i("v_fmac_f32 v%d, v12, v%d", 32 + e, 24 + e)
        a.i("v_fmac_f32 v%d, v14, v%d", 32 + e, 28 + e)
    for e in range(4):
        a.i("v_add_f32_dpp v%d, v%d, v%d row_ror:8 row_mask:0xf bank_mask:0xf", 32 + e, 32 + e, 32 + e)
    for e in range(2):
        a.i("v_permlane32_swap_b32 v%d, v%d", 32 + e, 34 + e)
    for e in range(2):
        a.i("v_add_f32 v%d, v%d, v%d", 32 + e, 32 + e, 34 + e)
    a.i("v_permlane16_swap_b32 v32, v33")
    a.i("v_add_f32 v32, v32, v33")
    a.i("v_and_b32 v1, 63, v0")
    a.i("v_lshrrev_b32 v3, 4, v1")
    a.i("v_lshl_add_u32 v3, v2, 2, v3")
    a.i("v_lshrrev_b32 v5, 6, v0")
    a.i("v_lshl_add_u32 v3, v5, 5, v3")
    a.i("v_lshlrev_b32 v3, 2, v3")
    a.i("ds_write_b32 v3, v32")
    a.i("s_waitcnt lgkmcnt(0)")
    a.i("s_barrier")
    a.i("v_cmp_gt_u32 vcc, 16, v0")
    a.i("s_and_saveexec_b64 s[22:23], vcc")
    a.i("s_cbranch_execz F_end")
    a.i("v_lshlrev_b32 v3, 3, v0")
    for w in range(4):
        a.i("ds_read_b64 v[%d:%d], v3 offset:%d", 8 + 2 * w, 9 + 2 * w, 128 * w)
    a.i("s_waitcnt lgkmcnt(0)")
    a.i("v_pk_add_f32 v[8:9], v[8:9], v[10:11]")
    a.i("v_pk_add_f32 v[12:13], v[12:13], v[14:15]")
    a.i("v_pk_add_f32 v[8:9], v[8:9], v[12:13]")
    a.i("v_cvt_pk_bf16_f32 v8, v8, v9")
    a.i("v_lshlrev_b32 v3, 2, v0")
    a.i("s_lshl_b32 s18, s16, 10")
    a.i("s_lshl_b32 s19, s17, 6")
    a.i("s_add_u32 s18, s18, s19")
    a.i("buffer_store_dword v8, v3, s[12:15], s18 offen")
    a.label("F_end")
    a.i("s_endpgm")

    a('.section .rodata,"a"')
    a(".p2align 6")
    a(".amdhsa_kernel %s_kernel" % NAME)
    a("  .amdhsa_next_free_vgpr %d" % NV)
    a("  .amdhsa_next_free_sgpr 96")
    a("  .amdhsa_accum_offset %d" % ((NV + 3) // 4 * 4))
    a("  .amdhsa_group_segment_fixed_size 0")
    a("  .amdhsa_kernarg_size 104")
    a("  .amdhsa_user_sgpr_count 2")
    a("  .amdhsa_user_sgpr_kernarg_segment_ptr 1")
    a("  .amdhsa_system_sgpr_workgroup_id_x 1")
    a("  .amdhsa_float_denorm_mode_32 3")
    a(".end_amdhsa_kernel")
    a(".p2align 6")
    a(".amdhsa_kernel final_reduce_kernel")
    a("  .amdhsa_next_free_vgpr 40")
    a("  .amdhsa_next_free_sgpr 32")
    a("  .amdhsa_accum_offset 40")
    a("  .amdhsa_group_segment_fixed_size 0")
    a("  .amdhsa_kernarg_size 104")
    a("  .amdhsa_user_sgpr_count 2")
    a("  .amdhsa_user_sgpr_kernarg_segment_ptr 1")
    a("  .amdhsa_system_sgpr_workgroup_id_x 1")
    a("  .amdhsa_float_denorm_mode_32 3")
    a(".end_amdhsa_kernel")
    return a.text()


def parse(argv):
    ap = argparse.ArgumentParser()
    ap.add_argument("-W", type=int, default=8)
    ap.add_argument("-T", type=int, default=8)
    ap.add_argument("--interleave", type=int, default=1)
    ap.add_argument("--kvflags", default=" nt")
    ap.add_argument("--wflags", default="")
    ap.add_argument("--nocompute", type=int, default=0)
    ap.add_argument("--diag", type=int, default=0)
    ap.add_argument("-o", default="/dev/stdout")
    p = ap.parse_args(argv)
    p.kvflags = (" " + p.kvflags.strip()) if p.kvflags.strip() else ""
    p.wflags = (" " + p.wflags.strip()) if p.wflags.strip() else ""
    return p


if __name__ == "__main__":
    p = parse(sys.argv[1:])
    open(p.o, "w").write(gen(p))
```

```python
import sys, argparse, math, struct
from asmlib import Asm

NAME = "concat_heads__mha_block_cached__mha_block_cached__decode"

HEADER = """; Decode attention for two independent branches (A, B), heads concatenated, fused q / output projections.
"""

CLOG = math.log2(math.e) / math.sqrt(128.0)


def f32hex(x):
    return "0x%08x" % struct.unpack("<I", struct.pack("<f", x))[0]


def lg(x):
    r = int(math.log2(x))
    assert 1 << r == x, x
    return r


class VM:
    def __init__(self, a):
        self.a = a
        self.q = []

    def issue(self, tag):
        self.q.append(tag)

    def wait(self, tag):
        idx = max(i for i, t in enumerate(self.q) if t == tag)
        n = len(self.q) - 1 - idx
        assert n <= 63
        self.a.i("s_waitcnt vmcnt(%d)", n)
        self.q = self.q[idx + 1:]

    def maybe_wait(self, tag):
        if tag in self.q:
            self.wait(tag)


def gen(p):
    W, T = p.W, p.T
    NIT = 1024 // (W * T)
    assert NIT >= 3 and NIT * W * T == 1024
    NWQ = 512 // W // 4
    RPG = NWQ
    NX = RPG * 2 // 16
    QD = min(p.QD, NWQ)
    NWO = 128 // W
    CW = 512 // W
    LPR = CW // 8
    RPL = 64 // LPR
    WO_PER_IT = -(-NWO // (NIT - 2))
    kvf = p.kvflags
    L_WO = 0
    L_QP = 131072
    L_MX = L_QP + W * 512
    L_O = L_MX + 64
    L_END = L_O + 576
    LDS = (L_END + 255) // 256 * 256

    a = Asm()
    vm = VM(a)
    a(HEADER.rstrip())
    a("; @launch kernel=%s_kernel grid=(256,1,1) block=(%d,1,1) lds=%d" % (NAME, W * 64, LDS))
    a("; @launch kernel=final_reduce_kernel grid=(32,1,1) block=(256,1,1) lds=4096")
    a('.amdgcn_target "amdgcn-amd-amdhsa--gfx950"')
    a(".text")
    a(".globl %s_kernel" % NAME)
    a(".p2align 8")
    a(".type %s_kernel,@function" % NAME)
    a("%s_kernel:" % NAME)

    sXp, sKp, sVp, sWqp, sWop = 16, 18, 20, 22, 24
    sK, sV, sWq, sWo, sX, sWs = 44, 48, 52, 56, 60, 64
    sHead, sSplit, sBr, sWave = 68, 69, 70, 71
    sOff, sCnt, sT0, sT1, sC, sWoOff = 72, 73, 74, 75, 76, 77
    sP = 78
    sQoff = 79
    sTS = 80
    sEx = 90
    vLane, vOffKV = 1, 2
    nOff = max(1, T // 4)
    v = 2 + nOff
    vQ = (v + 1) // 2 * 2; v = vQ + 4
    vM, vL, vMc, vAl = v, v + 1, v + 2, v + 3; v += 4
    vT0 = v; v += 8
    vAcc = v; v += 8
    vS = v; v += T + (T % 2)
    vWoOff, vWqOff = v, v + 1; v += 2
    vK = (v + 3) // 4 * 4; v = vK + 4 * T
    vV = v; v += 4 * T
    vWq = v; vXr = vWq + 4 * QD
    vtop = vXr + 4 * NX
    NB = min(NWO, p.NB)
    vO = max(vK + 8 * NB if NWO > NB else vK + 4 * NB, vK)
    NV = max(vtop, vO + NWO, vWq + 32)
    assert NV <= 256, NV
    assert NV <= 512 // max(1, W // 4), (NV, W)

    def ts(k):
        if p.diag:
            a.i("s_memrealtime s[%d:%d]", sTS + 2 * k, sTS + 2 * k + 1)

    def srd(base, ptr, offreg, nrec):
        if offreg is None:
            a.i("s_mov_b32 s%d, s%d", base, ptr)
            a.i("s_mov_b32 s%d, s%d", base + 1, ptr + 1)
        else:
            a.i("s_add_u32 s%d, s%d, s%d", base, ptr, offreg)
            a.i("s_addc_u32 s%d, s%d, 0", base + 1, ptr + 1)
        a.i("s_mov_b32 s%d, 0x%x", base + 2, nrec)
        a.i("s_mov_b32 s%d, 0x20000", base + 3)

    a.i("s_cmp_ge_u32 s2, 256")
    a.i("s_cbranch_scc1 L_end")
    a.i("s_load_dwordx16 s[16:31], s[0:1], 0")
    a.i("s_load_dwordx4 s[32:35], s[0:1], 64")
    a.i("s_load_dwordx2 s[40:41], s[0:1], 96")
    ts(0)
    a.i("v_and_b32 v%d, 63, v0", vLane)
    a.i("v_lshrrev_b32 v%d, 6, v0", vT0)
    a.i("s_and_b32 s%d, s2, 31", sHead)
    a.i("s_lshr_b32 s%d, s2, 6", sSplit)
    a.i("s_bfe_u32 s%d, s2, 0x10005", sBr)
    a.i("v_readfirstlane_b32 s%d, v%d", sWave, vT0)
    a.i("s_cmp_lg_u32 s%d, 0", sWave)
    a.i("s_cbranch_scc1 L_skipz")
    a.i("v_lshlrev_b32 v%d, 2, v%d", vT0 + 1, vLane)
    a.i("v_add_u32 v%d, %d, v%d", vT0 + 1, L_O, vT0 + 1)
    a.i("v_mov_b32 v%d, 0", vT0 + 2)
    a.i("ds_write_b32 v%d, v%d", vT0 + 1, vT0 + 2)
    a.i("ds_write_b32 v%d, v%d offset:256", vT0 + 1, vT0 + 2)
    a.i("ds_write_b32 v%d, v%d offset:320", vT0 + 1, vT0 + 2)
    a.label("L_skipz")
    a.i("s_and_b32 s%d, s2, 63", sP)
    a.i("s_lshl_b32 s%d, s%d, 2", sP, sP)
    a.i("s_add_u32 s%d, s%d, s%d", sP, sP, sSplit)
    a.i("v_lshrrev_b32 v%d, 4, v%d", vT0, vLane)
    a.i("v_and_b32 v%d, 15, v%d", vT0 + 1, vLane)
    a.i("s_lshl_b32 s%d, s%d, %d", sT0, sWave, lg(RPG * 4 * 2))
    a.i("v_lshlrev_b32 v%d, %d, v%d", vT0 + 2, lg(RPG * 2), vT0)
    a.i("v_add_u32 v%d, s%d, v%d", vT0 + 2, sT0, vT0 + 2)
    a.i("v_lshlrev_b32 v%d, %d, v%d", vWqOff, lg(RPG * 8192), vT0)
    a.i("v_lshl_add_u32 v%d, v%d, 4, v%d", vWqOff, vT0 + 1, vWqOff)
    a.i("s_lshl_b32 s%d, s%d, %d", sT0, sWave, lg(RPG * 4 * 8192))
    a.i("s_lshl_b32 s%d, s%d, 8", sT1, sHead)
    a.i("s_add_u32 s%d, s%d, s%d", sQoff, sT0, sT1)
    if p.interleave:
        a.i("s_lshl_b32 s%d, s%d, %d", sT0, sWave, lg(T * 1024))
        stride = W * T * 1024
    else:
        a.i("s_lshl_b32 s%d, s%d, %d", sT0, sWave, lg((1 << 20) // W))
        stride = T * 1024
    a.i("v_lshlrev_b32 v%d, 4, v%d", vOffKV, vLane)
    a.i("v_add_u32 v%d, s%d, v%d", vOffKV, sT0, vOffKV)
    for j in range(1, nOff):
        a.i("v_add_u32 v%d, %d, v%d", vOffKV + j, 4096 * j, vOffKV)
    a.i("s_lshl_b32 s%d, s%d, 22", sT0, sHead)
    a.i("s_lshl_b32 s%d, s%d, 20", sT1, sSplit)
    a.i("s_add_u32 s%d, s%d, s%d", sOff, sT0, sT1)
    a.i("s_waitcnt lgkmcnt(0)")
    a.i("s_cmp_eq_u32 s%d, 0", sBr)
    a.i("s_cselect_b64 s[16:17], s[16:17], s[26:27]")
    a.i("s_cselect_b64 s[22:23], s[22:23], s[32:33]")
    a.i("s_cselect_b64 s[18:19], s[18:19], s[28:29]")
    a.i("s_cselect_b64 s[20:21], s[20:21], s[30:31]")
    a.i("s_cselect_b64 s[24:25], s[24:25], s[34:35]")
    srd(sX, sXp, None, 1024)
    srd(sWq, sWqp, None, 512 * 8192)
    for j in range(NX):
        a.i("buffer_load_dwordx4 v[%d:%d], v%d, s[%d:%d], 0 offen offset:%d", vXr + 4 * j, vXr + 4 * j + 3, vT0 + 2, sX, sX + 3, 16 * j)
        vm.issue("x%d" % j)

    def wqload(j):
        s = j % QD
        a.i("buffer_load_dwordx4 v[%d:%d], v%d, s[%d:%d], s%d offen%s", vWq + 4 * s, vWq + 4 * s + 3, vWqOff, sWq, sWq + 3, sQoff, p.wqflags)
        vm.issue("wq%d" % j)
        if j != NWQ - 1:
            a.i("s_add_u32 s%d, s%d, 8192", sQoff, sQoff)

    def kvload(which, i, soff, tag=None):
        ring, srdb = (vK, sK) if which == "K" else (vV, sV)
        a.i("buffer_load_dwordx4 v[%d:%d], v%d, s[%d:%d], %s offen offset:%d%s", ring + 4 * i, ring + 4 * i + 3,
            vOffKV + i // 4, srdb, srdb + 3, soff, (i % 4) * 1024, kvf)
        vm.issue(tag or "%s%d" % (which, i))

    ringq = [("K", i) for i in range(T)] + [("V", i) for i in range(T)]
    first = min(p.QF, QD)
    for j in range(first):
        wqload(j)
    srd(sK, sKp, sOff, 1 << 20)
    srd(sV, sVp, sOff, 1 << 20)
    nq = first
    ring_early = p.early
    cnt = 0
    while nq < QD:
        wqload(nq); nq += 1
        cnt += 1
        if cnt % p.ratio == 0 and ring_early > 0 and ringq:
            w, i = ringq.pop(0); kvload(w, i, "0"); ring_early -= 1
    a.i("s_lshl_b32 s%d, s%d, 17", sT0, sHead)
    srd(sWo, sWop, sT0, 131072)
    a.i("v_lshrrev_b32 v%d, %d, v%d", vT0 + 4, lg(LPR), vLane)
    a.i("v_and_b32 v%d, %d, v%d", vT0 + 5, LPR - 1, vLane)
    a.i("v_lshlrev_b32 v%d, 10, v%d", vT0 + 4, vT0 + 4)
    a.i("v_lshl_add_u32 v%d, v%d, 4, v%d", vWoOff, vT0 + 5, vT0 + 4)
    a.i("s_lshl_b32 s%d, s%d, %d", sT0, sWave, lg(CW * 2))
    a.i("v_add_u32 v%d, s%d, v%d", vWoOff, sT0, vWoOff)
    a.i("s_mov_b32 s%d, 0", sWoOff)
    a.i("s_lshl_b32 s%d, s%d, %d", sT0, sWave, lg(NWO * 1024))
    a.i("s_mov_b32 m0, s%d", sT0)
    srd(sWs, 40, None, 0x100000 if not p.diag else 0x200000)
    a.i("s_mov_b32 s%d, %s", sC, f32hex(CLOG))
    vA = vAcc
    for e in range(8):
        a.i("v_mov_b32 v%d, 0", vA + e)
    vm.maybe_wait("x%d" % (NX - 1))
    for j in range(NWQ):
        vm.wait("wq%d" % j)
        s = j % QD
        xr = vXr + j // 2
        if j % 2 == 0:
            a.i("v_lshlrev_b32 v%d, 16, v%d", vT0, xr)
        else:
            a.i("v_and_b32 v%d, 0xffff0000, v%d", vT0, xr)
        for d in range(4):
            w = vWq + 4 * s + d
            a.i("v_lshlrev_b32 v%d, 16, v%d", vT0 + 2 + 2 * (d % 3), w)
            a.i("v_and_b32 v%d, 0xffff0000, v%d", vT0 + 3 + 2 * (d % 3), w)
            a.i("v_pk_fma_f32 v[%d:%d], v[%d:%d], v[%d:%d], v[%d:%d] op_sel_hi:[1,0,1]", vA + 2 * d, vA + 2 * d + 1,
                vT0 + 2 + 2 * (d % 3), vT0 + 3 + 2 * (d % 3), vT0, vT0 + 1, vA + 2 * d, vA + 2 * d + 1)
        if nq < NWQ:
            wqload(nq); nq += 1
            cnt += 1
            if cnt % p.ratio == 0 and ring_early > 0 and ringq:
                w, i = ringq.pop(0); kvload(w, i, "0"); ring_early -= 1
            if nq == NWQ:
                while ringq:
                    w, i = ringq.pop(0); kvload(w, i, "0")
        elif ringq:
            while ringq:
                w, i = ringq.pop(0); kvload(w, i, "0")
    assert not ringq

    def reduce_scatter(base, stages=2):
        for e in range(4):
            a.i("v_permlane32_swap_b32 v%d, v%d", base + e, base + e + 4)
        for e in range(4):
            a.i("v_add_f32 v%d, v%d, v%d", base + e, base + e, base + e + 4)
        if stages >= 2:
            for e in range(2):
                a.i("v_permlane16_swap_b32 v%d, v%d", base + e, base + e + 2)
            for e in range(2):
                a.i("v_add_f32 v%d, v%d, v%d", base + e, base + e, base + e + 2)
    reduce_scatter(vA)
    a.i("v_lshrrev_b32 v%d, 4, v%d", vT0, vLane)
    a.i("v_and_b32 v%d, 15, v%d", vT0 + 1, vLane)
    a.i("v_lshlrev_b32 v%d, 3, v%d", vT0, vT0)
    a.i("v_lshl_add_u32 v%d, v%d, 5, v%d", vT0, vT0 + 1, vT0)
    a.i("s_lshl_b32 s%d, s%d, 9", sT0, sWave)
    a.i("s_add_u32 s%d, s%d, %d", sT0, sT0, L_QP)
    a.i("v_add_u32 v%d, s%d, v%d", vT0, sT0, vT0)
    a.i("ds_write_b64 v%d, v[%d:%d]", vT0, vA, vA + 1)
    a.i("v_lshlrev_b32 v%d, 5, v%d", vT0 + 1, vT0 + 1)
    a.i("v_add_u32 v%d, %d, v%d", vT0 + 1, L_QP, vT0 + 1)
    a.i("s_waitcnt lgkmcnt(0)")
    a.i("s_barrier")
    GW = min(W, 4)
    for w in range(W):
        a.i("ds_read_b128 v[%d:%d], v%d offset:%d", vWq + 8 * (w % GW), vWq + 8 * (w % GW) + 3, vT0 + 1, w * 512)
        a.i("ds_read_b128 v[%d:%d], v%d offset:%d", vWq + 8 * (w % GW) + 4, vWq + 8 * (w % GW) + 7, vT0 + 1, w * 512 + 16)
        if w % GW == GW - 1:
            a.i("s_waitcnt lgkmcnt(0)")
            for ww in range(GW):
                for d in range(4):
                    src = vWq + 8 * ww + 2 * d
                    if w == GW - 1 and ww == 0:
                        continue
                    if w == GW - 1 and ww == 1:
                        a.i("v_pk_add_f32 v[%d:%d], v[%d:%d], v[%d:%d]", vA + 2 * d, vA + 2 * d + 1, vWq + 2 * d, vWq + 2 * d + 1, src, src + 1)
                    else:
                        a.i("v_pk_add_f32 v[%d:%d], v[%d:%d], v[%d:%d]", vA + 2 * d, vA + 2 * d + 1, vA + 2 * d, vA + 2 * d + 1, src, src + 1)
    for d in range(4):
        a.i("v_cvt_pk_bf16_f32 v%d, v%d, v%d", vQ + d, vA + 2 * d, vA + 2 * d + 1)
    for e in range(8):
        a.i("v_mov_b32 v%d, 0", vAcc + e)
    a.i("v_mov_b32 v%d, 0xff800000", vMc)
    a.i("v_mov_b32 v%d, 0xff800000", vM)
    a.i("v_mov_b32 v%d, 0", vL)
    ts(1)

    wolab = [0]

    def woload():
        wolab[0] += 1
        a.i("s_cmp_lt_u32 s%d, 0x20000", sWoOff)
        a.i("s_cbranch_scc0 L_wo%d", wolab[0])
        a.i("buffer_load_dwordx4 v%d, s[%d:%d], s%d offen%s lds", vWoOff, sWo, sWo + 3, sWoOff, p.woflags)
        a.i("s_add_u32 s%d, s%d, %d", sWoOff, sWoOff, RPL * 1024)
        a.i("s_add_u32 m0, m0, 1024")
        a.label("L_wo%d" % wolab[0])

    a.i("s_mov_b32 s%d, %d", sOff, stride)
    a.i("s_mov_b32 s%d, %d", sCnt, NIT - 1)

    def body(last):
        for i in range(T):
            n = (T - 1 - i) + T if last else 2 * T - 1
            a.i("s_waitcnt vmcnt(%d)", n)
            k = vK + 4 * i
            a.i("v_dot2_f32_bf16 v%d, v%d, v%d, 0", vS + i, k, vQ)
            for d in range(1, 4):
                a.i("v_dot2_f32_bf16 v%d, v%d, v%d, v%d", vS + i, k + d, vQ + d, vS + i)
            if not last:
                a.i("buffer_load_dwordx4 v[%d:%d], v%d, s[%d:%d], s%d offen offset:%d%s", k, k + 3, vOffKV + i // 4, sK, sK + 3, sOff, (i % 4) * 1024, kvf)
        if not last:
            for _ in range(WO_PER_IT):
                woload()
        for r in (8, 4, 2, 1):
            for i in range(T):
                a.i("v_add_f32_dpp v%d, v%d, v%d row_ror:%d row_mask:0xf bank_mask:0xf", vS + i, vS + i, vS + i, r)
        a.i("v_max3_f32 v%d, v%d, v%d, v%d", vM, vM, vS, vS + 1)
        for i in range(2, T, 2):
            a.i("v_max3_f32 v%d, v%d, v%d, v%d", vM, vM, vS + i, vS + i + 1)
        a.i("v_mul_f32 v%d, s%d, v%d", vT0, sC, vM)
        a.i("v_sub_f32 v%d, v%d, v%d", vAl, vMc, vT0)
        a.i("v_mov_b32 v%d, v%d", vMc, vT0)
        a.i("v_exp_f32 v%d, v%d", vAl, vAl)
        for i in range(T):
            a.i("v_fma_f32 v%d, v%d, s%d, -v%d", vS + i, vS + i, sC, vMc)
        for i in range(T):
            a.i("v_exp_f32 v%d, v%d", vS + i, vS + i)
        a.i("v_mul_f32 v%d, v%d, v%d", vL, vL, vAl)
        for d in range(4):
            a.i("v_pk_mul_f32 v[%d:%d], v[%d:%d], v[%d:%d] op_sel:[0,%d] op_sel_hi:[1,%d]", vAcc + 2 * d, vAcc + 2 * d + 1,
                vAcc + 2 * d, vAcc + 2 * d + 1, vAl & ~1, (vAl & ~1) + 1, vAl & 1, vAl & 1)
        for i in range(T):
            a.i("v_add_f32 v%d, v%d, v%d", vL, vL, vS + i)
        for i in range(T):
            n = T - 1 - i if last else 2 * T - 1
            a.i("s_waitcnt vmcnt(%d)", n)
            vv = vV + 4 * i
            sp = (vS + i) & ~1
            hi = (vS + i) & 1
            for d in range(4):
                t = vT0 + 2 * d
                a.i("v_lshlrev_b32 v%d, 16, v%d", t, vv + d)
                a.i("v_and_b32 v%d, 0xffff0000, v%d", t + 1, vv + d)
            for d in range(4):
                t = vT0 + 2 * d
                a.i("v_pk_fma_f32 v[%d:%d], v[%d:%d], v[%d:%d], v[%d:%d] op_sel:[0,%d,0] op_sel_hi:[1,%d,1]", vAcc + 2 * d, vAcc + 2 * d + 1,
                    t, t + 1, sp, sp + 1, vAcc + 2 * d, vAcc + 2 * d + 1, hi, hi)
            if not last:
                a.i("buffer_load_dwordx4 v[%d:%d], v%d, s[%d:%d], s%d offen offset:%d%s", vv, vv + 3, vOffKV + i // 4, sV, sV + 3, sOff, (i % 4) * 1024, kvf)

    a(".p2align 6")
    a.label("L_loop")
    body(False)
    a.i("s_add_u32 s%d, s%d, %d", sOff, sOff, stride)
    a.i("s_sub_u32 s%d, s%d, 1", sCnt, sCnt)
    a.i("s_cmp_lg_u32 s%d, 0", sCnt)
    a.i("s_cbranch_scc1 L_loop")
    body(True)
    ts(2)

    a.i("s_lshl_b32 s%d, s%d, %d", sT0, sWave, lg(NWO * 1024))
    a.i("v_lshlrev_b32 v%d, 4, v%d", vWoOff, vLane)
    a.i("v_add_u32 v%d, s%d, v%d", vWoOff, sT0, vWoOff)
    nbat = NWO // NB

    def wo_read(b):
        base = vK + 4 * NB * (b % 2)
        for i in range(NB):
            a.i("ds_read_b128 v[%d:%d], v%d offset:%d", base + 4 * i, base + 4 * i + 3, vWoOff, (b * NB + i) * 1024)
    wo_read(0)
    a.i("v_mov_b32 v%d, v%d", vT0, vM)
    a.i("v_mov_b32 v%d, v%d", vT0 + 1, vM)
    a.i("v_permlane32_swap_b32 v%d, v%d", vT0, vT0 + 1)
    a.i("v_max_f32 v%d, v%d, v%d", vT0, vT0, vT0 + 1)
    a.i("v_mov_b32 v%d, v%d", vT0 + 1, vT0)
    a.i("v_permlane16_swap_b32 v%d, v%d", vT0, vT0 + 1)
    a.i("v_max_f32 v%d, v%d, v%d", vT0, vT0, vT0 + 1)
    a.i("s_lshl_b32 s%d, s%d, 2", sT0, sWave)
    a.i("s_add_u32 s%d, s%d, %d", sT0, sT0, L_MX)
    a.i("v_mov_b32 v%d, s%d", vT0 + 2, sT0)
    a.i("ds_write_b32 v%d, v%d", vT0 + 2, vT0)
    a.i("v_mov_b32 v%d, %d", vT0 + 3, L_MX)
    a.i("s_waitcnt lgkmcnt(0)")
    a.i("s_barrier")
    if W == 2:
        a.i("ds_read_b64 v[%d:%d], v%d", vT0 + 4, vT0 + 5, vT0 + 3)
        a.i("s_waitcnt lgkmcnt(0)")
        a.i("v_max_f32 v%d, v%d, v%d", vT0, vT0 + 4, vT0 + 5)
    else:
        a.i("ds_read_b128 v[%d:%d], v%d", vT0 + 4, vT0 + 7, vT0 + 3)
        a.i("s_waitcnt lgkmcnt(0)")
        a.i("v_max3_f32 v%d, v%d, v%d, v%d", vT0, vT0 + 4, vT0 + 5, vT0 + 6)
        a.i("v_max_f32 v%d, v%d, v%d", vT0, vT0, vT0 + 7)
        for j in range(1, W // 4):
            a.i("ds_read_b128 v[%d:%d], v%d offset:%d", vT0 + 4, vT0 + 7, vT0 + 3, 16 * j)
            a.i("s_waitcnt lgkmcnt(0)")
            a.i("v_max3_f32 v%d, v%d, v%d, v%d", vT0, vT0, vT0 + 4, vT0 + 5)
            a.i("v_max3_f32 v%d, v%d, v%d, v%d", vT0, vT0, vT0 + 6, vT0 + 7)
    a.i("v_mul_f32 v%d, s%d, v%d", vM, sC, vT0)
    a.i("v_sub_f32 v%d, v%d, v%d", vAl, vMc, vM)
    a.i("v_exp_f32 v%d, v%d", vAl, vAl)
    a.i("v_mul_f32 v%d, v%d, v%d", vL, vL, vAl)
    for e in range(8):
        a.i("v_mul_f32 v%d, v%d, v%d", vAcc + e, vAcc + e, vAl)
    reduce_scatter(vAcc)
    a.i("v_mov_b32 v%d, v%d", vT0 + 1, vL)
    a.i("v_permlane32_swap_b32 v%d, v%d", vL, vT0 + 1)
    a.i("v_add_f32 v%d, v%d, v%d", vL, vL, vT0 + 1)
    a.i("v_mov_b32 v%d, v%d", vT0 + 1, vL)
    a.i("v_permlane16_swap_b32 v%d, v%d", vL, vT0 + 1)
    a.i("v_add_f32 v%d, v%d, v%d", vL, vL, vT0 + 1)
    a.i("v_lshrrev_b32 v%d, 4, v%d", vT0 + 2, vLane)
    a.i("v_and_b32 v%d, 15, v%d", vT0 + 3, vLane)
    a.i("v_lshlrev_b32 v%d, 3, v%d", vT0 + 4, vT0 + 3)
    a.i("v_lshl_add_u32 v%d, v%d, 1, v%d", vT0 + 4, vT0 + 2, vT0 + 4)
    for e in range(2):
        a.i("v_add_u32 v%d, %d, v%d", vT0 + 5, e, vT0 + 4)
        a.i("v_and_b32 v%d, %d, v%d", vT0 + 6, RPL - 1, vT0 + 5)
        a.i("v_lshrrev_b32 v%d, %d, v%d", vT0 + 5, lg(RPL), vT0 + 5)
        a.i("v_mul_u32_u24 v%d, %d, v%d", vT0 + 6, NWO * 4, vT0 + 6)
        a.i("v_lshl_add_u32 v%d, v%d, 2, v%d", vT0 + 6, vT0 + 5, vT0 + 6)
        a.i("v_add_u32 v%d, %d, v%d", vT0 + 6, L_O, vT0 + 6)
        a.i("ds_add_f32 v%d, v%d", vT0 + 6, vAcc + e)
    a.i("v_mov_b32 v%d, %d", vT0 + 6, L_O + 512)
    a.i("s_mov_b64 exec, 1")
    a.i("ds_add_f32 v%d, v%d", vT0 + 6, vL)
    a.i("s_mov_b64 exec, -1")
    a.i("s_waitcnt lgkmcnt(0)")
    a.i("s_barrier")
    a.i("v_lshrrev_b32 v%d, %d, v%d", vT0, lg(LPR), vLane)
    a.i("v_mul_u32_u24 v%d, %d, v%d", vT0, NWO * 4, vT0)
    a.i("v_add_u32 v%d, %d, v%d", vT0, L_O, vT0)
    for j in range(NWO // 4):
        a.i("ds_read_b128 v[%d:%d], v%d offset:%d", vO + 4 * j, vO + 4 * j + 3, vT0, 16 * j)
    a.i("v_mov_b32 v%d, %d", vT0 + 6, L_O + 512)
    a.i("ds_read_b32 v%d, v%d", vL, vT0 + 6)
    for e in range(8):
        a.i("v_mov_b32 v%d, 0", vAcc + e)
    for b in range(nbat):
        a.i("s_waitcnt lgkmcnt(0)")
        if b + 1 < nbat:
            wo_read(b + 1)
        base = vK + 4 * NB * (b % 2)
        for ii in range(NB):
            i = b * NB + ii
            sp = (vO + i) & ~1
            hi = (vO + i) & 1
            for d in range(4):
                t = vT0 + 2 * d
                a.i("v_lshlrev_b32 v%d, 16, v%d", t, base + 4 * ii + d)
                a.i("v_and_b32 v%d, 0xffff0000, v%d", t + 1, base + 4 * ii + d)
            for d in range(4):
                t = vT0 + 2 * d
                a.i("v_pk_fma_f32 v[%d:%d], v[%d:%d], v[%d:%d], v[%d:%d] op_sel:[0,%d,0] op_sel_hi:[1,%d,1]", vAcc + 2 * d, vAcc + 2 * d + 1,
                    t, t + 1, sp, sp + 1, vAcc + 2 * d, vAcc + 2 * d + 1, hi, hi)
    a.i("s_lshl_b32 s%d, s%d, %d", sT0, sWave, lg(CW * 4))
    a.i("s_lshl_b32 s%d, s%d, 11", sT1, sP)
    a.i("s_add_u32 s%d, s%d, s%d", sT0, sT0, sT1)
    if LPR == 32:
        reduce_scatter(vAcc, 1)
        a.i("v_lshrrev_b32 v%d, 5, v%d", vT0, vLane)
        a.i("v_and_b32 v%d, 31, v%d", vT0 + 1, vLane)
        a.i("v_lshlrev_b32 v%d, 4, v%d", vT0, vT0)
        a.i("v_lshl_add_u32 v%d, v%d, 5, v%d", vT0, vT0 + 1, vT0)
        a.i("buffer_store_dwordx4 v[%d:%d], v%d, s[%d:%d], s%d offen", vAcc, vAcc + 3, vT0, sWs, sWs + 3, sT0)
    else:
        reduce_scatter(vAcc)
        if LPR == 8:
            for e in range(2):
                a.i("v_add_f32_dpp v%d, v%d, v%d row_ror:8 row_mask:0xf bank_mask:0xf", vAcc + e, vAcc + e, vAcc + e)
        ccmask = LPR - 1
        a.i("v_lshrrev_b32 v%d, 4, v%d", vT0, vLane)
        a.i("v_and_b32 v%d, %d, v%d", vT0 + 1, ccmask, vLane)
        a.i("v_lshlrev_b32 v%d, 3, v%d", vT0, vT0)
        a.i("v_lshl_add_u32 v%d, v%d, 5, v%d", vT0, vT0 + 1, vT0)
        if LPR == 8:
            a.i("v_and_b32 v%d, 15, v%d", vT0 + 2, vLane)
            a.i("v_cmp_ge_u32 vcc, %d, v%d", ccmask, vT0 + 2)
            a.i("s_and_saveexec_b64 s[%d:%d], vcc", sEx, sEx + 1)
        a.i("buffer_store_dwordx2 v[%d:%d], v%d, s[%d:%d], s%d offen", vAcc, vAcc + 1, vT0, sWs, sWs + 3, sT0)
        if LPR == 8:
            a.i("s_mov_b64 exec, s[%d:%d]", sEx, sEx + 1)
    a.i("v_mov_b32 v%d, v%d", vT0 + 2, vM)
    a.i("v_mov_b32 v%d, v%d", vT0 + 3, vL)
    a.i("v_mov_b32 v%d, 0", vT0)
    a.i("s_mov_b64 exec, 1")
    a.i("s_cmp_lg_u32 s%d, 0", sWave)
    a.i("s_cbranch_scc1 L_noml")
    a.i("s_lshl_b32 s%d, s%d, 3", sT1, sP)
    a.i("s_add_u32 s%d, s%d, 0x80000", sT1, sT1)
    a.i("buffer_store_dwordx2 v[%d:%d], v%d, s[%d:%d], s%d offen", vT0 + 2, vT0 + 3, vT0, sWs, sWs + 3, sT1)
    a.label("L_noml")
    if p.diag:
        ts(3)
        a.i("s_waitcnt lgkmcnt(0)")
        for k in range(8):
            a.i("v_mov_b32 v%d, s%d", vK + k, sTS + k)
        a.i("s_mul_i32 s%d, s2, %d", sT1, W)
        a.i("s_add_u32 s%d, s%d, s%d", sT1, sT1, sWave)
        a.i("s_lshl_b32 s%d, s%d, 5", sT1, sT1)
        a.i("s_add_u32 s%d, s%d, 0x100000", sT1, sT1)
        a.i("buffer_store_dwordx4 v[%d:%d], v%d, s[%d:%d], s%d offen", vK, vK + 3, vT0, sWs, sWs + 3, sT1)
        a.i("buffer_store_dwordx4 v[%d:%d], v%d, s[%d:%d], s%d offen offset:16", vK + 4, vK + 7, vT0, sWs, sWs + 3, sT1)
    a.label("L_end")
    a.i("s_endpgm")

    final_kernel(a)
    descr(a, NAME + "_kernel", NV, 96)
    descr(a, "final_reduce_kernel", 40, 32)
    return a.text()


def descr(a, name, nv, ns):
    if "rodata" not in "".join(a.lines[-400:]):
        pass
    a('.section .rodata,"a"')
    a(".p2align 6")
    a(".amdhsa_kernel %s" % name)
    a("  .amdhsa_next_free_vgpr %d" % nv)
    a("  .amdhsa_next_free_sgpr %d" % ns)
    a("  .amdhsa_accum_offset %d" % ((nv + 3) // 4 * 4))
    a("  .amdhsa_group_segment_fixed_size 0")
    a("  .amdhsa_kernarg_size 104")
    a("  .amdhsa_user_sgpr_count 2")
    a("  .amdhsa_user_sgpr_kernarg_segment_ptr 1")
    a("  .amdhsa_system_sgpr_workgroup_id_x 1")
    a("  .amdhsa_float_denorm_mode_32 3")
    a(".end_amdhsa_kernel")


def final_kernel(a):
    a(".globl final_reduce_kernel")
    a(".p2align 8")
    a(".type final_reduce_kernel,@function")
    a("final_reduce_kernel:")
    a.i("s_cmp_ge_u32 s2, 32")
    a.i("s_cbranch_scc1 F_end")
    a.i("s_load_dwordx2 s[4:5], s[0:1], 80")
    a.i("s_load_dwordx2 s[6:7], s[0:1], 96")
    a.i("s_lshr_b32 s16, s2, 4")
    a.i("s_and_b32 s17, s2, 15")
    a.i("v_lshrrev_b32 v1, 3, v0")
    a.i("v_and_b32 v2, 7, v0")
    a.i("s_lshl_b32 s18, s16, 5")
    a.i("v_add_u32 v1, s18, v1")
    a.i("v_lshlrev_b32 v3, 5, v1")
    a.i("v_lshlrev_b32 v4, 13, v1")
    a.i("v_lshl_add_u32 v4, v2, 4, v4")
    a.i("v_add_u32 v5, 4096, v4")
    a.i("s_lshl_b32 s19, s17, 7")
    a.i("s_mov_b32 s20, 0x80000")
    a.i("s_waitcnt lgkmcnt(0)")
    a.i("s_mov_b32 s8, s6")
    a.i("s_mov_b32 s9, s7")
    a.i("s_mov_b32 s10, 0x100000")
    a.i("s_mov_b32 s11, 0x20000")
    a.i("buffer_load_dwordx4 v[8:11], v3, s[8:11], s20 offen")
    a.i("buffer_load_dwordx4 v[12:15], v3, s[8:11], s20 offen offset:16")
    for s in range(2):
        a.i("buffer_load_dwordx4 v[%d:%d], v4, s[8:11], s19 offen offset:%d", 16 + 4 * s, 19 + 4 * s, 2048 * s)
    for s in range(2, 4):
        a.i("buffer_load_dwordx4 v[%d:%d], v5, s[8:11], s19 offen offset:%d", 16 + 4 * s, 19 + 4 * s, 2048 * (s - 2))
    a.i("s_mov_b32 s12, s4")
    a.i("s_mov_b32 s13, s5")
    a.i("s_mov_b32 s14, 2048")
    a.i("s_mov_b32 s15, 0x20000")
    a.i("s_waitcnt vmcnt(4)")
    a.i("v_max3_f32 v6, v8, v10, v12")
    a.i("v_max_f32 v6, v6, v14")
    for s in range(4):
        a.i("v_sub_f32 v%d, v%d, v6", 8 + 2 * s, 8 + 2 * s)
    for s in range(4):
        a.i("v_exp_f32 v%d, v%d", 8 + 2 * s, 8 + 2 * s)
    a.i("v_mul_f32 v7, v8, v9")
    a.i("v_fmac_f32 v7, v10, v11")
    a.i("v_fmac_f32 v7, v12, v13")
    a.i("v_fmac_f32 v7, v14, v15")
    a.i("v_rcp_f32 v7, v7")
    for s in range(4):
        a.i("v_mul_f32 v%d, v%d, v7", 8 + 2 * s, 8 + 2 * s)
    a.i("s_waitcnt vmcnt(0)")
    for e in range(4):
        a.i("v_mul_f32 v%d, v8, v%d", 32 + e, 16 + e)
        a.i("v_fmac_f32 v%d, v10, v%d", 32 + e, 20 + e)
        a.i("v_fmac_f32 v%d, v12, v%d", 32 + e, 24 + e)
        a.i("v_fmac_f32 v%d, v14, v%d", 32 + e, 28 + e)
    for e in range(4):
        a.i("v_add_f32_dpp v%d, v%d, v%d row_ror:8 row_mask:0xf bank_mask:0xf", 32 + e, 32 + e, 32 + e)
    for e in range(2):
        a.i("v_permlane32_swap_b32 v%d, v%d", 32 + e, 34 + e)
    for e in range(2):
        a.i("v_add_f32 v%d, v%d, v%d", 32 + e, 32 + e, 34 + e)
    a.i("v_permlane16_swap_b32 v32, v33")
    a.i("v_add_f32 v32, v32, v33")
    a.i("v_and_b32 v1, 63, v0")
    a.i("v_lshrrev_b32 v3, 4, v1")
    a.i("v_lshl_add_u32 v3, v2, 2, v3")
    a.i("v_lshrrev_b32 v5, 6, v0")
    a.i("v_lshl_add_u32 v3, v5, 5, v3")
    a.i("v_lshlrev_b32 v3, 2, v3")
    a.i("ds_write_b32 v3, v32")
    a.i("s_waitcnt lgkmcnt(0)")
    a.i("s_barrier")
    a.i("v_cmp_gt_u32 vcc, 16, v0")
    a.i("s_and_saveexec_b64 s[22:23], vcc")
    a.i("s_cbranch_execz F_end")
    a.i("v_lshlrev_b32 v3, 3, v0")
    for w in range(4):
        a.i("ds_read_b64 v[%d:%d], v3 offset:%d", 8 + 2 * w, 9 + 2 * w, 128 * w)
    a.i("s_waitcnt lgkmcnt(0)")
    a.i("v_pk_add_f32 v[8:9], v[8:9], v[10:11]")
    a.i("v_pk_add_f32 v[12:13], v[12:13], v[14:15]")
    a.i("v_pk_add_f32 v[8:9], v[8:9], v[12:13]")
    a.i("v_cvt_pk_bf16_f32 v8, v8, v9")
    a.i("v_lshlrev_b32 v3, 2, v0")
    a.i("s_lshl_b32 s18, s16, 10")
    a.i("s_lshl_b32 s19, s17, 6")
    a.i("s_add_u32 s18, s18, s19")
    a.i("buffer_store_dword v8, v3, s[12:15], s18 offen")
    a.label("F_end")
    a.i("s_endpgm")


def parse(argv):
    ap = argparse.ArgumentParser()
    ap.add_argument("-W", type=int, default=4)
    ap.add_argument("-T", type=int, default=8)
    ap.add_argument("--QD", type=int, default=16)
    ap.add_argument("--QF", type=int, default=4)
    ap.add_argument("--ratio", type=int, default=3)
    ap.add_argument("--early", type=int, default=8)
    ap.add_argument("--NB", type=int, default=8)
    ap.add_argument("--interleave", type=int, default=1)
    ap.add_argument("--kvflags", default="nt")
    ap.add_argument("--wqflags", default="")
    ap.add_argument("--woflags", default="")
    ap.add_argument("--diag", type=int, default=0)
    ap.add_argument("-o", default="/dev/stdout")
    p = ap.parse_args(argv)
    for k in ("kvflags", "wqflags", "woflags"):
        s = getattr(p, k).strip().replace("+", " ")
        if s == "none":
            s = ""
        setattr(p, k, " " + s if s else "")
    return p


if __name__ == "__main__":
    p = parse(sys.argv[1:])
    open(p.o, "w").write(gen(p))
```

```python
import sys, argparse, math, struct
from asmlib import Asm
from gen2 import VM, lg, f32hex, descr, final_kernel, CLOG, NAME

HEADER = """; Decode attention for two independent branches (A, B), heads concatenated, fused q / output projections.
"""


def gen(p):
    T, N = p.T, p.N
    R = 2 * T
    assert N <= R
    NS = 4
    NIT = 1024 // (NS * T)
    NWQ = 32
    RPG = 32
    NX = 4
    QD = p.QD
    NWO = 16
    kvf = p.kvflags
    L_WO = 0
    L_QP = 65536
    L_MX = L_QP + 2048
    L_O = L_MX + 64
    L_END = L_O + 576
    LDS = max((L_END + 255) // 256 * 256, p.minlds)

    a = Asm()
    a(HEADER.rstrip())
    a("; @launch kernel=%s_kernel grid=(256,1,1) block=(512,1,1) lds=%d" % (NAME, LDS))
    a("; @launch kernel=final_reduce_kernel grid=(32,1,1) block=(256,1,1) lds=4096")
    a('.amdgcn_target "amdgcn-amd-amdhsa--gfx950"')
    a(".text")
    a(".globl %s_kernel" % NAME)
    a(".p2align 8")
    a(".type %s_kernel,@function" % NAME)
    a("%s_kernel:" % NAME)

    sXp, sKp, sVp, sWqp, sWop = 16, 18, 20, 22, 24
    sK, sV, sWq, sWo, sX, sWs = 44, 48, 52, 56, 60, 64
    sHead, sSplit, sBr, sWave = 68, 69, 70, 71
    sCur, sCnt, sT0, sT1, sC, sNext = 72, 73, 74, 75, 76, 77
    sP, sQoff = 78, 79
    sTS = 80
    sEx = 90
    sW4 = 15
    vLane, vOffKV = 1, 2
    nOff = max(1, T // 4)
    v = 2 + nOff
    vQ = (v + 1) // 2 * 2; v = vQ + 4
    vM, vL, vMc, vAl = v, v + 1, v + 2, v + 3; v += 4
    vT0 = v; v += 8
    vAcc = v; v += 8
    vS = v; v += T + (T % 2)
    vAdd0, vAdd1, vMxA, vWoA, vYoff, vOA, vWqOff, vWoOff = range(v, v + 8); v += 8
    vK = (v + 3) // 4 * 4
    vV = vK + 4 * T
    vRingEnd = max(vV + 4 * T, vK + 4 * NWO)
    vO = vRingEnd
    vWq = vO + 16
    vXr = vWq + 4 * max(QD, 8)
    NV = vXr + 4 * NX
    assert NV <= 256, NV

    def ts(k, where=None):
        if p.diag == 1:
            if k < 4:
                a.i("s_memrealtime s[%d:%d]", sTS + 2 * k, sTS + 2 * k + 1)
        elif p.diag == 2:
            if k == 2:
                a.i("s_memrealtime s[%d:%d]", sTS, sTS + 1)
                a.i("s_memtime s[%d:%d]", sTS + 2, sTS + 3)
            if k == 3:
                a.i("s_memrealtime s[%d:%d]", sTS + 4, sTS + 5)
                a.i("s_memtime s[%d:%d]", sTS + 6, sTS + 7)
        elif p.diag == 4:
            if k >= 10:
                a.i("s_memtime s[%d:%d]", sTS + 2 * (k - 10), sTS + 2 * (k - 10) + 1)
        elif p.diag == 3:
            if k == 0:
                a.i("s_memrealtime s[%d:%d]", sTS, sTS + 1)
                a.i("s_memtime s[%d:%d]", sTS + 2, sTS + 3)
            if k == 3:
                a.i("s_memrealtime s[%d:%d]", sTS + 4, sTS + 5)
                a.i("s_memtime s[%d:%d]", sTS + 6, sTS + 7)

    def srd(base, ptr, offreg, nrec):
        if offreg is None:
            a.i("s_mov_b32 s%d, s%d", base, ptr)
            a.i("s_mov_b32 s%d, s%d", base + 1, ptr + 1)
        else:
            a.i("s_add_u32 s%d, s%d, s%d", base, ptr, offreg)
            a.i("s_addc_u32 s%d, s%d, 0", base + 1, ptr + 1)
        a.i("s_mov_b32 s%d, 0x%x", base + 2, nrec)
        a.i("s_mov_b32 s%d, 0x20000", base + 3)

    def reduce_scatter(base):
        for e in range(4):
            a.i("v_permlane32_swap_b32 v%d, v%d", base + e, base + e + 4)
        for e in range(4):
            a.i("v_add_f32 v%d, v%d, v%d", base + e, base + e, base + e + 4)
        for e in range(2):
            a.i("v_permlane16_swap_b32 v%d, v%d", base + e, base + e + 2)
        for e in range(2):
            a.i("v_add_f32 v%d, v%d, v%d", base + e, base + e, base + e + 2)

    a.i("s_cmp_ge_u32 s2, 256")
    a.i("s_cbranch_scc1 L_end")
    a.i("s_load_dwordx16 s[16:31], s[0:1], 0")
    a.i("s_load_dwordx4 s[32:35], s[0:1], 64")
    a.i("s_load_dwordx2 s[40:41], s[0:1], 96")
    ts(0)
    a.i("v_and_b32 v%d, 63, v0", vLane)
    a.i("v_lshrrev_b32 v%d, 6, v0", vT0)
    a.i("s_and_b32 s%d, s2, 31", sHead)
    a.i("s_lshr_b32 s%d, s2, 6", sSplit)
    a.i("s_bfe_u32 s%d, s2, 0x10005", sBr)
    a.i("v_readfirstlane_b32 s%d, v%d", sWave, vT0)
    a.i("s_and_b32 s%d, s2, 63", sP)
    a.i("s_lshl_b32 s%d, s%d, 2", sP, sP)
    a.i("s_add_u32 s%d, s%d, s%d", sP, sP, sSplit)
    a.i("s_and_b32 s%d, s%d, 3", sW4, sWave)
    a.i("v_lshrrev_b32 v%d, 4, v%d", vT0, vLane)
    a.i("v_and_b32 v%d, 15, v%d", vT0 + 1, vLane)
    a.i("s_cmp_ge_u32 s%d, 4", sWave)
    a.i("s_cbranch_scc1 L_stream")

    vm = VM(a)
    a.i("s_lshl_b32 s%d, s%d, %d", sT0, sW4, lg(RPG * 4 * 2))
    a.i("v_lshlrev_b32 v%d, %d, v%d", vT0 + 2, lg(RPG * 2), vT0)
    a.i("v_add_u32 v%d, s%d, v%d", vT0 + 2, sT0, vT0 + 2)
    a.i("v_lshlrev_b32 v%d, %d, v%d", vWqOff, lg(RPG * 8192), vT0)
    a.i("v_lshl_add_u32 v%d, v%d, 4, v%d", vWqOff, vT0 + 1, vWqOff)
    a.i("s_lshl_b32 s%d, s%d, %d", sT0, sW4, lg(RPG * 4 * 8192))
    a.i("s_lshl_b32 s%d, s%d, 8", sT1, sHead)
    a.i("s_add_u32 s%d, s%d, s%d", sQoff, sT0, sT1)
    a.i("s_waitcnt lgkmcnt(0)")
    a.i("s_cmp_eq_u32 s%d, 0", sBr)
    a.i("s_cselect_b64 s[16:17], s[16:17], s[26:27]")
    a.i("s_cselect_b64 s[22:23], s[22:23], s[32:33]")
    a.i("s_cselect_b64 s[24:25], s[24:25], s[34:35]")
    srd(sWq, sWqp, None, 512 * 8192)
    srd(sX, sXp, None, 1024)

    def wqload(j):
        s = j % QD
        a.i("buffer_load_dwordx4 v[%d:%d], v%d, s[%d:%d], s%d offen%s", vWq + 4 * s, vWq + 4 * s + 3, vWqOff, sWq, sWq + 3, sQoff, p.wqflags)
        vm.issue("wq%d" % j)
        if j != NWQ - 1:
            a.i("s_add_u32 s%d, s%d, 8192", sQoff, sQoff)
    for j in range(NX):
        a.i("buffer_load_dwordx4 v[%d:%d], v%d, s[%d:%d], 0 offen offset:%d", vXr + 4 * j, vXr + 4 * j + 3, vT0 + 2, sX, sX + 3, 16 * j)
        vm.issue("x%d" % j)
    for j in range(QD):
        wqload(j)
    nq = QD
    a.i("s_lshl_b32 s%d, s%d, 17", sT0, sHead)
    srd(sWo, sWop, sT0, 131072)
    srd(sWs, 40, None, 0x100000 if not p.diag else 0x200000)
    a.i("v_lshrrev_b32 v%d, 3, v%d", vT0 + 4, vLane)
    a.i("v_and_b32 v%d, 7, v%d", vT0 + 5, vLane)
    a.i("v_lshlrev_b32 v%d, 10, v%d", vT0 + 4, vT0 + 4)
    a.i("v_lshl_add_u32 v%d, v%d, 4, v%d", vWoOff, vT0 + 5, vT0 + 4)
    a.i("s_lshl_b32 s%d, s%d, 7", sT0, sW4)
    a.i("v_add_u32 v%d, s%d, v%d", vWoOff, sT0, vWoOff)
    a.i("s_cmp_lg_u32 s%d, 0", sWave)
    a.i("s_cbranch_scc1 L_skipz")
    a.i("v_lshlrev_b32 v%d, 2, v%d", vT0 + 6, vLane)
    a.i("v_add_u32 v%d, %d, v%d", vT0 + 6, L_O, vT0 + 6)
    a.i("v_mov_b32 v%d, 0", vT0 + 7)
    a.i("ds_write_b32 v%d, v%d", vT0 + 6, vT0 + 7)
    a.i("ds_write_b32 v%d, v%d offset:256", vT0 + 6, vT0 + 7)
    a.i("ds_write_b32 v%d, v%d offset:320", vT0 + 6, vT0 + 7)
    a.label("L_skipz")
    vA = vAcc
    for e in range(8):
        a.i("v_mov_b32 v%d, 0", vA + e)
    vm.maybe_wait("x%d" % (NX - 1))
    for j in range(NWQ):
        vm.wait("wq%d" % j)
        s = j % QD
        xr = vXr + j // 2
        if j % 2 == 0:
            a.i("v_lshlrev_b32 v%d, 16, v%d", vT0, xr)
        else:
            a.i("v_and_b32 v%d, 0xffff0000, v%d", vT0, xr)
        for d in range(4):
            w = vWq + 4 * s + d
            a.i("v_lshlrev_b32 v%d, 16, v%d", vT0 + 2 + 2 * (d % 3), w)
            a.i("v_and_b32 v%d, 0xffff0000, v%d", vT0 + 3 + 2 * (d % 3), w)
            a.i("v_pk_fma_f32 v[%d:%d], v[%d:%d], v[%d:%d], v[%d:%d] op_sel_hi:[1,0,1]", vA + 2 * d, vA + 2 * d + 1,
                vT0 + 2 + 2 * (d % 3), vT0 + 3 + 2 * (d % 3), vT0, vT0 + 1, vA + 2 * d, vA + 2 * d + 1)
        if nq < NWQ:
            wqload(nq); nq += 1
    reduce_scatter(vA)
    a.i("v_lshrrev_b32 v%d, 4, v%d", vT0, vLane)
    a.i("v_and_b32 v%d, 15, v%d", vT0 + 1, vLane)
    a.i("v_lshlrev_b32 v%d, 3, v%d", vT0, vT0)
    a.i("v_lshl_add_u32 v%d, v%d, 5, v%d", vT0, vT0 + 1, vT0)
    a.i("s_lshl_b32 s%d, s%d, 9", sT0, sW4)
    a.i("s_add_u32 s%d, s%d, %d", sT0, sT0, L_QP)
    a.i("v_add_u32 v%d, s%d, v%d", vT0, sT0, vT0)
    a.i("ds_write_b64 v%d, v[%d:%d]", vT0, vA, vA + 1)
    a.i("s_waitcnt lgkmcnt(0)")
    a.i("s_barrier")
    ts(1)
    a.i("s_lshl_b32 s%d, s%d, 14", sT0, sW4)
    a.i("s_mov_b32 m0, s%d", sT0)
    a.i("s_mov_b32 s%d, 0", sCur)
    a.i("v_add_u32 v%d, 512, v%d", vT0, vWoOff)
    for i in range(NWO):
        a.i("buffer_load_dwordx4 v[%d:%d], v%d, s[%d:%d], s%d offen%s", vK + 4 * i, vK + 4 * i + 3, vWoOff, sWo, sWo + 3, sCur, p.woflags)
        a.i("s_waitcnt vmcnt(%d)", p.PW - 1)
        a.i("buffer_load_dwordx4 v%d, s[%d:%d], s%d offen%s lds", vT0, sWo, sWo + 3, sCur, p.woflags)
        a.i("s_add_u32 s%d, s%d, 8192", sCur, sCur)
        a.i("s_add_u32 m0, m0, 1024")
        a.i("s_waitcnt vmcnt(%d)", p.PW - 1)
    a.i("s_waitcnt vmcnt(0)")
    ts(2)
    a.i("s_barrier")
    epilogue_addr_common = True
    a.i("v_lshrrev_b32 v%d, 3, v%d", vOA, vLane)
    a.i("v_lshlrev_b32 v%d, 6, v%d", vOA, vOA)
    a.i("v_add_u32 v%d, %d, v%d", vOA, L_O, vOA)
    a.i("v_lshrrev_b32 v%d, 4, v%d", vT0, vLane)
    a.i("v_and_b32 v%d, 7, v%d", vT0 + 1, vLane)
    a.i("v_lshlrev_b32 v%d, 3, v%d", vT0, vT0)
    a.i("v_lshl_add_u32 v%d, v%d, 5, v%d", vYoff, vT0 + 1, vT0)
    a.i("s_barrier")
    a.i("s_branch L_y")

    a.label("L_stream")
    a.i("s_lshl_b32 s%d, s%d, %d", sT0, sW4, lg(T * 1024))
    stride = NS * T * 1024
    a.i("v_lshlrev_b32 v%d, 4, v%d", vOffKV, vLane)
    a.i("v_add_u32 v%d, s%d, v%d", vOffKV, sT0, vOffKV)
    for j in range(1, nOff):
        a.i("v_add_u32 v%d, %d, v%d", vOffKV + j, 4096 * j, vOffKV)
    a.i("s_lshl_b32 s%d, s%d, 22", sT0, sHead)
    a.i("s_lshl_b32 s%d, s%d, 20", sT1, sSplit)
    a.i("s_add_u32 s%d, s%d, s%d", sCur, sT0, sT1)
    a.i("s_waitcnt lgkmcnt(0)")
    a.i("s_cmp_eq_u32 s%d, 0", sBr)
    a.i("s_cselect_b64 s[18:19], s[18:19], s[28:29]")
    a.i("s_cselect_b64 s[20:21], s[20:21], s[30:31]")
    srd(sK, sKp, sCur, 1 << 20)
    srd(sV, sVp, sCur, 1 << 20)

    def kvload(j, soff):
        which, i = ("K", j) if j < T else ("V", j - T)
        ring, srdb = (vK, sK) if which == "K" else (vV, sV)
        a.i("buffer_load_dwordx4 v[%d:%d], v%d, s[%d:%d], %s offen offset:%d%s", ring + 4 * i, ring + 4 * i + 3,
            vOffKV + i // 4, srdb, srdb + 3, soff, (i % 4) * 1024, kvf)
    if p.sdelay:
        a.i("s_nop 0")
    for j in range(R):
        kvload(j, "0")
    srd(sWs, 40, None, 0x100000 if not p.diag else 0x200000)
    a.i("s_mov_b32 s%d, %s", sC, f32hex(CLOG))
    a.i("v_lshlrev_b32 v%d, 3, v%d", vT0 + 4, vT0 + 1)
    a.i("v_lshl_add_u32 v%d, v%d, 1, v%d", vT0 + 4, vT0, vT0 + 4)
    for e, dst in ((0, vAdd0), (1, vAdd1)):
        a.i("v_add_u32 v%d, %d, v%d", vT0 + 5, e, vT0 + 4)
        a.i("v_and_b32 v%d, 7, v%d", vT0 + 6, vT0 + 5)
        a.i("v_lshrrev_b32 v%d, 3, v%d", vT0 + 5, vT0 + 5)
        a.i("v_lshlrev_b32 v%d, 6, v%d", vT0 + 6, vT0 + 6)
        a.i("v_lshl_add_u32 v%d, v%d, 2, v%d", vT0 + 6, vT0 + 5, vT0 + 6)
        a.i("v_add_u32 v%d, %d, v%d", dst, L_O, vT0 + 6)
    a.i("s_lshl_b32 s%d, s%d, 2", sT0, sW4)
    a.i("s_add_u32 s%d, s%d, %d", sT0, sT0, L_MX)
    a.i("v_mov_b32 v%d, s%d", vMxA, sT0)
    a.i("s_lshl_b32 s%d, s%d, 14", sT0, sW4)
    a.i("v_lshlrev_b32 v%d, 4, v%d", vWoA, vLane)
    a.i("v_add_u32 v%d, s%d, v%d", vWoA, sT0, vWoA)
    a.i("v_lshrrev_b32 v%d, 3, v%d", vOA, vLane)
    a.i("v_lshlrev_b32 v%d, 6, v%d", vOA, vOA)
    a.i("v_add_u32 v%d, %d, v%d", vOA, L_O, vOA)
    a.i("v_and_b32 v%d, 7, v%d", vT0 + 5, vLane)
    a.i("v_lshlrev_b32 v%d, 3, v%d", vT0 + 6, vT0)
    a.i("v_lshl_add_u32 v%d, v%d, 5, v%d", vYoff, vT0 + 5, vT0 + 6)
    a.i("v_lshlrev_b32 v%d, 5, v%d", vT0 + 1, vT0 + 1)
    a.i("v_add_u32 v%d, %d, v%d", vT0 + 1, L_QP, vT0 + 1)
    a.i("s_barrier")
    for w in range(4):
        a.i("ds_read_b128 v[%d:%d], v%d offset:%d", vWq + 8 * w, vWq + 8 * w + 3, vT0 + 1, w * 512)
        a.i("ds_read_b128 v[%d:%d], v%d offset:%d", vWq + 8 * w + 4, vWq + 8 * w + 7, vT0 + 1, w * 512 + 16)
    for e in range(8):
        a.i("v_mov_b32 v%d, 0", vAcc + e)
    a.i("v_mov_b32 v%d, 0xff800000", vMc)
    a.i("v_mov_b32 v%d, 0xff800000", vM)
    a.i("v_mov_b32 v%d, 0", vL)
    a.i("s_mov_b32 s%d, 0", sCur)
    a.i("s_mov_b32 s%d, %d", sNext, stride)
    a.i("s_mov_b32 s%d, %d", sCnt, NIT - 2)
    a.i("s_waitcnt lgkmcnt(0)")
    for d in range(4):
        a.i("v_pk_add_f32 v[%d:%d], v[%d:%d], v[%d:%d]", vWq + 2 * d, vWq + 2 * d + 1, vWq + 2 * d, vWq + 2 * d + 1, vWq + 8 + 2 * d, vWq + 9 + 2 * d)
        a.i("v_pk_add_f32 v[%d:%d], v[%d:%d], v[%d:%d]", vWq + 16 + 2 * d, vWq + 17 + 2 * d, vWq + 16 + 2 * d, vWq + 17 + 2 * d, vWq + 24 + 2 * d, vWq + 25 + 2 * d)
    for d in range(4):
        a.i("v_pk_add_f32 v[%d:%d], v[%d:%d], v[%d:%d]", vWq + 2 * d, vWq + 2 * d + 1, vWq + 2 * d, vWq + 2 * d + 1, vWq + 16 + 2 * d, vWq + 17 + 2 * d)
    for d in range(4):
        a.i("v_cvt_pk_bf16_f32 v%d, v%d, v%d", vQ + d, vWq + 2 * d, vWq + 2 * d + 1)
    ts(1)

    def body(kind):
        def wait(j):
            if kind == "first":
                n = (R - 1 - j) + max(0, j - (R - N))
            elif kind == "mid":
                n = N - 1
            else:
                n = min(R - 1, j + N - 1) - j
            a.i("s_waitcnt vmcnt(%d)", n)

        def issue(j):
            k = j + N
            if k < R:
                if kind != "first":
                    kvload(k, "s%d" % sCur)
            elif kind != "last":
                kvload(k - R, "s%d" % sNext)
        for i in range(T):
            wait(i)
            k = vK + 4 * i
            a.i("v_dot2_f32_bf16 v%d, v%d, v%d, 0", vS + i, k, vQ)
            for d in range(1, 4):
                a.i("v_dot2_f32_bf16 v%d, v%d, v%d, v%d", vS + i, k + d, vQ + d, vS + i)
            issue(i)
        for r in (8, 4, 2, 1):
            for i in range(T):
                a.i("v_add_f32_dpp v%d, v%d, v%d row_ror:%d row_mask:0xf bank_mask:0xf", vS + i, vS + i, vS + i, r)
        a.i("v_max3_f32 v%d, v%d, v%d, v%d", vM, vM, vS, vS + 1)
        for i in range(2, T, 2):
            a.i("v_max3_f32 v%d, v%d, v%d, v%d", vM, vM, vS + i, vS + i + 1)
        a.i("v_mul_f32 v%d, s%d, v%d", vT0, sC, vM)
        a.i("v_sub_f32 v%d, v%d, v%d", vAl, vMc, vT0)
        a.i("v_mov_b32 v%d, v%d", vMc, vT0)
        a.i("v_exp_f32 v%d, v%d", vAl, vAl)
        for i in range(T):
            a.i("v_fma_f32 v%d, v%d, s%d, -v%d", vS + i, vS + i, sC, vMc)
        for i in range(T):
            a.i("v_exp_f32 v%d, v%d", vS + i, vS + i)
        a.i("v_mul_f32 v%d, v%d, v%d", vL, vL, vAl)
        for d in range(4):
            a.i("v_pk_mul_f32 v[%d:%d], v[%d:%d], v[%d:%d] op_sel:[0,%d] op_sel_hi:[1,%d]", vAcc + 2 * d, vAcc + 2 * d + 1,
                vAcc + 2 * d, vAcc + 2 * d + 1, vAl & ~1, (vAl & ~1) + 1, vAl & 1, vAl & 1)
        for i in range(T):
            a.i("v_add_f32 v%d, v%d, v%d", vL, vL, vS + i)
        for i in range(T):
            wait(T + i)
            vv = vV + 4 * i
            sp = (vS + i) & ~1
            hi = (vS + i) & 1
            for d in range(4):
                t = vT0 + 2 * d
                a.i("v_lshlrev_b32 v%d, 16, v%d", t, vv + d)
                a.i("v_and_b32 v%d, 0xffff0000, v%d", t + 1, vv + d)
            for d in range(4):
                t = vT0 + 2 * d
                a.i("v_pk_fma_f32 v[%d:%d], v[%d:%d], v[%d:%d], v[%d:%d] op_sel:[0,%d,0] op_sel_hi:[1,%d,1]", vAcc + 2 * d, vAcc + 2 * d + 1,
                    t, t + 1, sp, sp + 1, vAcc + 2 * d, vAcc + 2 * d + 1, hi, hi)
            issue(T + i)

    body("first")
    a.i("s_mov_b32 s%d, s%d", sCur, sNext)
    a.i("s_add_u32 s%d, s%d, %d", sNext, sNext, stride)
    a(".p2align 6")
    a.label("L_loop")
    body("mid")
    a.i("s_mov_b32 s%d, s%d", sCur, sNext)
    a.i("s_add_u32 s%d, s%d, %d", sNext, sNext, stride)
    a.i("s_sub_u32 s%d, s%d, 1", sCnt, sCnt)
    a.i("s_cmp_lg_u32 s%d, 0", sCnt)
    a.i("s_cbranch_scc1 L_loop")
    body("last")
    ts(2)
    ts(10)
    a.i("v_mov_b32 v%d, v%d", vT0, vM)
    a.i("v_mov_b32 v%d, v%d", vT0 + 1, vM)
    a.i("v_permlane32_swap_b32 v%d, v%d", vT0, vT0 + 1)
    a.i("v_max_f32 v%d, v%d, v%d", vT0, vT0, vT0 + 1)
    a.i("v_mov_b32 v%d, v%d", vT0 + 1, vT0)
    a.i("v_permlane16_swap_b32 v%d, v%d", vT0, vT0 + 1)
    a.i("v_max_f32 v%d, v%d, v%d", vT0, vT0, vT0 + 1)
    a.i("v_mov_b32 v%d, %d", vT0 + 3, L_MX)
    a.i("ds_write_b32 v%d, v%d", vMxA, vT0)
    a.i("s_waitcnt lgkmcnt(0)")
    ts(11)
    a.i("s_barrier")
    ts(12)
    a.i("ds_read_b128 v[%d:%d], v%d", vT0 + 4, vT0 + 7, vT0 + 3)
    for i in range(8):
        a.i("ds_read_b128 v[%d:%d], v%d offset:%d", vK + 4 * i, vK + 4 * i + 3, vWoA, i * 1024)
    a.i("s_waitcnt lgkmcnt(7)")
    for i in range(8, NWO):
        a.i("ds_read_b128 v[%d:%d], v%d offset:%d", vK + 4 * i, vK + 4 * i + 3, vWoA, i * 1024)
    a.i("v_max3_f32 v%d, v%d, v%d, v%d", vT0, vT0 + 4, vT0 + 5, vT0 + 6)
    a.i("v_max_f32 v%d, v%d, v%d", vT0, vT0, vT0 + 7)
    a.i("v_mul_f32 v%d, s%d, v%d", vM, sC, vT0)
    a.i("v_sub_f32 v%d, v%d, v%d", vAl, vMc, vM)
    a.i("v_exp_f32 v%d, v%d", vAl, vAl)
    a.i("v_mul_f32 v%d, v%d, v%d", vL, vL, vAl)
    for e in range(8):
        a.i("v_mul_f32 v%d, v%d, v%d", vAcc + e, vAcc + e, vAl)
    a.i("v_mov_b32 v%d, v%d", vT0 + 1, vL)
    a.i("v_permlane32_swap_b32 v%d, v%d", vL, vT0 + 1)
    a.i("v_add_f32 v%d, v%d, v%d", vL, vL, vT0 + 1)
    a.i("v_mov_b32 v%d, v%d", vT0 + 1, vL)
    reduce_scatter(vAcc)
    a.i("v_permlane16_swap_b32 v%d, v%d", vL, vT0 + 1)
    a.i("v_add_f32 v%d, v%d, v%d", vL, vL, vT0 + 1)
    a.i("s_waitcnt lgkmcnt(8)")
    a.i("ds_add_f32 v%d, v%d", vAdd0, vAcc)
    a.i("ds_add_f32 v%d, v%d", vAdd1, vAcc + 1)
    a.i("v_mov_b32 v%d, %d", vT0 + 6, L_O + 512)
    a.i("s_mov_b64 exec, 1")
    a.i("ds_add_f32 v%d, v%d", vT0 + 6, vL)
    a.i("s_mov_b64 exec, -1")
    a.i("s_waitcnt lgkmcnt(0)")
    ts(13)
    a.i("s_barrier")
    ts(14)

    a.label("L_y")
    for j in range(4):
        a.i("ds_read_b128 v[%d:%d], v%d offset:%d", vO + 4 * j, vO + 4 * j + 3, vOA, 16 * j)
    a.i("v_mov_b32 v%d, %d", vT0 + 6, L_O + 512)
    a.i("ds_read_b32 v%d, v%d", vL, vT0 + 6)
    for e in range(8):
        a.i("v_mov_b32 v%d, 0", vAcc + e)
    a.i("s_lshl_b32 s%d, s%d, 8", sT0, sWave)
    a.i("s_lshl_b32 s%d, s%d, 11", sT1, sP)
    a.i("s_add_u32 s%d, s%d, s%d", sT0, sT0, sT1)
    for i in range(NWO):
        if i % 4 == 0:
            a.i("s_waitcnt lgkmcnt(%d)", 4 - i // 4 if i // 4 < 3 else 1)
        sp = (vO + i) & ~1
        hi = (vO + i) & 1
        for d in range(4):
            t = vT0 + 2 * d
            a.i("v_lshlrev_b32 v%d, 16, v%d", t, vK + 4 * i + d)
            a.i("v_and_b32 v%d, 0xffff0000, v%d", t + 1, vK + 4 * i + d)
        for d in range(4):
            t = vT0 + 2 * d
            a.i("v_pk_fma_f32 v[%d:%d], v[%d:%d], v[%d:%d], v[%d:%d] op_sel:[0,%d,0] op_sel_hi:[1,%d,1]", vAcc + 2 * d, vAcc + 2 * d + 1,
                t, t + 1, sp, sp + 1, vAcc + 2 * d, vAcc + 2 * d + 1, hi, hi)
    ts(15)
    reduce_scatter(vAcc)
    for e in range(2):
        a.i("v_add_f32_dpp v%d, v%d, v%d row_ror:8 row_mask:0xf bank_mask:0xf", vAcc + e, vAcc + e, vAcc + e)
    a.i("s_mov_b32 exec_lo, 0x00ff00ff")
    a.i("s_mov_b32 exec_hi, 0x00ff00ff")
    a.i("buffer_store_dwordx2 v[%d:%d], v%d, s[%d:%d], s%d offen", vAcc, vAcc + 1, vYoff, sWs, sWs + 3, sT0)
    a.i("s_mov_b64 exec, 1")
    a.i("s_cmp_lg_u32 s%d, 4", sWave)
    a.i("s_cbranch_scc1 L_noml")
    a.i("s_waitcnt lgkmcnt(0)")
    a.i("v_mov_b32 v%d, v%d", vT0 + 2, vM)
    a.i("v_mov_b32 v%d, v%d", vT0 + 3, vL)
    a.i("v_mov_b32 v%d, 0", vT0)
    a.i("s_lshl_b32 s%d, s%d, 3", sT1, sP)
    a.i("s_add_u32 s%d, s%d, 0x80000", sT1, sT1)
    a.i("buffer_store_dwordx2 v[%d:%d], v%d, s[%d:%d], s%d offen", vT0 + 2, vT0 + 3, vT0, sWs, sWs + 3, sT1)
    a.label("L_noml")
    if p.diag:
        ts(3)
        ts(16)
        a.i("s_waitcnt vmcnt(0)")
        ts(17)
        a.i("s_waitcnt lgkmcnt(0)")
        a.i("v_mov_b32 v%d, 0", vT0)
        for k in range(8):
            a.i("v_mov_b32 v%d, s%d", vK + k, sTS + (2 * k if p.diag == 4 else k))
        a.i("s_mul_i32 s%d, s2, 8", sT1)
        a.i("s_add_u32 s%d, s%d, s%d", sT1, sT1, sWave)
        a.i("s_lshl_b32 s%d, s%d, 5", sT1, sT1)
        a.i("s_add_u32 s%d, s%d, 0x100000", sT1, sT1)
        a.i("buffer_store_dwordx4 v[%d:%d], v%d, s[%d:%d], s%d offen", vK, vK + 3, vT0, sWs, sWs + 3, sT1)
        a.i("buffer_store_dwordx4 v[%d:%d], v%d, s[%d:%d], s%d offen offset:16", vK + 4, vK + 7, vT0, sWs, sWs + 3, sT1)
    a.label("L_end")
    a.i("s_endpgm")

    final_kernel(a)
    descr(a, NAME + "_kernel", NV, 96)
    descr(a, "final_reduce_kernel", 40, 32)
    return a.text()


def parse(argv):
    ap = argparse.ArgumentParser()
    ap.add_argument("-T", type=int, default=8)
    ap.add_argument("-N", type=int, default=6)
    ap.add_argument("--QD", type=int, default=12)
    ap.add_argument("--PW", type=int, default=2)
    ap.add_argument("--sdelay", type=int, default=0)
    ap.add_argument("--minlds", type=int, default=82176)
    ap.add_argument("--kvflags", default="nt")
    ap.add_argument("--wqflags", default="")
    ap.add_argument("--woflags", default="")
    ap.add_argument("--diag", type=int, default=0)
    ap.add_argument("-o", default="/dev/stdout")
    p = ap.parse_args(argv)
    for k in ("kvflags", "wqflags", "woflags"):
        s = getattr(p, k).strip().replace("+", " ")
        if s == "none":
            s = ""
        setattr(p, k, " " + s if s else "")
    return p


if __name__ == "__main__":
    p = parse(sys.argv[1:])
    open(p.o, "w").write(gen(p))
```

```python
import sys, argparse, math, struct
from asmlib import Asm
from gen2 import VM, lg, f32hex, descr, CLOG, NAME

HEADER = """; Decode attention of two independent branches (A, B) with fused q / output projections; out = concat(A, B).
"""


def gen(p):
    T, N = p.T, p.N
    R = 2 * T
    assert N <= R
    NS = 4
    NIT = 1024 // (NS * T)
    NWQ = 32
    RPG = 32
    NX = 4
    QD = p.QD
    assert QD % 2 == 0
    NWO = 32
    F = 32
    kvf = p.kvflags
    L_QP = 0
    L_OP = 2048
    L_ML = 4096
    LDS = max(4352, p.minlds)

    a = Asm()
    a(HEADER.rstrip())
    a("; @launch grid=(256,1,1) block=(512,1,1) lds=%d" % LDS)
    a('.amdgcn_target "amdgcn-amd-amdhsa--gfx950"')
    a(".text")
    a(".globl %s_kernel" % NAME)
    a(".p2align 8")
    a(".type %s_kernel,@function" % NAME)
    a("%s_kernel:" % NAME)

    sXp, sKp, sVp, sWqp, sWop = 16, 18, 20, 22, 24
    sOutP, sDbgP, sWsP = 36, 38, 40
    sK, sV, sWq, sWo, sX, sWs = 44, 48, 52, 56, 60, 64
    sDbg, sOut = 44, 48
    sHead, sSplit, sBr, sWave = 68, 69, 70, 71
    sCur, sCnt, sT0, sT1, sC, sNext = 72, 73, 74, 75, 76, 77
    sP, sQoff = 78, 79
    sTS = 80
    sW4 = 15
    sPlo, sPhi = 12, 13
    sTk = 14
    sSpin = 11
    vLane, vOffKV = 1, 2
    nOff = max(1, T // 4)
    v = 2 + nOff
    vQ = (v + 1) // 2 * 2; v = vQ + 4
    vM, vL, vMc, vAl = v, v + 1, v + 2, v + 3; v += 4
    vT0 = v; v += 8
    vAcc = v; v += 8
    vS = v; v += max(T, 8)
    vOpA, vMlA, vYoff, vWoOff, vWqOff, vTk = range(v, v + 6); v += 6
    vK = (v + 3) // 4 * 4
    vV = vK + 4 * T
    vW = vK
    vWq = vK
    vXr = vK + 64
    vQP = vK + 8 * T
    NV = max(vW + 128, vQP + 32)
    assert QD * 4 <= 64 and NV <= 256, NV

    def ts(k):
        if p.diag == 1 and k < 4:
            a.i("s_memrealtime s[%d:%d]", sTS + 2 * k, sTS + 2 * k + 1)
        if p.diag == 4 and k >= 10:
            a.i("s_memtime s[%d:%d]", sTS + 2 * (k - 10), sTS + 2 * (k - 10) + 1)

    def srd(base, ptr, offreg, nrec):
        if offreg is None:
            a.i("s_mov_b32 s%d, s%d", base, ptr)
            a.i("s_mov_b32 s%d, s%d", base + 1, ptr + 1)
        else:
            a.i("s_add_u32 s%d, s%d, s%d", base, ptr, offreg)
            a.i("s_addc_u32 s%d, s%d, 0", base + 1, ptr + 1)
        a.i("s_mov_b32 s%d, 0x%x", base + 2, nrec)
        a.i("s_mov_b32 s%d, 0x20000", base + 3)

    def reduce_scatter(base):
        for e in range(4):
            a.i("v_permlane32_swap_b32 v%d, v%d", base + e, base + e + 4)
        for e in range(4):
            a.i("v_add_f32 v%d, v%d, v%d", base + e, base + e, base + e + 4)
        for e in range(2):
            a.i("v_permlane16_swap_b32 v%d, v%d", base + e, base + e + 2)
        for e in range(2):
            a.i("v_add_f32 v%d, v%d, v%d", base + e, base + e, base + e + 2)

    def diag_store(lab):
        if not p.diag:
            return
        ts(3)
        ts(17)
        a.i("s_mov_b64 exec, 1")
        a.i("s_waitcnt lgkmcnt(0)")
        a.i("v_mov_b32 v%d, 0", vT0)
        for k in range(8):
            a.i("v_mov_b32 v%d, s%d", vK + k, sTS + (2 * k if p.diag == 4 else k))
        a.i("s_mul_i32 s%d, s2, 8", sT1)
        a.i("s_add_u32 s%d, s%d, s%d", sT1, sT1, sWave)
        a.i("s_lshl_b32 s%d, s%d, 5", sT1, sT1)
        a.i("s_add_u32 s%d, s%d, 0x100000", sT1, sT1)
        a.i("buffer_store_dwordx4 v[%d:%d], v%d, s[%d:%d], s%d offen", vK, vK + 3, vT0, sWs, sWs + 3, sT1)
        a.i("buffer_store_dwordx4 v[%d:%d], v%d, s[%d:%d], s%d offen offset:16", vK + 4, vK + 7, vT0, sWs, sWs + 3, sT1)

    WSREC = 0x100000 if not p.diag else 0x200000
    a.i("s_cmp_ge_u32 s2, 256")
    a.i("s_cbranch_scc1 L_end")
    a.i("s_load_dwordx16 s[16:31], s[0:1], 0")
    a.i("s_load_dwordx8 s[32:39], s[0:1], 64")
    a.i("s_load_dwordx2 s[40:41], s[0:1], 96")
    ts(0)
    if p.diag == 4:
        for k in range(16):
            a.i("s_mov_b32 s%d, 0", sTS + k)
    a.i("v_and_b32 v%d, 63, v0", vLane)
    a.i("v_lshrrev_b32 v%d, 6, v0", vT0)
    a.i("s_and_b32 s%d, s2, 31", sHead)
    a.i("s_lshr_b32 s%d, s2, 6", sSplit)
    a.i("s_bfe_u32 s%d, s2, 0x10005", sBr)
    a.i("v_readfirstlane_b32 s%d, v%d", sWave, vT0)
    a.i("s_and_b32 s%d, s2, 63", sP)
    a.i("s_lshl_b32 s%d, s%d, 2", sP, sP)
    a.i("s_add_u32 s%d, s%d, s%d", sP, sP, sSplit)
    a.i("s_and_b32 s%d, s%d, 3", sW4, sWave)
    a.i("v_lshrrev_b32 v%d, 4, v%d", vT0, vLane)
    a.i("v_and_b32 v%d, 15, v%d", vT0 + 1, vLane)
    a.i("s_cmp_ge_u32 s%d, 4", sWave)
    a.i("s_cbranch_scc1 L_stream")

    vm = VM(a)
    a.i("s_lshl_b32 s%d, s%d, %d", sT0, sW4, lg(RPG * 4 * 2))
    a.i("v_lshlrev_b32 v%d, %d, v%d", vT0 + 2, lg(RPG * 2), vT0)
    a.i("v_add_u32 v%d, s%d, v%d", vT0 + 2, sT0, vT0 + 2)
    a.i("v_lshlrev_b32 v%d, %d, v%d", vWqOff, lg(RPG * 8192), vT0)
    a.i("v_lshl_add_u32 v%d, v%d, 4, v%d", vWqOff, vT0 + 1, vWqOff)
    a.i("s_lshl_b32 s%d, s%d, %d", sT0, sW4, lg(RPG * 4 * 8192))
    a.i("s_lshl_b32 s%d, s%d, 8", sT1, sHead)
    a.i("s_add_u32 s%d, s%d, s%d", sQoff, sT0, sT1)
    a.i("v_lshlrev_b32 v%d, 3, v%d", vT0 + 3, vT0)
    a.i("v_lshl_add_u32 v%d, v%d, 5, v%d", vYoff, vT0 + 1, vT0 + 3)
    a.i("s_lshl_b32 s%d, s%d, 9", sT0, sW4)
    a.i("s_lshl_b32 s%d, s%d, 11", sT1, sP)
    a.i("s_add_u32 s%d, s%d, s%d", sT0, sT0, sT1)
    a.i("v_add_u32 v%d, s%d, v%d", vYoff, sT0, vYoff)
    a.i("s_waitcnt lgkmcnt(0)")
    a.i("s_cmp_eq_u32 s%d, 0", sBr)
    a.i("s_cselect_b64 s[16:17], s[16:17], s[26:27]")
    a.i("s_cselect_b64 s[22:23], s[22:23], s[32:33]")
    a.i("s_cselect_b64 s[24:25], s[24:25], s[34:35]")
    srd(sX, sXp, None, 1024)
    srd(sWq, sWqp, None, 512 * 8192)

    def wqload(j):
        s = j % QD
        a.i("buffer_load_dwordx4 v[%d:%d], v%d, s[%d:%d], s%d offen%s", vWq + 4 * s, vWq + 4 * s + 3, vWqOff, sWq, sWq + 3, sQoff, p.wqflags)
        vm.issue("wq%d" % j)
        if j != NWQ - 1:
            a.i("s_add_u32 s%d, s%d, 8192", sQoff, sQoff)
    for j in range(NX):
        a.i("buffer_load_dwordx4 v[%d:%d], v%d, s[%d:%d], 0 offen offset:%d", vXr + 4 * j, vXr + 4 * j + 3, vT0 + 2, sX, sX + 3, 16 * j)
        vm.issue("x%d" % j)
    for j in range(QD):
        wqload(j)
    nq = QD
    srd(sWs, sWsP, None, WSREC)
    a.i("s_lshl_b32 s%d, s%d, 3", sT1, sP)
    a.i("s_add_u32 s%d, s%d, 0x80000", sT1, sT1)
    a.i("v_mov_b32 v%d, s%d", vMlA, sT1)
    a.i("s_lshl_b32 s%d, s%d, 17", sT0, sHead)
    srd(sWo, sWop, sT0, 131072)
    srd(sDbg, sDbgP, None, 256)
    srd(sOut, sOutP, None, 2048)
    a.i("s_mov_b32 s%d, 0x05040100", sPlo)
    a.i("s_mov_b32 s%d, 0x07060302", sPhi)
    a.i("v_lshlrev_b32 v%d, 11, v%d", vWoOff, vT0)
    a.i("v_lshl_add_u32 v%d, v%d, 4, v%d", vWoOff, vT0 + 1, vWoOff)
    a.i("s_lshl_b32 s%d, s%d, 8", sT0, sW4)
    a.i("v_add_u32 v%d, s%d, v%d", vWoOff, sT0, vWoOff)
    vA = vAcc
    for e in range(8):
        a.i("v_mov_b32 v%d, 0", vA + e)
    vm.maybe_wait("x%d" % (NX - 1))
    for m in range(NWQ // 2):
        vm.wait("wq%d" % (2 * m + 1))
        s0 = vWq + 4 * ((2 * m) % QD)
        s1 = vWq + 4 * ((2 * m + 1) % QD)
        for d in range(4):
            a.i("v_perm_b32 v%d, v%d, v%d, s%d", vT0 + 2 * (d % 2), s1 + d, s0 + d, sPlo)
            a.i("v_perm_b32 v%d, v%d, v%d, s%d", vT0 + 2 * (d % 2) + 1, s1 + d, s0 + d, sPhi)
            a.i("v_dot2_f32_bf16 v%d, v%d, v%d, v%d", vA + 2 * d, vT0 + 2 * (d % 2), vXr + m, vA + 2 * d)
            a.i("v_dot2_f32_bf16 v%d, v%d, v%d, v%d", vA + 2 * d + 1, vT0 + 2 * (d % 2) + 1, vXr + m, vA + 2 * d + 1)
        for _ in range(2):
            if nq < NWQ:
                wqload(nq); nq += 1
    reduce_scatter(vA)
    a.i("v_lshrrev_b32 v%d, 4, v%d", vT0, vLane)
    a.i("v_and_b32 v%d, 15, v%d", vT0 + 1, vLane)
    a.i("v_lshlrev_b32 v%d, 3, v%d", vT0, vT0)
    a.i("v_lshl_add_u32 v%d, v%d, 5, v%d", vT0, vT0 + 1, vT0)
    a.i("s_lshl_b32 s%d, s%d, 9", sT0, sW4)
    a.i("s_add_u32 s%d, s%d, %d", sT0, sT0, L_QP)
    a.i("v_add_u32 v%d, s%d, v%d", vT0, sT0, vT0)
    a.i("ds_write_b64 v%d, v[%d:%d]", vT0, vA, vA + 1)
    a.i("s_waitcnt lgkmcnt(0)")
    a.i("s_barrier")
    ts(1)
    a.i("s_lshl_b32 s%d, s%d, 7", sC, sBr)
    a.i("s_cmp_lg_u32 s%d, 0", sWave)
    a.i("s_cbranch_scc1 L_noz")
    for e in range(4):
        a.i("v_mov_b32 v%d, 0", vT0 + e)
    a.i("v_lshlrev_b32 v%d, 5, v%d", vT0 + 4, vLane)
    a.i("s_lshl_b32 s%d, s%d, 11", sT1, sP)
    a.i("buffer_store_dwordx4 v[%d:%d], v%d, s[%d:%d], s%d offen sc1", vT0, vT0 + 3, vT0 + 4, sWs, sWs + 3, sT1)
    a.i("buffer_store_dwordx4 v[%d:%d], v%d, s[%d:%d], s%d offen offset:16 sc1", vT0, vT0 + 3, vT0 + 4, sWs, sWs + 3, sT1)
    a.i("v_mov_b32 v%d, 0", vT0 + 6)
    a.i("v_mov_b32 v%d, 1", vT0 + 7)
    a.i("s_mov_b64 exec, 1")
    a.i("buffer_store_dwordx2 v[%d:%d], v%d, s[%d:%d], 0 offen sc1", vT0, vT0 + 1, vMlA, sWs, sWs + 3)
    a.i("s_waitcnt vmcnt(0)")
    a.i("buffer_atomic_add v%d, v%d, s[%d:%d], s%d offen sc1", vT0 + 7, vT0 + 6, sDbg, sDbg + 3, sC)
    a.i("s_mov_b64 exec, -1")
    a.label("L_noz")
    a.i("s_mov_b32 s%d, 0", sCur)
    for m in range(NWO // 2):
        b = vW + 8 * m
        a.i("buffer_load_dwordx4 v[%d:%d], v%d, s[%d:%d], s%d offen%s", b, b + 3, vWoOff, sWo, sWo + 3, sCur, p.woflags)
        a.i("buffer_load_dwordx4 v[%d:%d], v%d, s[%d:%d], s%d offen offset:1024%s", b + 4, b + 7, vWoOff, sWo, sWo + 3, sCur, p.woflags)
        a.i("s_add_u32 s%d, s%d, 8192", sCur, sCur)
        a.i("s_waitcnt vmcnt(0)")
        for d in range(4):
            a.i("v_perm_b32 v%d, v%d, v%d, s%d", vT0, b + 4 + d, b + d, sPlo)
            a.i("v_perm_b32 v%d, v%d, v%d, s%d", b + 4 + d, b + 4 + d, b + d, sPhi)
            a.i("v_mov_b32 v%d, v%d", b + d, vT0)
    a.i("v_lshlrev_b32 v%d, 3, v%d", vOpA, vLane)
    a.i("v_add_u32 v%d, %d, v%d", vOpA, L_OP, vOpA)
    a.i("v_mov_b32 v%d, %d", vT0 + 7, L_ML)
    a.i("v_mov_b32 v%d, 0", vT0 + 6)
    a.i("v_mov_b32 v%d, 0x10000", vTk)
    for e in range(8):
        a.i("v_mov_b32 v%d, 0", vAcc + e)
    ts(2)
    a.i("s_barrier")
    ts(10)
    a.i("s_cmp_lg_u32 s%d, 0", sWave)
    a.i("s_cbranch_scc1 L_notk")
    a.i("s_mov_b64 exec, 1")
    a.i("buffer_atomic_add v%d, v%d, s[%d:%d], s%d offen sc0 sc1", vTk, vT0 + 6, sDbg, sDbg + 3, sC)
    a.i("s_mov_b64 exec, -1")
    a.label("L_notk")
    for w in range(4):
        a.i("ds_read_b64 v[%d:%d], v%d offset:%d", vS + 2 * w, vS + 2 * w + 1, vOpA, 512 * w)
    a.i("ds_read_b128 v[%d:%d], v%d", vT0, vT0 + 3, vT0 + 7)
    a.i("ds_read_b128 v[%d:%d], v%d offset:16", vQ, vQ + 3, vT0 + 7)
    a.i("s_waitcnt lgkmcnt(0)")
    mc = [vT0, vT0 + 2, vQ, vQ + 2]
    a.i("v_max3_f32 v%d, v%d, v%d, v%d", vM, mc[0], mc[1], mc[2])
    a.i("v_max_f32 v%d, v%d, v%d", vM, vM, mc[3])
    for w in range(4):
        a.i("v_sub_f32 v%d, v%d, v%d", mc[w], mc[w], vM)
    for w in range(4):
        a.i("v_exp_f32 v%d, v%d", mc[w], mc[w])
    a.i("v_mul_f32 v%d, v%d, v%d", vL, mc[0], mc[0] + 1)
    for w in range(1, 4):
        a.i("v_fmac_f32 v%d, v%d, v%d", vL, mc[w], mc[w] + 1)
    a.i("v_pk_mul_f32 v[%d:%d], v[%d:%d], v[%d:%d] op_sel_hi:[1,0]", vS, vS + 1, vS, vS + 1, mc[0], mc[0] + 1)
    for w in range(1, 4):
        a.i("v_pk_fma_f32 v[%d:%d], v[%d:%d], v[%d:%d], v[%d:%d] op_sel_hi:[1,0,1]", vS, vS + 1, vS + 2 * w, vS + 2 * w + 1, mc[w], mc[w] + 1, vS, vS + 1)
    a.i("v_cvt_pk_bf16_f32 v%d, v%d, v%d", vS, vS, vS + 1)
    ts(11)
    for m in range(16):
        t = vT0 + (m % 2)
        a.i("v_mov_b32_dpp v%d, v%d row_newbcast:%d row_mask:0xf bank_mask:0xf", t, vS, m)
        for d in range(4):
            a.i("v_dot2_f32_bf16 v%d, v%d, v%d, v%d", vAcc + 2 * d, vW + 8 * m + d, t, vAcc + 2 * d)
            a.i("v_dot2_f32_bf16 v%d, v%d, v%d, v%d", vAcc + 2 * d + 1, vW + 8 * m + 4 + d, t, vAcc + 2 * d + 1)
    ts(12)
    reduce_scatter(vAcc)
    a.i("v_or_b32 v%d, 1, v%d", vAcc, vAcc)
    a.i("v_or_b32 v%d, 1, v%d", vAcc + 1, vAcc + 1)
    a.i("buffer_store_dwordx2 v[%d:%d], v%d, s[%d:%d], 0 offen sc1", vAcc, vAcc + 1, vYoff, sWs, sWs + 3)
    a.i("s_cmp_lg_u32 s%d, 0", sWave)
    a.i("s_cbranch_scc1 L_done")
    a.i("v_or_b32 v%d, 1, v%d", vT0 + 2, vM)
    a.i("v_or_b32 v%d, 1, v%d", vT0 + 3, vL)
    a.i("s_mov_b64 exec, 1")
    a.i("buffer_store_dwordx2 v[%d:%d], v%d, s[%d:%d], 0 offen sc1", vT0 + 2, vT0 + 3, vMlA, sWs, sWs + 3)
    a.i("s_mov_b64 exec, -1")
    ts(13)
    a.i("v_lshrrev_b32 v%d, 2, v%d", vT0, vLane)
    a.i("v_and_b32 v%d, 3, v%d", vT0 + 1, vLane)
    a.i("v_lshlrev_b32 v%d, 11, v%d", vYoff, vT0)
    a.i("v_lshl_add_u32 v%d, v%d, 4, v%d", vYoff, vT0 + 1, vYoff)
    a.i("v_lshlrev_b32 v%d, 3, v%d", vMlA, vT0)
    a.i("s_waitcnt vmcnt(2)")
    a.i("v_readfirstlane_b32 s%d, v%d", sTk, vTk)
    a.i("s_lshr_b32 s%d, s%d, 16", sT0, sTk)
    a.i("s_cmp_lt_u32 s%d, %d", sT0, 128 - F)
    a.i("s_cbranch_scc1 L_done")
    a.i("s_sub_u32 s%d, s%d, %d", sNext, sT0, 128 - F)
    a.i("s_and_b32 s%d, s%d, 0xffff", sT0, sTk)
    a.i("s_cmp_eq_u32 s%d, 128", sT0)
    a.i("s_cbranch_scc1 L_zok")
    a.i("s_mov_b32 s%d, 0x10000", sSpin)
    a.label("L_zspin")
    a.i("s_sub_u32 s%d, s%d, 1", sSpin, sSpin)
    a.i("s_cmp_eq_u32 s%d, 0", sSpin)
    a.i("s_cbranch_scc1 L_zok")
    a.i("s_mov_b64 exec, 1")
    a.i("buffer_load_dword v%d, v%d, s[%d:%d], s%d offen sc1", vTk, vT0 + 6, sDbg, sDbg + 3, sC)
    a.i("s_waitcnt vmcnt(0)")
    a.i("v_readfirstlane_b32 s%d, v%d", sTk, vTk)
    a.i("s_mov_b64 exec, -1")
    a.i("s_and_b32 s%d, s%d, 0xffff", sT0, sTk)
    a.i("s_cmp_eq_u32 s%d, 128", sT0)
    a.i("s_cbranch_scc0 L_zspin")
    a.label("L_zok")
    ts(14)
    vY = vW
    vMl = vW + 32
    a.i("s_lshl_b32 s%d, s%d, 18", sT0, sBr)
    a.i("s_lshl_b32 s%d, s%d, 6", sT1, sNext)
    a.i("s_add_u32 s%d, s%d, s%d", sQoff, sT0, sT1)
    a.i("s_lshl_b32 s%d, s%d, 10", sT0, sBr)
    a.i("s_add_u32 s%d, s%d, 0x80000", sCnt, sT0)
    a.i("s_mov_b32 s%d, 0x10000", sSpin)
    a.label("L_poll")
    a.i("s_mov_b32 s%d, s%d", sCur, sQoff)
    for j in range(8):
        a.i("buffer_load_dwordx2 v[%d:%d], v%d, s[%d:%d], s%d offen offset:%d sc1", vMl + 2 * j, vMl + 2 * j + 1, vMlA, sWs, sWs + 3, sCnt, 128 * j)
    for j in range(8):
        a.i("buffer_load_dwordx4 v[%d:%d], v%d, s[%d:%d], s%d offen sc1", vY + 4 * j, vY + 4 * j + 3, vYoff, sWs, sWs + 3, sCur)
        if j != 7:
            a.i("s_add_u32 s%d, s%d, 32768", sCur, sCur)
    a.i("s_waitcnt vmcnt(8)")
    a.i("v_min3_u32 v%d, v%d, v%d, v%d", vT0, vMl, vMl + 1, vMl + 2)
    for k in range(3, 15, 2):
        a.i("v_min3_u32 v%d, v%d, v%d, v%d", vT0, vT0, vMl + k, vMl + k + 1)
    a.i("v_min_u32 v%d, v%d, v%d", vT0, vT0, vMl + 15)
    for j in range(8):
        a.i("v_max_f32_dpp v%d, v%d, v%d row_ror:4 row_mask:0xf bank_mask:0xf", vS + j, vMl + 2 * j, vMl + 2 * j)
    for j in range(8):
        a.i("v_max_f32_dpp v%d, v%d, v%d row_ror:8 row_mask:0xf bank_mask:0xf", vS + j, vS + j, vS + j)
    for j in range(8):
        a.i("v_sub_f32 v%d, v%d, v%d", vS + j, vMl + 2 * j, vS + j)
    for j in range(8):
        a.i("v_exp_f32 v%d, v%d", vS + j, vS + j)
    for j in range(8):
        a.i("v_mul_f32 v%d, v%d, v%d", vMl + 2 * j + 1, vMl + 2 * j + 1, vS + j)
    for j in range(8):
        a.i("v_add_f32_dpp v%d, v%d, v%d row_ror:4 row_mask:0xf bank_mask:0xf", vMl + 2 * j + 1, vMl + 2 * j + 1, vMl + 2 * j + 1)
    for j in range(8):
        a.i("v_add_f32_dpp v%d, v%d, v%d row_ror:8 row_mask:0xf bank_mask:0xf", vMl + 2 * j + 1, vMl + 2 * j + 1, vMl + 2 * j + 1)
    for j in range(8):
        a.i("v_rcp_f32 v%d, v%d", vMl + 2 * j + 1, vMl + 2 * j + 1)
    for j in range(8):
        a.i("v_mul_f32 v%d, v%d, v%d", vS + j, vS + j, vMl + 2 * j + 1)
    a.i("s_waitcnt vmcnt(0)")
    for k in range(0, 32, 2):
        a.i("v_min3_u32 v%d, v%d, v%d, v%d", vT0, vT0, vY + k, vY + k + 1)
    a.i("v_cmp_eq_u32 vcc, 0, v%d", vT0)
    a.i("s_sub_u32 s%d, s%d, 1", sSpin, sSpin)
    a.i("s_cbranch_scc1 L_pollok")
    a.i("s_cbranch_vccnz L_poll")
    a.label("L_pollok")
    ts(15)
    for e in range(4):
        a.i("v_mul_f32 v%d, v%d, v%d", vAcc + e, vS, vY + e)
    for j in range(1, 8):
        for e in range(4):
            a.i("v_fmac_f32 v%d, v%d, v%d", vAcc + e, vS + j, vY + 4 * j + e)
    for r in (4, 8):
        for e in range(4):
            a.i("v_add_f32_dpp v%d, v%d, v%d row_ror:%d row_mask:0xf bank_mask:0xf", vAcc + e, vAcc + e, vAcc + e, r)
    for e in range(2):
        a.i("v_permlane32_swap_b32 v%d, v%d", vAcc + e, vAcc + 2 + e)
    for e in range(2):
        a.i("v_add_f32 v%d, v%d, v%d", vAcc + e, vAcc + e, vAcc + 2 + e)
    a.i("v_permlane16_swap_b32 v%d, v%d", vAcc, vAcc + 1)
    a.i("v_add_f32 v%d, v%d, v%d", vAcc, vAcc, vAcc + 1)
    a.i("v_lshrrev_b32 v%d, 4, v%d", vT0, vLane)
    a.i("v_and_b32 v%d, 3, v%d", vT0 + 1, vLane)
    a.i("v_lshl_add_u32 v%d, v%d, 2, v%d", vT0, vT0 + 1, vT0)
    a.i("v_lshlrev_b32 v%d, 1, v%d", vT0, vT0)
    a.i("v_cvt_pk_bf16_f32 v%d, v%d, v%d", vAcc, vAcc, vAcc)
    a.i("s_lshl_b32 s%d, s%d, 10", sT0, sBr)
    a.i("s_lshl_b32 s%d, s%d, 5", sT1, sNext)
    a.i("s_add_u32 s%d, s%d, s%d", sT0, sT0, sT1)
    a.i("s_mov_b32 exec_lo, 0x000f000f")
    a.i("s_mov_b32 exec_hi, 0x000f000f")
    a.i("buffer_store_short v%d, v%d, s[%d:%d], s%d offen", vAcc, vT0, sOut, sOut + 3, sT0)
    ts(16)
    a.label("L_done")
    diag_store("h")
    a.i("s_endpgm")

    a.label("L_stream")
    a.i("s_lshl_b32 s%d, s%d, %d", sT0, sW4, lg(T * 1024))
    stride = NS * T * 1024
    a.i("v_lshlrev_b32 v%d, 4, v%d", vOffKV, vLane)
    a.i("v_add_u32 v%d, s%d, v%d", vOffKV, sT0, vOffKV)
    for j in range(1, nOff):
        a.i("v_add_u32 v%d, %d, v%d", vOffKV + j, 4096 * j, vOffKV)
    a.i("s_lshl_b32 s%d, s%d, 22", sT0, sHead)
    a.i("s_lshl_b32 s%d, s%d, 20", sT1, sSplit)
    a.i("s_add_u32 s%d, s%d, s%d", sCur, sT0, sT1)
    a.i("s_waitcnt lgkmcnt(0)")
    a.i("s_cmp_eq_u32 s%d, 0", sBr)
    a.i("s_cselect_b64 s[18:19], s[18:19], s[28:29]")
    a.i("s_cselect_b64 s[20:21], s[20:21], s[30:31]")
    srd(sK, sKp, sCur, 1 << 20)
    srd(sV, sVp, sCur, 1 << 20)

    def kvload(j, soff):
        which, i = ("K", j) if j < T else ("V", j - T)
        ring, srdb = (vK, sK) if which == "K" else (vV, sV)
        a.i("buffer_load_dwordx4 v[%d:%d], v%d, s[%d:%d], %s offen offset:%d%s", ring + 4 * i, ring + 4 * i + 3,
            vOffKV + i // 4, srdb, srdb + 3, soff, (i % 4) * 1024, kvf)
    for j in range(R):
        kvload(j, "0")
    if p.diag:
        srd(sWs, sWsP, None, WSREC)
    a.i("s_mov_b32 s%d, %s", sC, f32hex(CLOG))
    a.i("s_lshl_b32 s%d, s%d, 9", sT0, sW4)
    a.i("s_add_u32 s%d, s%d, %d", sT0, sT0, L_OP)
    a.i("v_lshlrev_b32 v%d, 3, v%d", vOpA, vLane)
    a.i("v_add_u32 v%d, s%d, v%d", vOpA, sT0, vOpA)
    a.i("s_lshl_b32 s%d, s%d, 3", sT0, sW4)
    a.i("s_add_u32 s%d, s%d, %d", sT0, sT0, L_ML)
    a.i("v_mov_b32 v%d, s%d", vMlA, sT0)
    a.i("v_lshlrev_b32 v%d, 5, v%d", vT0 + 1, vT0 + 1)
    a.i("v_add_u32 v%d, %d, v%d", vT0 + 1, L_QP, vT0 + 1)
    a.i("s_barrier")
    for w in range(4):
        a.i("ds_read_b128 v[%d:%d], v%d offset:%d", vQP + 8 * w, vQP + 8 * w + 3, vT0 + 1, w * 512)
        a.i("ds_read_b128 v[%d:%d], v%d offset:%d", vQP + 8 * w + 4, vQP + 8 * w + 7, vT0 + 1, w * 512 + 16)
    for e in range(8):
        a.i("v_mov_b32 v%d, 0", vAcc + e)
    a.i("v_mov_b32 v%d, 0xff800000", vMc)
    a.i("v_mov_b32 v%d, 0xff800000", vM)
    a.i("v_mov_b32 v%d, 0", vL)
    a.i("s_mov_b32 s%d, 0", sCur)
    a.i("s_mov_b32 s%d, %d", sNext, stride)
    a.i("s_mov_b32 s%d, %d", sCnt, NIT - 2)
    a.i("s_waitcnt lgkmcnt(0)")
    for d in range(4):
        a.i("v_pk_add_f32 v[%d:%d], v[%d:%d], v[%d:%d]", vQP + 2 * d, vQP + 2 * d + 1, vQP + 2 * d, vQP + 2 * d + 1, vQP + 8 + 2 * d, vQP + 9 + 2 * d)
        a.i("v_pk_add_f32 v[%d:%d], v[%d:%d], v[%d:%d]", vQP + 16 + 2 * d, vQP + 17 + 2 * d, vQP + 16 + 2 * d, vQP + 17 + 2 * d, vQP + 24 + 2 * d, vQP + 25 + 2 * d)
    for d in range(4):
        a.i("v_pk_add_f32 v[%d:%d], v[%d:%d], v[%d:%d]", vQP + 2 * d, vQP + 2 * d + 1, vQP + 2 * d, vQP + 2 * d + 1, vQP + 16 + 2 * d, vQP + 17 + 2 * d)
    for d in range(4):
        a.i("v_cvt_pk_bf16_f32 v%d, v%d, v%d", vQ + d, vQP + 2 * d, vQP + 2 * d + 1)
    ts(1)

    def body(kind):
        def wait(j):
            if kind == "first":
                n = (R - 1 - j) + max(0, j - (R - N))
            elif kind == "mid":
                n = N - 1
            else:
                n = min(R - 1, j + N - 1) - j
            a.i("s_waitcnt vmcnt(%d)", n)

        def issue(j):
            k = j + N
            if k < R:
                if kind != "first":
                    kvload(k, "s%d" % sCur)
            elif kind != "last":
                kvload(k - R, "s%d" % sNext)
        for i in range(T):
            wait(i)
            k = vK + 4 * i
            a.i("v_dot2_f32_bf16 v%d, v%d, v%d, 0", vS + i, k, vQ)
            for d in range(1, 4):
                a.i("v_dot2_f32_bf16 v%d, v%d, v%d, v%d", vS + i, k + d, vQ + d, vS + i)
            issue(i)
        for r in (8, 4, 2, 1):
            for i in range(T):
                a.i("v_add_f32_dpp v%d, v%d, v%d row_ror:%d row_mask:0xf bank_mask:0xf", vS + i, vS + i, vS + i, r)
        a.i("v_max3_f32 v%d, v%d, v%d, v%d", vM, vM, vS, vS + 1)
        for i in range(2, T, 2):
            a.i("v_max3_f32 v%d, v%d, v%d, v%d", vM, vM, vS + i, vS + i + 1)
        a.i("v_mul_f32 v%d, s%d, v%d", vT0, sC, vM)
        a.i("v_sub_f32 v%d, v%d, v%d", vAl, vMc, vT0)
        a.i("v_mov_b32 v%d, v%d", vMc, vT0)
        a.i("v_exp_f32 v%d, v%d", vAl, vAl)
        for i in range(T):
            a.i("v_fma_f32 v%d, v%d, s%d, -v%d", vS + i, vS + i, sC, vMc)
        for i in range(T):
            a.i("v_exp_f32 v%d, v%d", vS + i, vS + i)
        a.i("v_mul_f32 v%d, v%d, v%d", vL, vL, vAl)
        for d in range(4):
            a.i("v_pk_mul_f32 v[%d:%d], v[%d:%d], v[%d:%d] op_sel:[0,%d] op_sel_hi:[1,%d]", vAcc + 2 * d, vAcc + 2 * d + 1,
                vAcc + 2 * d, vAcc + 2 * d + 1, vAl & ~1, (vAl & ~1) + 1, vAl & 1, vAl & 1)
        for i in range(T):
            a.i("v_add_f32 v%d, v%d, v%d", vL, vL, vS + i)
        for i in range(T):
            wait(T + i)
            vv = vV + 4 * i
            sp = (vS + i) & ~1
            hi = (vS + i) & 1
            for d in range(4):
                t = vT0 + 2 * d
                a.i("v_lshlrev_b32 v%d, 16, v%d", t, vv + d)
                a.i("v_and_b32 v%d, 0xffff0000, v%d", t + 1, vv + d)
            for d in range(4):
                t = vT0 + 2 * d
                a.i("v_pk_fma_f32 v[%d:%d], v[%d:%d], v[%d:%d], v[%d:%d] op_sel:[0,%d,0] op_sel_hi:[1,%d,1]", vAcc + 2 * d, vAcc + 2 * d + 1,
                    t, t + 1, sp, sp + 1, vAcc + 2 * d, vAcc + 2 * d + 1, hi, hi)
            issue(T + i)

    body("first")
    a.i("s_mov_b32 s%d, s%d", sCur, sNext)
    a.i("s_add_u32 s%d, s%d, %d", sNext, sNext, stride)
    a(".p2align 6")
    a.label("L_loop")
    body("mid")
    a.i("s_mov_b32 s%d, s%d", sCur, sNext)
    a.i("s_add_u32 s%d, s%d, %d", sNext, sNext, stride)
    a.i("s_sub_u32 s%d, s%d, 1", sCnt, sCnt)
    a.i("s_cmp_lg_u32 s%d, 0", sCnt)
    a.i("s_cbranch_scc1 L_loop")
    body("last")
    ts(2)
    ts(10)
    a.i("v_mov_b32 v%d, v%d", vT0, vMc)
    a.i("v_mov_b32 v%d, v%d", vT0 + 1, vMc)
    a.i("v_permlane32_swap_b32 v%d, v%d", vT0, vT0 + 1)
    a.i("v_max_f32 v%d, v%d, v%d", vT0, vT0, vT0 + 1)
    a.i("v_mov_b32 v%d, v%d", vT0 + 1, vT0)
    a.i("v_permlane16_swap_b32 v%d, v%d", vT0, vT0 + 1)
    a.i("v_max_f32 v%d, v%d, v%d", vT0 + 2, vT0, vT0 + 1)
    a.i("v_sub_f32 v%d, v%d, v%d", vAl, vMc, vT0 + 2)
    a.i("v_exp_f32 v%d, v%d", vAl, vAl)
    a.i("v_mul_f32 v%d, v%d, v%d", vL, vL, vAl)
    for d in range(4):
        a.i("v_pk_mul_f32 v[%d:%d], v[%d:%d], v[%d:%d] op_sel:[0,%d] op_sel_hi:[1,%d]", vAcc + 2 * d, vAcc + 2 * d + 1,
            vAcc + 2 * d, vAcc + 2 * d + 1, vAl & ~1, (vAl & ~1) + 1, vAl & 1, vAl & 1)
    a.i("v_mov_b32 v%d, v%d", vT0 + 1, vL)
    a.i("v_permlane32_swap_b32 v%d, v%d", vL, vT0 + 1)
    a.i("v_add_f32 v%d, v%d, v%d", vL, vL, vT0 + 1)
    a.i("v_mov_b32 v%d, v%d", vT0 + 1, vL)
    reduce_scatter(vAcc)
    a.i("v_permlane16_swap_b32 v%d, v%d", vL, vT0 + 1)
    a.i("v_add_f32 v%d, v%d, v%d", vT0 + 3, vL, vT0 + 1)
    a.i("ds_write_b64 v%d, v[%d:%d]", vOpA, vAcc, vAcc + 1)
    a.i("s_mov_b64 exec, 1")
    a.i("ds_write_b64 v%d, v[%d:%d]", vMlA, vT0 + 2, vT0 + 3)
    a.i("s_waitcnt lgkmcnt(0)")
    ts(11)
    a.i("s_barrier")
    diag_store("s")
    a.label("L_end")
    a.i("s_endpgm")

    descr(a, NAME + "_kernel", NV, 96)
    return a.text()


def parse(argv):
    ap = argparse.ArgumentParser()
    ap.add_argument("-T", type=int, default=4)
    ap.add_argument("-N", type=int, default=6)
    ap.add_argument("--QD", type=int, default=12)
    ap.add_argument("--minlds", type=int, default=0)
    ap.add_argument("--kvflags", default="nt")
    ap.add_argument("--wqflags", default="")
    ap.add_argument("--woflags", default="")
    ap.add_argument("--diag", type=int, default=0)
    ap.add_argument("-o", default="/dev/stdout")
    p = ap.parse_args(argv)
    for k in ("kvflags", "wqflags", "woflags"):
        s = getattr(p, k).strip().replace("+", " ")
        if s == "none":
            s = ""
        setattr(p, k, " " + s if s else "")
    return p


if __name__ == "__main__":
    p = parse(sys.argv[1:])
    open(p.o, "w").write(gen(p))
```

```python
import sys, argparse, math, struct
from asmlib import Asm
from gen2 import VM, lg, f32hex, descr, CLOG, NAME

HEADER = """; Decode attention of two independent branches (A, B) with fused q / output projections; out = concat(A, B).
"""


def gen(p):
    T, N = p.T, p.N
    R = 2 * T
    assert N <= R
    NS = 4
    NIT = 1024 // (NS * T)
    NWQ = 32
    RPG = 32
    NX = 4
    QD = p.QD
    assert QD % 2 == 0
    NWO = 32
    F = 32
    kvf = p.kvflags
    L_QP = 0
    L_OP = 2048
    L_ML = 4096
    LDS = max(4352, p.minlds)

    a = Asm()
    a(HEADER.rstrip())
    a("; @launch grid=(256,1,1) block=(512,1,1) lds=%d" % LDS)
    a('.amdgcn_target "amdgcn-amd-amdhsa--gfx950"')
    a(".text")
    a(".globl %s_kernel" % NAME)
    a(".p2align 8")
    a(".type %s_kernel,@function" % NAME)
    a("%s_kernel:" % NAME)

    sXp, sKp, sVp, sWqp, sWop = 16, 18, 20, 22, 24
    sOutP, sDbgP, sWsP = 36, 38, 40
    sK, sV, sWq, sWo, sX, sWs = 44, 48, 52, 56, 60, 64
    sDbg, sOut = 44, 48
    sHead, sSplit, sBr, sWave = 68, 69, 70, 71
    sCur, sCnt, sT0, sT1, sC, sNext = 72, 73, 74, 75, 76, 77
    sP, sQoff = 78, 79
    sTS = 80
    sW4 = 15
    sPlo, sPhi = 12, 13
    sTk = 14
    sSpin = 11
    vLane, vOffKV = 1, 2
    nOff = max(1, T // 4)
    v = 2 + nOff
    vQ = (v + 1) // 2 * 2; v = vQ + 4
    vM, vL, vMc, vAl = v, v + 1, v + 2, v + 3; v += 4
    vT0 = v; v += 8
    vAcc = v; v += 8
    vS = v; v += max(T, 8)
    vOpA, vMlA, vYoff, vWoOff, vWqOff, vTk = range(v, v + 6); v += 6
    vK = (v + 3) // 4 * 4
    vV = vK + 4 * T
    vW = vK
    vWq = vK
    vXr = vK + 64
    vQP = vK + 8 * T
    NV = max(vW + 128, vQP + 32)
    assert QD * 4 <= 64 and NV <= 256, NV

    def ts(k):
        if p.diag == 1 and k < 4:
            a.i("s_memrealtime s[%d:%d]", sTS + 2 * k, sTS + 2 * k + 1)
        if p.diag == 5 and k >= 20:
            a.i("s_memtime s[%d:%d]", sTS + 2 * (k - 20), sTS + 2 * (k - 20) + 1)
        if p.diag == 4 and 10 <= k < 20:
            a.i("s_memtime s[%d:%d]", sTS + 2 * (k - 10), sTS + 2 * (k - 10) + 1)

    def srd(base, ptr, offreg, nrec):
        if offreg is None:
            a.i("s_mov_b32 s%d, s%d", base, ptr)
            a.i("s_mov_b32 s%d, s%d", base + 1, ptr + 1)
        else:
            a.i("s_add_u32 s%d, s%d, s%d", base, ptr, offreg)
            a.i("s_addc_u32 s%d, s%d, 0", base + 1, ptr + 1)
        a.i("s_mov_b32 s%d, 0x%x", base + 2, nrec)
        a.i("s_mov_b32 s%d, 0x20000", base + 3)

    def reduce_scatter(base):
        for e in range(4):
            a.i("v_permlane32_swap_b32 v%d, v%d", base + e, base + e + 4)
        for e in range(4):
            a.i("v_add_f32 v%d, v%d, v%d", base + e, base + e, base + e + 4)
        for e in range(2):
            a.i("v_permlane16_swap_b32 v%d, v%d", base + e, base + e + 2)
        for e in range(2):
            a.i("v_add_f32 v%d, v%d, v%d", base + e, base + e, base + e + 2)

    def diag_store(lab):
        if not p.diag:
            return
        ts(3)
        ts(17)
        ts(27)
        a.i("s_mov_b64 exec, 1")
        a.i("s_waitcnt lgkmcnt(0)")
        a.i("v_mov_b32 v%d, 0", vT0)
        for k in range(8):
            a.i("v_mov_b32 v%d, s%d", vK + k, sTS + (2 * k if p.diag >= 4 else k))
        a.i("s_mul_i32 s%d, s2, 8", sT1)
        a.i("s_add_u32 s%d, s%d, s%d", sT1, sT1, sWave)
        a.i("s_lshl_b32 s%d, s%d, 5", sT1, sT1)
        a.i("s_add_u32 s%d, s%d, 0x100000", sT1, sT1)
        a.i("buffer_store_dwordx4 v[%d:%d], v%d, s[%d:%d], s%d offen", vK, vK + 3, vT0, sWs, sWs + 3, sT1)
        a.i("buffer_store_dwordx4 v[%d:%d], v%d, s[%d:%d], s%d offen offset:16", vK + 4, vK + 7, vT0, sWs, sWs + 3, sT1)

    WSREC = 0x100000 if not p.diag else 0x200000
    a.i("s_cmp_ge_u32 s2, 256")
    a.i("s_cbranch_scc1 L_end")
    a.i("s_load_dwordx16 s[16:31], s[0:1], 0")
    a.i("s_load_dwordx8 s[32:39], s[0:1], 64")
    a.i("s_load_dwordx2 s[40:41], s[0:1], 96")
    ts(0)
    ts(20)
    if p.diag == 4:
        for k in range(16):
            a.i("s_mov_b32 s%d, 0", sTS + k)
    a.i("v_and_b32 v%d, 63, v0", vLane)
    a.i("v_lshrrev_b32 v%d, 6, v0", vT0)
    a.i("s_and_b32 s%d, s2, 31", sHead)
    a.i("s_lshr_b32 s%d, s2, 6", sSplit)
    a.i("s_bfe_u32 s%d, s2, 0x10005", sBr)
    a.i("v_readfirstlane_b32 s%d, v%d", sWave, vT0)
    a.i("s_and_b32 s%d, s2, 63", sP)
    a.i("s_lshl_b32 s%d, s%d, 2", sP, sP)
    a.i("s_add_u32 s%d, s%d, s%d", sP, sP, sSplit)
    a.i("s_and_b32 s%d, s%d, 3", sW4, sWave)
    a.i("v_lshrrev_b32 v%d, 4, v%d", vT0, vLane)
    a.i("v_and_b32 v%d, 15, v%d", vT0 + 1, vLane)
    a.i("s_cmp_ge_u32 s%d, 4", sWave)
    a.i("s_cbranch_scc1 L_stream")

    vm = VM(a)
    a.i("s_lshl_b32 s%d, s%d, %d", sT0, sW4, lg(RPG * 4 * 2))
    a.i("v_lshlrev_b32 v%d, %d, v%d", vT0 + 2, lg(RPG * 2), vT0)
    a.i("v_add_u32 v%d, s%d, v%d", vT0 + 2, sT0, vT0 + 2)
    a.i("v_lshlrev_b32 v%d, %d, v%d", vWqOff, lg(RPG * 8192), vT0)
    a.i("v_lshl_add_u32 v%d, v%d, 4, v%d", vWqOff, vT0 + 1, vWqOff)
    a.i("s_lshl_b32 s%d, s%d, %d", sT0, sW4, lg(RPG * 4 * 8192))
    a.i("s_lshl_b32 s%d, s%d, 8", sT1, sHead)
    a.i("s_add_u32 s%d, s%d, s%d", sQoff, sT0, sT1)
    a.i("v_lshlrev_b32 v%d, 3, v%d", vT0 + 3, vT0)
    a.i("v_lshl_add_u32 v%d, v%d, 5, v%d", vYoff, vT0 + 1, vT0 + 3)
    a.i("s_lshl_b32 s%d, s%d, 9", sT0, sW4)
    a.i("s_lshl_b32 s%d, s%d, 11", sT1, sP)
    a.i("s_add_u32 s%d, s%d, s%d", sT0, sT0, sT1)
    a.i("v_add_u32 v%d, s%d, v%d", vYoff, sT0, vYoff)
    a.i("s_waitcnt lgkmcnt(0)")
    ts(21)
    a.i("s_cmp_eq_u32 s%d, 0", sBr)
    a.i("s_cselect_b64 s[16:17], s[16:17], s[26:27]")
    a.i("s_cselect_b64 s[22:23], s[22:23], s[32:33]")
    a.i("s_cselect_b64 s[24:25], s[24:25], s[34:35]")
    srd(sX, sXp, None, 1024)
    srd(sWq, sWqp, None, 512 * 8192)

    def wqload(j):
        s = j % QD
        a.i("buffer_load_dwordx4 v[%d:%d], v%d, s[%d:%d], s%d offen%s", vWq + 4 * s, vWq + 4 * s + 3, vWqOff, sWq, sWq + 3, sQoff, p.wqflags)
        vm.issue("wq%d" % j)
        if j != NWQ - 1:
            a.i("s_add_u32 s%d, s%d, 8192", sQoff, sQoff)
    for j in range(NX):
        a.i("buffer_load_dwordx4 v[%d:%d], v%d, s[%d:%d], 0 offen offset:%d", vXr + 4 * j, vXr + 4 * j + 3, vT0 + 2, sX, sX + 3, 16 * j)
        vm.issue("x%d" % j)
    for j in range(QD):
        wqload(j)
    nq = QD
    srd(sWs, sWsP, None, WSREC)
    a.i("s_lshl_b32 s%d, s%d, 3", sT1, sP)
    a.i("s_add_u32 s%d, s%d, 0x80000", sT1, sT1)
    a.i("v_mov_b32 v%d, s%d", vMlA, sT1)
    a.i("s_lshl_b32 s%d, s%d, 17", sT0, sHead)
    srd(sWo, sWop, sT0, 131072)
    srd(sDbg, sDbgP, None, 256)
    srd(sOut, sOutP, None, 2048)
    a.i("s_mov_b32 s%d, 0x05040100", sPlo)
    a.i("s_mov_b32 s%d, 0x07060302", sPhi)
    a.i("v_lshlrev_b32 v%d, 11, v%d", vWoOff, vT0)
    a.i("v_lshl_add_u32 v%d, v%d, 4, v%d", vWoOff, vT0 + 1, vWoOff)
    a.i("s_lshl_b32 s%d, s%d, 8", sT0, sW4)
    a.i("v_add_u32 v%d, s%d, v%d", vWoOff, sT0, vWoOff)
    vA = vAcc
    for e in range(8):
        a.i("v_mov_b32 v%d, 0", vA + e)
    vm.maybe_wait("x%d" % (NX - 1))
    for m in range(NWQ // 2):
        vm.wait("wq%d" % (2 * m + 1))
        if m == 0:
            ts(22)
        if m == 8:
            ts(23)
        s0 = vWq + 4 * ((2 * m) % QD)
        s1 = vWq + 4 * ((2 * m + 1) % QD)
        for d in range(4):
            a.i("v_perm_b32 v%d, v%d, v%d, s%d", vT0 + 2 * (d % 2), s1 + d, s0 + d, sPlo)
            a.i("v_perm_b32 v%d, v%d, v%d, s%d", vT0 + 2 * (d % 2) + 1, s1 + d, s0 + d, sPhi)
            a.i("v_dot2_f32_bf16 v%d, v%d, v%d, v%d", vA + 2 * d, vT0 + 2 * (d % 2), vXr + m, vA + 2 * d)
            a.i("v_dot2_f32_bf16 v%d, v%d, v%d, v%d", vA + 2 * d + 1, vT0 + 2 * (d % 2) + 1, vXr + m, vA + 2 * d + 1)
        for _ in range(2):
            if nq < NWQ:
                wqload(nq); nq += 1
    ts(24)
    reduce_scatter(vA)
    a.i("v_lshrrev_b32 v%d, 4, v%d", vT0, vLane)
    a.i("v_and_b32 v%d, 15, v%d", vT0 + 1, vLane)
    a.i("v_lshlrev_b32 v%d, 3, v%d", vT0, vT0)
    a.i("v_lshl_add_u32 v%d, v%d, 5, v%d", vT0, vT0 + 1, vT0)
    a.i("s_lshl_b32 s%d, s%d, 9", sT0, sW4)
    a.i("s_add_u32 s%d, s%d, %d", sT0, sT0, L_QP)
    a.i("v_add_u32 v%d, s%d, v%d", vT0, sT0, vT0)
    a.i("ds_write_b64 v%d, v[%d:%d]", vT0, vA, vA + 1)
    a.i("s_waitcnt lgkmcnt(0)")
    ts(25)
    a.i("s_barrier")
    ts(1)
    ts(26)
    a.i("s_lshl_b32 s%d, s%d, 7", sC, sBr)
    a.i("s_cmp_lg_u32 s%d, 0", sWave)
    a.i("s_cbranch_scc1 L_noz")
    for e in range(4):
        a.i("v_mov_b32 v%d, 0", vT0 + e)
    a.i("v_lshlrev_b32 v%d, 5, v%d", vT0 + 4, vLane)
    a.i("s_lshl_b32 s%d, s%d, 11", sT1, sP)
    a.i("buffer_store_dwordx4 v[%d:%d], v%d, s[%d:%d], s%d offen sc1", vT0, vT0 + 3, vT0 + 4, sWs, sWs + 3, sT1)
    a.i("buffer_store_dwordx4 v[%d:%d], v%d, s[%d:%d], s%d offen offset:16 sc1", vT0, vT0 + 3, vT0 + 4, sWs, sWs + 3, sT1)
    a.i("v_mov_b32 v%d, 0", vT0 + 6)
    a.i("v_mov_b32 v%d, 1", vT0 + 7)
    a.i("s_mov_b64 exec, 1")
    a.i("buffer_store_dwordx2 v[%d:%d], v%d, s[%d:%d], 0 offen sc1", vT0, vT0 + 1, vMlA, sWs, sWs + 3)
    a.i("s_waitcnt vmcnt(0)")
    a.i("buffer_atomic_add v%d, v%d, s[%d:%d], s%d offen sc1", vT0 + 7, vT0 + 6, sDbg, sDbg + 3, sC)
    a.i("s_mov_b64 exec, -1")
    a.label("L_noz")
    a.i("s_mov_b32 s%d, 0", sCur)
    for m in range(NWO // 2):
        b = vW + 8 * m
        a.i("buffer_load_dwordx4 v[%d:%d], v%d, s[%d:%d], s%d offen%s", b, b + 3, vWoOff, sWo, sWo + 3, sCur, p.woflags)
        a.i("buffer_load_dwordx4 v[%d:%d], v%d, s[%d:%d], s%d offen offset:1024%s", b + 4, b + 7, vWoOff, sWo, sWo + 3, sCur, p.woflags)
        a.i("s_add_u32 s%d, s%d, 8192", sCur, sCur)
        a.i("s_waitcnt vmcnt(0)")
        for d in range(4):
            a.i("v_perm_b32 v%d, v%d, v%d, s%d", vT0, b + 4 + d, b + d, sPlo)
            a.i("v_perm_b32 v%d, v%d, v%d, s%d", b + 4 + d, b + 4 + d, b + d, sPhi)
            a.i("v_mov_b32 v%d, v%d", b + d, vT0)
    a.i("v_lshlrev_b32 v%d, 3, v%d", vOpA, vLane)
    a.i("v_add_u32 v%d, %d, v%d", vOpA, L_OP, vOpA)
    a.i("v_mov_b32 v%d, %d", vT0 + 7, L_ML)
    a.i("v_mov_b32 v%d, 0", vT0 + 6)
    a.i("v_mov_b32 v%d, 0x10000", vTk)
    for e in range(8):
        a.i("v_mov_b32 v%d, 0", vAcc + e)
    ts(2)
    a.i("s_barrier")
    ts(10)
    a.i("s_cmp_lg_u32 s%d, 0", sWave)
    a.i("s_cbranch_scc1 L_notk")
    a.i("s_mov_b64 exec, 1")
    a.i("buffer_atomic_add v%d, v%d, s[%d:%d], s%d offen sc0 sc1", vTk, vT0 + 6, sDbg, sDbg + 3, sC)
    a.i("s_mov_b64 exec, -1")
    a.label("L_notk")
    for w in range(4):
        a.i("ds_read_b64 v[%d:%d], v%d offset:%d", vS + 2 * w, vS + 2 * w + 1, vOpA, 512 * w)
    a.i("ds_read_b128 v[%d:%d], v%d", vT0, vT0 + 3, vT0 + 7)
    a.i("ds_read_b128 v[%d:%d], v%d offset:16", vQ, vQ + 3, vT0 + 7)
    a.i("s_waitcnt lgkmcnt(0)")
    mc = [vT0, vT0 + 2, vQ, vQ + 2]
    a.i("v_max3_f32 v%d, v%d, v%d, v%d", vM, mc[0], mc[1], mc[2])
    a.i("v_max_f32 v%d, v%d, v%d", vM, vM, mc[3])
    for w in range(4):
        a.i("v_sub_f32 v%d, v%d, v%d", mc[w], mc[w], vM)
    for w in range(4):
        a.i("v_exp_f32 v%d, v%d", mc[w], mc[w])
    a.i("v_mul_f32 v%d, v%d, v%d", vL, mc[0], mc[0] + 1)
    for w in range(1, 4):
        a.i("v_fmac_f32 v%d, v%d, v%d", vL, mc[w], mc[w] + 1)
    a.i("v_pk_mul_f32 v[%d:%d], v[%d:%d], v[%d:%d] op_sel_hi:[1,0]", vS, vS + 1, vS, vS + 1, mc[0], mc[0] + 1)
    for w in range(1, 4):
        a.i("v_pk_fma_f32 v[%d:%d], v[%d:%d], v[%d:%d], v[%d:%d] op_sel_hi:[1,0,1]", vS, vS + 1, vS + 2 * w, vS + 2 * w + 1, mc[w], mc[w] + 1, vS, vS + 1)
    a.i("v_cvt_pk_bf16_f32 v%d, v%d, v%d", vS, vS, vS + 1)
    ts(11)
    for m in range(16):
        t = vT0 + (m % 2)
        a.i("v_mov_b32_dpp v%d, v%d row_newbcast:%d row_mask:0xf bank_mask:0xf", t, vS, m)
        for d in range(4):
            a.i("v_dot2_f32_bf16 v%d, v%d, v%d, v%d", vAcc + 2 * d, vW + 8 * m + d, t, vAcc + 2 * d)
            a.i("v_dot2_f32_bf16 v%d, v%d, v%d, v%d", vAcc + 2 * d + 1, vW + 8 * m + 4 + d, t, vAcc + 2 * d + 1)
    ts(12)
    reduce_scatter(vAcc)
    a.i("v_or_b32 v%d, 1, v%d", vAcc, vAcc)
    a.i("v_or_b32 v%d, 1, v%d", vAcc + 1, vAcc + 1)
    a.i("buffer_store_dwordx2 v[%d:%d], v%d, s[%d:%d], 0 offen sc1", vAcc, vAcc + 1, vYoff, sWs, sWs + 3)
    a.i("s_cmp_lg_u32 s%d, 0", sWave)
    a.i("s_cbranch_scc1 L_done")
    a.i("v_or_b32 v%d, 1, v%d", vT0 + 2, vM)
    a.i("v_or_b32 v%d, 1, v%d", vT0 + 3, vL)
    a.i("s_mov_b64 exec, 1")
    a.i("buffer_store_dwordx2 v[%d:%d], v%d, s[%d:%d], 0 offen sc1", vT0 + 2, vT0 + 3, vMlA, sWs, sWs + 3)
    a.i("s_mov_b64 exec, -1")
    ts(13)
    a.i("v_lshrrev_b32 v%d, 2, v%d", vT0, vLane)
    a.i("v_and_b32 v%d, 3, v%d", vT0 + 1, vLane)
    a.i("v_lshlrev_b32 v%d, 11, v%d", vYoff, vT0)
    a.i("v_lshl_add_u32 v%d, v%d, 4, v%d", vYoff, vT0 + 1, vYoff)
    a.i("v_lshlrev_b32 v%d, 3, v%d", vMlA, vT0)
    a.i("s_waitcnt vmcnt(2)")
    a.i("v_readfirstlane_b32 s%d, v%d", sTk, vTk)
    a.i("s_lshr_b32 s%d, s%d, 16", sT0, sTk)
    a.i("s_cmp_lt_u32 s%d, %d", sT0, 128 - F)
    a.i("s_cbranch_scc1 L_done")
    a.i("s_sub_u32 s%d, s%d, %d", sNext, sT0, 128 - F)
    a.i("s_and_b32 s%d, s%d, 0xffff", sT0, sTk)
    a.i("s_cmp_eq_u32 s%d, 128", sT0)
    a.i("s_cbranch_scc1 L_zok")
    a.i("s_mov_b32 s%d, 0x10000", sSpin)
    a.label("L_zspin")
    a.i("s_sub_u32 s%d, s%d, 1", sSpin, sSpin)
    a.i("s_cmp_eq_u32 s%d, 0", sSpin)
    a.i("s_cbranch_scc1 L_zok")
    a.i("s_mov_b64 exec, 1")
    a.i("buffer_load_dword v%d, v%d, s[%d:%d], s%d offen sc1", vTk, vT0 + 6, sDbg, sDbg + 3, sC)
    a.i("s_waitcnt vmcnt(0)")
    a.i("v_readfirstlane_b32 s%d, v%d", sTk, vTk)
    a.i("s_mov_b64 exec, -1")
    a.i("s_and_b32 s%d, s%d, 0xffff", sT0, sTk)
    a.i("s_cmp_eq_u32 s%d, 128", sT0)
    a.i("s_cbranch_scc0 L_zspin")
    a.label("L_zok")
    ts(14)
    vY = vW
    vMl = vW + 32
    a.i("s_lshl_b32 s%d, s%d, 18", sT0, sBr)
    a.i("s_lshl_b32 s%d, s%d, 6", sT1, sNext)
    a.i("s_add_u32 s%d, s%d, s%d", sQoff, sT0, sT1)
    a.i("s_lshl_b32 s%d, s%d, 10", sT0, sBr)
    a.i("s_add_u32 s%d, s%d, 0x80000", sCnt, sT0)
    a.i("s_mov_b32 s%d, 0x10000", sSpin)
    a.label("L_poll")
    a.i("s_mov_b32 s%d, s%d", sCur, sQoff)
    for j in range(8):
        a.i("buffer_load_dwordx2 v[%d:%d], v%d, s[%d:%d], s%d offen offset:%d sc1", vMl + 2 * j, vMl + 2 * j + 1, vMlA, sWs, sWs + 3, sCnt, 128 * j)
    for j in range(8):
        a.i("buffer_load_dwordx4 v[%d:%d], v%d, s[%d:%d], s%d offen sc1", vY + 4 * j, vY + 4 * j + 3, vYoff, sWs, sWs + 3, sCur)
        if j != 7:
            a.i("s_add_u32 s%d, s%d, 32768", sCur, sCur)
    a.i("s_waitcnt vmcnt(8)")
    a.i("v_min3_u32 v%d, v%d, v%d, v%d", vT0, vMl, vMl + 1, vMl + 2)
    for k in range(3, 15, 2):
        a.i("v_min3_u32 v%d, v%d, v%d, v%d", vT0, vT0, vMl + k, vMl + k + 1)
    a.i("v_min_u32 v%d, v%d, v%d", vT0, vT0, vMl + 15)
    for j in range(8):
        a.i("v_max_f32_dpp v%d, v%d, v%d row_ror:4 row_mask:0xf bank_mask:0xf", vS + j, vMl + 2 * j, vMl + 2 * j)
    for j in range(8):
        a.i("v_max_f32_dpp v%d, v%d, v%d row_ror:8 row_mask:0xf bank_mask:0xf", vS + j, vS + j, vS + j)
    for j in range(8):
        a.i("v_sub_f32 v%d, v%d, v%d", vS + j, vMl + 2 * j, vS + j)
    for j in range(8):
        a.i("v_exp_f32 v%d, v%d", vS + j, vS + j)
    for j in range(8):
        a.i("v_mul_f32 v%d, v%d, v%d", vMl + 2 * j + 1, vMl + 2 * j + 1, vS + j)
    for j in range(8):
        a.i("v_add_f32_dpp v%d, v%d, v%d row_ror:4 row_mask:0xf bank_mask:0xf", vMl + 2 * j + 1, vMl + 2 * j + 1, vMl + 2 * j + 1)
    for j in range(8):
        a.i("v_add_f32_dpp v%d, v%d, v%d row_ror:8 row_mask:0xf bank_mask:0xf", vMl + 2 * j + 1, vMl + 2 * j + 1, vMl + 2 * j + 1)
    for j in range(8):
        a.i("v_rcp_f32 v%d, v%d", vMl + 2 * j + 1, vMl + 2 * j + 1)
    for j in range(8):
        a.i("v_mul_f32 v%d, v%d, v%d", vS + j, vS + j, vMl + 2 * j + 1)
    a.i("s_waitcnt vmcnt(0)")
    for k in range(0, 32, 2):
        a.i("v_min3_u32 v%d, v%d, v%d, v%d", vT0, vT0, vY + k, vY + k + 1)
    a.i("v_cmp_eq_u32 vcc, 0, v%d", vT0)
    a.i("s_sub_u32 s%d, s%d, 1", sSpin, sSpin)
    a.i("s_cbranch_scc1 L_pollok")
    a.i("s_cbranch_vccnz L_poll")
    a.label("L_pollok")
    ts(15)
    for e in range(4):
        a.i("v_mul_f32 v%d, v%d, v%d", vAcc + e, vS, vY + e)
    for j in range(1, 8):
        for e in range(4):
            a.i("v_fmac_f32 v%d, v%d, v%d", vAcc + e, vS + j, vY + 4 * j + e)
    for r in (4, 8):
        for e in range(4):
            a.i("v_add_f32_dpp v%d, v%d, v%d row_ror:%d row_mask:0xf bank_mask:0xf", vAcc + e, vAcc + e, vAcc + e, r)
    for e in range(2):
        a.i("v_permlane32_swap_b32 v%d, v%d", vAcc + e, vAcc + 2 + e)
    for e in range(2):
        a.i("v_add_f32 v%d, v%d, v%d", vAcc + e, vAcc + e, vAcc + 2 + e)
    a.i("v_permlane16_swap_b32 v%d, v%d", vAcc, vAcc + 1)
    a.i("v_add_f32 v%d, v%d, v%d", vAcc, vAcc, vAcc + 1)
    a.i("v_lshrrev_b32 v%d, 4, v%d", vT0, vLane)
    a.i("v_and_b32 v%d, 3, v%d", vT0 + 1, vLane)
    a.i("v_lshl_add_u32 v%d, v%d, 2, v%d", vT0, vT0 + 1, vT0)
    a.i("v_lshlrev_b32 v%d, 1, v%d", vT0, vT0)
    a.i("v_cvt_pk_bf16_f32 v%d, v%d, v%d", vAcc, vAcc, vAcc)
    a.i("s_lshl_b32 s%d, s%d, 10", sT0, sBr)
    a.i("s_lshl_b32 s%d, s%d, 5", sT1, sNext)
    a.i("s_add_u32 s%d, s%d, s%d", sT0, sT0, sT1)
    a.i("s_mov_b32 exec_lo, 0x000f000f")
    a.i("s_mov_b32 exec_hi, 0x000f000f")
    a.i("buffer_store_short v%d, v%d, s[%d:%d], s%d offen", vAcc, vT0, sOut, sOut + 3, sT0)
    ts(16)
    a.label("L_done")
    diag_store("h")
    a.i("s_endpgm")

    a.label("L_stream")
    a.i("s_lshl_b32 s%d, s%d, %d", sT0, sW4, lg(T * 1024))
    stride = NS * T * 1024
    a.i("v_lshlrev_b32 v%d, 4, v%d", vOffKV, vLane)
    a.i("v_add_u32 v%d, s%d, v%d", vOffKV, sT0, vOffKV)
    for j in range(1, nOff):
        a.i("v_add_u32 v%d, %d, v%d", vOffKV + j, 4096 * j, vOffKV)
    a.i("s_lshl_b32 s%d, s%d, 22", sT0, sHead)
    a.i("s_lshl_b32 s%d, s%d, 20", sT1, sSplit)
    a.i("s_add_u32 s%d, s%d, s%d", sCur, sT0, sT1)
    a.i("s_waitcnt lgkmcnt(0)")
    a.i("s_cmp_eq_u32 s%d, 0", sBr)
    a.i("s_cselect_b64 s[18:19], s[18:19], s[28:29]")
    a.i("s_cselect_b64 s[20:21], s[20:21], s[30:31]")
    srd(sK, sKp, sCur, 1 << 20)
    srd(sV, sVp, sCur, 1 << 20)

    def kvload(j, soff):
        which, i = ("K", j) if j < T else ("V", j - T)
        ring, srdb = (vK, sK) if which == "K" else (vV, sV)
        a.i("buffer_load_dwordx4 v[%d:%d], v%d, s[%d:%d], %s offen offset:%d%s", ring + 4 * i, ring + 4 * i + 3,
            vOffKV + i // 4, srdb, srdb + 3, soff, (i % 4) * 1024, kvf)
    MASK = (1 << 20) - 1
    if p.stagger:
        a.i("s_mul_i32 s%d, s2, %d", sCur, p.stagger * stride)
        a.i("s_and_b32 s%d, s%d, 0x%x", sCur, sCur, MASK)
    else:
        a.i("s_mov_b32 s%d, 0", sCur)
    for j in range(R):
        kvload(j, "s%d" % sCur)
    a.i("s_add_u32 s%d, s%d, %d", sNext, sCur, stride)
    a.i("s_and_b32 s%d, s%d, 0x%x", sNext, sNext, MASK)
    if p.diag:
        srd(sWs, sWsP, None, WSREC)
    a.i("s_mov_b32 s%d, %s", sC, f32hex(CLOG))
    a.i("s_lshl_b32 s%d, s%d, 9", sT0, sW4)
    a.i("s_add_u32 s%d, s%d, %d", sT0, sT0, L_OP)
    a.i("v_lshlrev_b32 v%d, 3, v%d", vOpA, vLane)
    a.i("v_add_u32 v%d, s%d, v%d", vOpA, sT0, vOpA)
    a.i("s_lshl_b32 s%d, s%d, 3", sT0, sW4)
    a.i("s_add_u32 s%d, s%d, %d", sT0, sT0, L_ML)
    a.i("v_mov_b32 v%d, s%d", vMlA, sT0)
    a.i("v_lshlrev_b32 v%d, 5, v%d", vT0 + 1, vT0 + 1)
    a.i("v_add_u32 v%d, %d, v%d", vT0 + 1, L_QP, vT0 + 1)
    a.i("s_barrier")
    for w in range(4):
        a.i("ds_read_b128 v[%d:%d], v%d offset:%d", vQP + 8 * w, vQP + 8 * w + 3, vT0 + 1, w * 512)
        a.i("ds_read_b128 v[%d:%d], v%d offset:%d", vQP + 8 * w + 4, vQP + 8 * w + 7, vT0 + 1, w * 512 + 16)
    for e in range(8):
        a.i("v_mov_b32 v%d, 0", vAcc + e)
    a.i("v_mov_b32 v%d, 0xff800000", vMc)
    a.i("v_mov_b32 v%d, 0xff800000", vM)
    a.i("v_mov_b32 v%d, 0", vL)
    a.i("s_mov_b32 s%d, %d", sCnt, NIT - 2)
    a.i("s_waitcnt lgkmcnt(0)")
    for d in range(4):
        a.i("v_pk_add_f32 v[%d:%d], v[%d:%d], v[%d:%d]", vQP + 2 * d, vQP + 2 * d + 1, vQP + 2 * d, vQP + 2 * d + 1, vQP + 8 + 2 * d, vQP + 9 + 2 * d)
        a.i("v_pk_add_f32 v[%d:%d], v[%d:%d], v[%d:%d]", vQP + 16 + 2 * d, vQP + 17 + 2 * d, vQP + 16 + 2 * d, vQP + 17 + 2 * d, vQP + 24 + 2 * d, vQP + 25 + 2 * d)
    for d in range(4):
        a.i("v_pk_add_f32 v[%d:%d], v[%d:%d], v[%d:%d]", vQP + 2 * d, vQP + 2 * d + 1, vQP + 2 * d, vQP + 2 * d + 1, vQP + 16 + 2 * d, vQP + 17 + 2 * d)
    for d in range(4):
        a.i("v_cvt_pk_bf16_f32 v%d, v%d, v%d", vQ + d, vQP + 2 * d, vQP + 2 * d + 1)
    ts(1)

    def body(kind):
        def wait(j):
            if kind == "first":
                n = (R - 1 - j) + max(0, j - (R - N))
            elif kind == "mid":
                n = N - 1
            else:
                n = min(R - 1, j + N - 1) - j
            a.i("s_waitcnt vmcnt(%d)", n)

        def issue(j):
            k = j + N
            if k < R:
                if kind != "first":
                    kvload(k, "s%d" % sCur)
            elif kind != "last":
                kvload(k - R, "s%d" % sNext)
        for i in range(T):
            wait(i)
            k = vK + 4 * i
            a.i("v_dot2_f32_bf16 v%d, v%d, v%d, 0", vS + i, k, vQ)
            for d in range(1, 4):
                a.i("v_dot2_f32_bf16 v%d, v%d, v%d, v%d", vS + i, k + d, vQ + d, vS + i)
            issue(i)
        for r in (8, 4, 2, 1):
            for i in range(T):
                a.i("v_add_f32_dpp v%d, v%d, v%d row_ror:%d row_mask:0xf bank_mask:0xf", vS + i, vS + i, vS + i, r)
        a.i("v_max3_f32 v%d, v%d, v%d, v%d", vM, vM, vS, vS + 1)
        for i in range(2, T, 2):
            a.i("v_max3_f32 v%d, v%d, v%d, v%d", vM, vM, vS + i, vS + i + 1)
        a.i("v_mul_f32 v%d, s%d, v%d", vT0, sC, vM)
        a.i("v_sub_f32 v%d, v%d, v%d", vAl, vMc, vT0)
        a.i("v_mov_b32 v%d, v%d", vMc, vT0)
        a.i("v_exp_f32 v%d, v%d", vAl, vAl)
        for i in range(T):
            a.i("v_fma_f32 v%d, v%d, s%d, -v%d", vS + i, vS + i, sC, vMc)
        for i in range(T):
            a.i("v_exp_f32 v%d, v%d", vS + i, vS + i)
        a.i("v_mul_f32 v%d, v%d, v%d", vL, vL, vAl)
        for d in range(4):
            a.i("v_pk_mul_f32 v[%d:%d], v[%d:%d], v[%d:%d] op_sel:[0,%d] op_sel_hi:[1,%d]", vAcc + 2 * d, vAcc + 2 * d + 1,
                vAcc + 2 * d, vAcc + 2 * d + 1, vAl & ~1, (vAl & ~1) + 1, vAl & 1, vAl & 1)
        for i in range(T):
            a.i("v_add_f32 v%d, v%d, v%d", vL, vL, vS + i)
        for i in range(T):
            wait(T + i)
            vv = vV + 4 * i
            sp = (vS + i) & ~1
            hi = (vS + i) & 1
            for d in range(4):
                t = vT0 + 2 * d
                a.i("v_lshlrev_b32 v%d, 16, v%d", t, vv + d)
                a.i("v_and_b32 v%d, 0xffff0000, v%d", t + 1, vv + d)
            for d in range(4):
                t = vT0 + 2 * d
                a.i("v_pk_fma_f32 v[%d:%d], v[%d:%d], v[%d:%d], v[%d:%d] op_sel:[0,%d,0] op_sel_hi:[1,%d,1]", vAcc + 2 * d, vAcc + 2 * d + 1,
                    t, t + 1, sp, sp + 1, vAcc + 2 * d, vAcc + 2 * d + 1, hi, hi)
            issue(T + i)

    body("first")
    a.i("s_mov_b32 s%d, s%d", sCur, sNext)
    a.i("s_add_u32 s%d, s%d, %d", sNext, sNext, stride)
    a.i("s_and_b32 s%d, s%d, 0x%x", sNext, sNext, MASK)
    a(".p2align 6")
    a.label("L_loop")
    body("mid")
    a.i("s_mov_b32 s%d, s%d", sCur, sNext)
    a.i("s_add_u32 s%d, s%d, %d", sNext, sNext, stride)
    a.i("s_and_b32 s%d, s%d, 0x%x", sNext, sNext, MASK)
    a.i("s_sub_u32 s%d, s%d, 1", sCnt, sCnt)
    a.i("s_cmp_lg_u32 s%d, 0", sCnt)
    a.i("s_cbranch_scc1 L_loop")
    body("last")
    ts(2)
    ts(10)
    a.i("v_mov_b32 v%d, v%d", vT0, vMc)
    a.i("v_mov_b32 v%d, v%d", vT0 + 1, vMc)
    a.i("v_permlane32_swap_b32 v%d, v%d", vT0, vT0 + 1)
    a.i("v_max_f32 v%d, v%d, v%d", vT0, vT0, vT0 + 1)
    a.i("v_mov_b32 v%d, v%d", vT0 + 1, vT0)
    a.i("v_permlane16_swap_b32 v%d, v%d", vT0, vT0 + 1)
    a.i("v_max_f32 v%d, v%d, v%d", vT0 + 2, vT0, vT0 + 1)
    a.i("v_sub_f32 v%d, v%d, v%d", vAl, vMc, vT0 + 2)
    a.i("v_exp_f32 v%d, v%d", vAl, vAl)
    a.i("v_mul_f32 v%d, v%d, v%d", vL, vL, vAl)
    for d in range(4):
        a.i("v_pk_mul_f32 v[%d:%d], v[%d:%d], v[%d:%d] op_sel:[0,%d] op_sel_hi:[1,%d]", vAcc + 2 * d, vAcc + 2 * d + 1,
            vAcc + 2 * d, vAcc + 2 * d + 1, vAl & ~1, (vAl & ~1) + 1, vAl & 1, vAl & 1)
    a.i("v_mov_b32 v%d, v%d", vT0 + 1, vL)
    a.i("v_permlane32_swap_b32 v%d, v%d", vL, vT0 + 1)
    a.i("v_add_f32 v%d, v%d, v%d", vL, vL, vT0 + 1)
    a.i("v_mov_b32 v%d, v%d", vT0 + 1, vL)
    reduce_scatter(vAcc)
    a.i("v_permlane16_swap_b32 v%d, v%d", vL, vT0 + 1)
    a.i("v_add_f32 v%d, v%d, v%d", vT0 + 3, vL, vT0 + 1)
    a.i("ds_write_b64 v%d, v[%d:%d]", vOpA, vAcc, vAcc + 1)
    a.i("s_mov_b64 exec, 1")
    a.i("ds_write_b64 v%d, v[%d:%d]", vMlA, vT0 + 2, vT0 + 3)
    a.i("s_waitcnt lgkmcnt(0)")
    ts(11)
    a.i("s_barrier")
    diag_store("s")
    a.label("L_end")
    a.i("s_endpgm")

    descr(a, NAME + "_kernel", NV, 96)
    return a.text()


def parse(argv):
    ap = argparse.ArgumentParser()
    ap.add_argument("-T", type=int, default=4)
    ap.add_argument("-N", type=int, default=6)
    ap.add_argument("--QD", type=int, default=12)
    ap.add_argument("--stagger", type=int, default=0)
    ap.add_argument("--minlds", type=int, default=0)
    ap.add_argument("--kvflags", default="nt")
    ap.add_argument("--wqflags", default="")
    ap.add_argument("--woflags", default="")
    ap.add_argument("--diag", type=int, default=0)
    ap.add_argument("-o", default="/dev/stdout")
    p = ap.parse_args(argv)
    for k in ("kvflags", "wqflags", "woflags"):
        s = getattr(p, k).strip().replace("+", " ")
        if s == "none":
            s = ""
        setattr(p, k, " " + s if s else "")
    return p


if __name__ == "__main__":
    p = parse(sys.argv[1:])
    open(p.o, "w").write(gen(p))
```

```python
import sys, argparse, math, struct
from asmlib import Asm
from gen2 import VM, lg, f32hex, descr, CLOG, NAME

HEADER = """; Decode attention of two independent branches (A, B) with fused q / output projections; out = concat(A, B).
"""


def gen(p):
    T, N = p.T, p.N
    R = 2 * T
    assert N <= R
    NS = 4
    NIT = 1024 // (NS * T)
    NWQ = 32
    RPG = 32
    NX = 4
    QD = p.QD
    assert QD % 2 == 0
    NWO = 32
    F = 32
    kvf = p.kvflags
    L_QP = 0
    L_OP = 2048
    L_ML = 4096
    LDS = max(4352, p.minlds)

    a = Asm()
    a(HEADER.rstrip())
    a("; @launch grid=(256,1,1) block=(512,1,1) lds=%d" % LDS)
    a('.amdgcn_target "amdgcn-amd-amdhsa--gfx950"')
    a(".text")
    a(".globl %s_kernel" % NAME)
    a(".p2align 8")
    a(".type %s_kernel,@function" % NAME)
    a("%s_kernel:" % NAME)

    sXp, sKp, sVp, sWqp, sWop = 16, 18, 20, 22, 24
    sOutP, sDbgP, sWsP = 36, 38, 40
    sK, sV, sWq, sWo, sX, sWs = 44, 48, 52, 56, 60, 64
    sDbg, sOut = 44, 48
    sHead, sSplit, sBr, sWave = 68, 69, 70, 71
    sCur, sCnt, sT0, sT1, sC, sNext = 72, 73, 74, 75, 76, 77
    sP, sQoff = 78, 79
    sTS = 80
    sW4 = 15
    sPlo, sPhi = 12, 13
    sTk = 14
    sSpin = 11
    vLane, vOffKV = 1, 2
    nOff = max(1, T // 4)
    v = 2 + nOff
    vQ = (v + 1) // 2 * 2; v = vQ + 4
    vM, vL, vMc, vAl = v, v + 1, v + 2, v + 3; v += 4
    vT0 = v; v += 8
    vAcc = v; v += 8
    vS = v; v += max(T, 8)
    vOpA, vMlA, vYoff, vWoOff, vWqOff, vTk = range(v, v + 6); v += 6
    vK = (v + 3) // 4 * 4
    vV = vK + 4 * T
    vW = vK
    vWq = vK
    vXr = vK + 64
    vQP = vK + 8 * T
    NV = max(vW + 128, vQP + 32)
    assert QD * 4 <= 64 and NV <= 256, NV

    def ts(k):
        if p.diag == 1 and k < 4:
            a.i("s_memrealtime s[%d:%d]", sTS + 2 * k, sTS + 2 * k + 1)
        if p.diag == 5 and k >= 20:
            a.i("s_memtime s[%d:%d]", sTS + 2 * (k - 20), sTS + 2 * (k - 20) + 1)
        if p.diag == 4 and 10 <= k < 20:
            a.i("s_memtime s[%d:%d]", sTS + 2 * (k - 10), sTS + 2 * (k - 10) + 1)

    def srd(base, ptr, offreg, nrec):
        if offreg is None:
            a.i("s_mov_b32 s%d, s%d", base, ptr)
            a.i("s_mov_b32 s%d, s%d", base + 1, ptr + 1)
        else:
            a.i("s_add_u32 s%d, s%d, s%d", base, ptr, offreg)
            a.i("s_addc_u32 s%d, s%d, 0", base + 1, ptr + 1)
        a.i("s_mov_b32 s%d, 0x%x", base + 2, nrec)
        a.i("s_mov_b32 s%d, 0x20000", base + 3)

    def reduce_scatter(base):
        for e in range(4):
            a.i("v_permlane32_swap_b32 v%d, v%d", base + e, base + e + 4)
        for e in range(4):
            a.i("v_add_f32 v%d, v%d, v%d", base + e, base + e, base + e + 4)
        for e in range(2):
            a.i("v_permlane16_swap_b32 v%d, v%d", base + e, base + e + 2)
        for e in range(2):
            a.i("v_add_f32 v%d, v%d, v%d", base + e, base + e, base + e + 2)

    def diag_store(lab):
        if not p.diag:
            return
        ts(3)
        ts(17)
        ts(27)
        a.i("s_mov_b64 exec, 1")
        a.i("s_waitcnt lgkmcnt(0)")
        a.i("v_mov_b32 v%d, 0", vT0)
        for k in range(8):
            a.i("v_mov_b32 v%d, s%d", vK + k, sTS + (2 * k if p.diag >= 4 else k))
        a.i("s_mul_i32 s%d, s2, 8", sT1)
        a.i("s_add_u32 s%d, s%d, s%d", sT1, sT1, sWave)
        a.i("s_lshl_b32 s%d, s%d, 5", sT1, sT1)
        a.i("s_add_u32 s%d, s%d, 0x100000", sT1, sT1)
        a.i("buffer_store_dwordx4 v[%d:%d], v%d, s[%d:%d], s%d offen", vK, vK + 3, vT0, sWs, sWs + 3, sT1)
        a.i("buffer_store_dwordx4 v[%d:%d], v%d, s[%d:%d], s%d offen offset:16", vK + 4, vK + 7, vT0, sWs, sWs + 3, sT1)

    WSREC = 0x100000 if not p.diag else 0x200000
    a.i("s_cmp_ge_u32 s2, 256")
    a.i("s_cbranch_scc1 L_end")
    a.i("s_load_dwordx16 s[16:31], s[0:1], 0")
    a.i("s_load_dwordx8 s[32:39], s[0:1], 64")
    a.i("s_load_dwordx2 s[40:41], s[0:1], 96")
    ts(0)
    ts(20)
    if p.diag == 4:
        for k in range(16):
            a.i("s_mov_b32 s%d, 0", sTS + k)
    a.i("v_and_b32 v%d, 63, v0", vLane)
    a.i("v_lshrrev_b32 v%d, 6, v0", vT0)
    a.i("s_and_b32 s%d, s2, 31", sHead)
    a.i("s_lshr_b32 s%d, s2, 6", sSplit)
    a.i("s_bfe_u32 s%d, s2, 0x10005", sBr)
    a.i("v_readfirstlane_b32 s%d, v%d", sWave, vT0)
    a.i("s_and_b32 s%d, s2, 63", sP)
    a.i("s_lshl_b32 s%d, s%d, 2", sP, sP)
    a.i("s_add_u32 s%d, s%d, s%d", sP, sP, sSplit)
    a.i("s_and_b32 s%d, s%d, 3", sW4, sWave)
    a.i("v_lshrrev_b32 v%d, 4, v%d", vT0, vLane)
    a.i("v_and_b32 v%d, 15, v%d", vT0 + 1, vLane)
    a.i("s_cmp_ge_u32 s%d, 4", sWave)
    a.i("s_cbranch_scc1 L_stream")

    vm = VM(a)
    a.i("s_lshl_b32 s%d, s%d, %d", sT0, sW4, lg(RPG * 4 * 2))
    a.i("v_lshlrev_b32 v%d, %d, v%d", vT0 + 2, lg(RPG * 2), vT0)
    a.i("v_add_u32 v%d, s%d, v%d", vT0 + 2, sT0, vT0 + 2)
    a.i("v_lshlrev_b32 v%d, %d, v%d", vWqOff, lg(RPG * 8192), vT0)
    a.i("v_lshl_add_u32 v%d, v%d, 4, v%d", vWqOff, vT0 + 1, vWqOff)
    a.i("s_lshl_b32 s%d, s%d, %d", sT0, sW4, lg(RPG * 4 * 8192))
    a.i("s_lshl_b32 s%d, s%d, 8", sT1, sHead)
    a.i("s_add_u32 s%d, s%d, s%d", sQoff, sT0, sT1)
    a.i("v_lshlrev_b32 v%d, 3, v%d", vT0 + 3, vT0)
    a.i("v_lshl_add_u32 v%d, v%d, 5, v%d", vYoff, vT0 + 1, vT0 + 3)
    a.i("s_lshl_b32 s%d, s%d, 9", sT0, sW4)
    a.i("s_lshl_b32 s%d, s%d, 11", sT1, sP)
    a.i("s_add_u32 s%d, s%d, s%d", sT0, sT0, sT1)
    a.i("v_add_u32 v%d, s%d, v%d", vYoff, sT0, vYoff)
    a.i("s_waitcnt lgkmcnt(0)")
    ts(21)
    a.i("s_cmp_eq_u32 s%d, 0", sBr)
    a.i("s_cselect_b64 s[16:17], s[16:17], s[26:27]")
    a.i("s_cselect_b64 s[22:23], s[22:23], s[32:33]")
    a.i("s_cselect_b64 s[24:25], s[24:25], s[34:35]")
    srd(sX, sXp, None, 1024)
    srd(sWq, sWqp, None, 512 * 8192)

    def wqload(j):
        s = j % QD
        a.i("buffer_load_dwordx4 v[%d:%d], v%d, s[%d:%d], s%d offen%s", vWq + 4 * s, vWq + 4 * s + 3, vWqOff, sWq, sWq + 3, sQoff, p.wqflags)
        vm.issue("wq%d" % j)
        if j != NWQ - 1:
            a.i("s_add_u32 s%d, s%d, 8192", sQoff, sQoff)
    for j in range(NX):
        a.i("buffer_load_dwordx4 v[%d:%d], v%d, s[%d:%d], 0 offen offset:%d", vXr + 4 * j, vXr + 4 * j + 3, vT0 + 2, sX, sX + 3, 16 * j)
        vm.issue("x%d" % j)
    for j in range(QD):
        wqload(j)
    nq = QD
    srd(sWs, sWsP, None, WSREC)
    a.i("s_lshl_b32 s%d, s%d, 3", sT1, sP)
    a.i("s_add_u32 s%d, s%d, 0x80000", sT1, sT1)
    a.i("v_mov_b32 v%d, s%d", vMlA, sT1)
    a.i("s_lshl_b32 s%d, s%d, 17", sT0, sHead)
    srd(sWo, sWop, sT0, 131072)
    srd(sDbg, sDbgP, None, 256)
    srd(sOut, sOutP, None, 2048)
    a.i("s_mov_b32 s%d, 0x05040100", sPlo)
    a.i("s_mov_b32 s%d, 0x07060302", sPhi)
    a.i("v_lshlrev_b32 v%d, 11, v%d", vWoOff, vT0)
    a.i("v_lshl_add_u32 v%d, v%d, 4, v%d", vWoOff, vT0 + 1, vWoOff)
    a.i("s_lshl_b32 s%d, s%d, 8", sT0, sW4)
    a.i("v_add_u32 v%d, s%d, v%d", vWoOff, sT0, vWoOff)
    vA = vAcc
    for e in range(8):
        a.i("v_mov_b32 v%d, 0", vA + e)
    vm.maybe_wait("x%d" % (NX - 1))
    for m in range(NWQ // 2):
        vm.wait("wq%d" % (2 * m + 1))
        if m == 0:
            ts(22)
        if m == 8:
            ts(23)
        s0 = vWq + 4 * ((2 * m) % QD)
        s1 = vWq + 4 * ((2 * m + 1) % QD)
        for d in range(4):
            a.i("v_perm_b32 v%d, v%d, v%d, s%d", vT0 + 2 * (d % 2), s1 + d, s0 + d, sPlo)
            a.i("v_perm_b32 v%d, v%d, v%d, s%d", vT0 + 2 * (d % 2) + 1, s1 + d, s0 + d, sPhi)
            a.i("v_dot2_f32_bf16 v%d, v%d, v%d, v%d", vA + 2 * d, vT0 + 2 * (d % 2), vXr + m, vA + 2 * d)
            a.i("v_dot2_f32_bf16 v%d, v%d, v%d, v%d", vA + 2 * d + 1, vT0 + 2 * (d % 2) + 1, vXr + m, vA + 2 * d + 1)
        for _ in range(2):
            if nq < NWQ:
                wqload(nq); nq += 1
    ts(24)
    reduce_scatter(vA)
    a.i("v_lshrrev_b32 v%d, 4, v%d", vT0, vLane)
    a.i("v_and_b32 v%d, 15, v%d", vT0 + 1, vLane)
    a.i("v_lshlrev_b32 v%d, 3, v%d", vT0, vT0)
    a.i("v_lshl_add_u32 v%d, v%d, 5, v%d", vT0, vT0 + 1, vT0)
    a.i("s_lshl_b32 s%d, s%d, 9", sT0, sW4)
    a.i("s_add_u32 s%d, s%d, %d", sT0, sT0, L_QP)
    a.i("v_add_u32 v%d, s%d, v%d", vT0, sT0, vT0)
    a.i("ds_write_b64 v%d, v[%d:%d]", vT0, vA, vA + 1)
    a.i("s_waitcnt lgkmcnt(0)")
    ts(25)
    a.i("s_barrier")
    ts(1)
    ts(26)
    a.i("s_lshl_b32 s%d, s%d, 7", sC, sBr)
    a.i("s_cmp_lg_u32 s%d, 0", sWave)
    a.i("s_cbranch_scc1 L_noz")
    for e in range(4):
        a.i("v_mov_b32 v%d, 0", vT0 + e)
    a.i("v_lshlrev_b32 v%d, 5, v%d", vT0 + 4, vLane)
    a.i("s_lshl_b32 s%d, s%d, 11", sT1, sP)
    a.i("buffer_store_dwordx4 v[%d:%d], v%d, s[%d:%d], s%d offen sc1", vT0, vT0 + 3, vT0 + 4, sWs, sWs + 3, sT1)
    a.i("buffer_store_dwordx4 v[%d:%d], v%d, s[%d:%d], s%d offen offset:16 sc1", vT0, vT0 + 3, vT0 + 4, sWs, sWs + 3, sT1)
    a.i("v_mov_b32 v%d, 0", vT0 + 6)
    a.i("v_mov_b32 v%d, 1", vT0 + 7)
    a.i("s_mov_b64 exec, 1")
    a.i("buffer_store_dwordx2 v[%d:%d], v%d, s[%d:%d], 0 offen sc1", vT0, vT0 + 1, vMlA, sWs, sWs + 3)
    a.i("s_waitcnt vmcnt(0)")
    a.i("buffer_atomic_add v%d, v%d, s[%d:%d], s%d offen sc1", vT0 + 7, vT0 + 6, sDbg, sDbg + 3, sC)
    a.i("s_mov_b64 exec, -1")
    a.label("L_noz")
    a.i("s_mov_b32 s%d, 0", sCur)
    NP = NWO // 2

    def wo_issue(m):
        b = vW + 8 * m
        a.i("buffer_load_dwordx4 v[%d:%d], v%d, s[%d:%d], s%d offen%s", b, b + 3, vWoOff, sWo, sWo + 3, sCur, p.woflags)
        a.i("buffer_load_dwordx4 v[%d:%d], v%d, s[%d:%d], s%d offen offset:1024%s", b + 4, b + 7, vWoOff, sWo, sWo + 3, sCur, p.woflags)
        a.i("s_add_u32 s%d, s%d, 8192", sCur, sCur)
    for m in range(min(p.PW, NP)):
        wo_issue(m)
    for m in range(NP):
        b = vW + 8 * m
        inflight = min(NP, m + p.PW) - (m + 1)
        a.i("s_waitcnt vmcnt(%d)", 2 * inflight)
        for d in range(4):
            a.i("v_perm_b32 v%d, v%d, v%d, s%d", vT0, b + 4 + d, b + d, sPlo)
            a.i("v_perm_b32 v%d, v%d, v%d, s%d", b + 4 + d, b + 4 + d, b + d, sPhi)
            a.i("v_mov_b32 v%d, v%d", b + d, vT0)
        if m + p.PW < NP:
            wo_issue(m + p.PW)
    a.i("v_lshlrev_b32 v%d, 3, v%d", vOpA, vLane)
    a.i("v_add_u32 v%d, %d, v%d", vOpA, L_OP, vOpA)
    a.i("v_mov_b32 v%d, %d", vT0 + 7, L_ML)
    a.i("v_mov_b32 v%d, 0", vT0 + 6)
    a.i("v_mov_b32 v%d, 0x10000", vTk)
    for e in range(8):
        a.i("v_mov_b32 v%d, 0", vAcc + e)
    ts(2)
    a.i("s_barrier")
    ts(10)
    a.i("s_cmp_lg_u32 s%d, 0", sWave)
    a.i("s_cbranch_scc1 L_notk")
    a.i("s_mov_b64 exec, 1")
    a.i("buffer_atomic_add v%d, v%d, s[%d:%d], s%d offen sc0 sc1", vTk, vT0 + 6, sDbg, sDbg + 3, sC)
    a.i("s_mov_b64 exec, -1")
    a.label("L_notk")
    for w in range(4):
        a.i("ds_read_b64 v[%d:%d], v%d offset:%d", vS + 2 * w, vS + 2 * w + 1, vOpA, 512 * w)
    a.i("ds_read_b128 v[%d:%d], v%d", vT0, vT0 + 3, vT0 + 7)
    a.i("ds_read_b128 v[%d:%d], v%d offset:16", vQ, vQ + 3, vT0 + 7)
    a.i("s_waitcnt lgkmcnt(0)")
    mc = [vT0, vT0 + 2, vQ, vQ + 2]
    a.i("v_max3_f32 v%d, v%d, v%d, v%d", vM, mc[0], mc[1], mc[2])
    a.i("v_max_f32 v%d, v%d, v%d", vM, vM, mc[3])
    for w in range(4):
        a.i("v_sub_f32 v%d, v%d, v%d", mc[w], mc[w], vM)
    for w in range(4):
        a.i("v_exp_f32 v%d, v%d", mc[w], mc[w])
    a.i("v_mul_f32 v%d, v%d, v%d", vL, mc[0], mc[0] + 1)
    for w in range(1, 4):
        a.i("v_fmac_f32 v%d, v%d, v%d", vL, mc[w], mc[w] + 1)
    a.i("v_pk_mul_f32 v[%d:%d], v[%d:%d], v[%d:%d] op_sel_hi:[1,0]", vS, vS + 1, vS, vS + 1, mc[0], mc[0] + 1)
    for w in range(1, 4):
        a.i("v_pk_fma_f32 v[%d:%d], v[%d:%d], v[%d:%d], v[%d:%d] op_sel_hi:[1,0,1]", vS, vS + 1, vS + 2 * w, vS + 2 * w + 1, mc[w], mc[w] + 1, vS, vS + 1)
    a.i("v_cvt_pk_bf16_f32 v%d, v%d, v%d", vS, vS, vS + 1)
    ts(11)
    for m in range(16):
        t = vT0 + (m % 2)
        a.i("v_mov_b32_dpp v%d, v%d row_newbcast:%d row_mask:0xf bank_mask:0xf", t, vS, m)
        for d in range(4):
            a.i("v_dot2_f32_bf16 v%d, v%d, v%d, v%d", vAcc + 2 * d, vW + 8 * m + d, t, vAcc + 2 * d)
            a.i("v_dot2_f32_bf16 v%d, v%d, v%d, v%d", vAcc + 2 * d + 1, vW + 8 * m + 4 + d, t, vAcc + 2 * d + 1)
    ts(12)
    reduce_scatter(vAcc)
    a.i("v_or_b32 v%d, 1, v%d", vAcc, vAcc)
    a.i("v_or_b32 v%d, 1, v%d", vAcc + 1, vAcc + 1)
    a.i("buffer_store_dwordx2 v[%d:%d], v%d, s[%d:%d], 0 offen sc1", vAcc, vAcc + 1, vYoff, sWs, sWs + 3)
    a.i("s_cmp_lg_u32 s%d, 0", sWave)
    a.i("s_cbranch_scc1 L_done")
    a.i("v_or_b32 v%d, 1, v%d", vT0 + 2, vM)
    a.i("v_or_b32 v%d, 1, v%d", vT0 + 3, vL)
    a.i("s_mov_b64 exec, 1")
    a.i("buffer_store_dwordx2 v[%d:%d], v%d, s[%d:%d], 0 offen sc1", vT0 + 2, vT0 + 3, vMlA, sWs, sWs + 3)
    a.i("s_mov_b64 exec, -1")
    ts(13)
    a.i("v_lshrrev_b32 v%d, 2, v%d", vT0, vLane)
    a.i("v_and_b32 v%d, 3, v%d", vT0 + 1, vLane)
    a.i("v_lshlrev_b32 v%d, 11, v%d", vYoff, vT0)
    a.i("v_lshl_add_u32 v%d, v%d, 4, v%d", vYoff, vT0 + 1, vYoff)
    a.i("v_lshlrev_b32 v%d, 3, v%d", vMlA, vT0)
    a.i("s_waitcnt vmcnt(2)")
    a.i("v_readfirstlane_b32 s%d, v%d", sTk, vTk)
    a.i("s_lshr_b32 s%d, s%d, 16", sT0, sTk)
    a.i("s_cmp_lt_u32 s%d, %d", sT0, 128 - F)
    a.i("s_cbranch_scc1 L_done")
    a.i("s_sub_u32 s%d, s%d, %d", sNext, sT0, 128 - F)
    a.i("s_and_b32 s%d, s%d, 0xffff", sT0, sTk)
    a.i("s_cmp_eq_u32 s%d, 128", sT0)
    a.i("s_cbranch_scc1 L_zok")
    a.i("s_mov_b32 s%d, 0x10000", sSpin)
    a.label("L_zspin")
    a.i("s_sub_u32 s%d, s%d, 1", sSpin, sSpin)
    a.i("s_cmp_eq_u32 s%d, 0", sSpin)
    a.i("s_cbranch_scc1 L_zok")
    a.i("s_mov_b64 exec, 1")
    a.i("buffer_load_dword v%d, v%d, s[%d:%d], s%d offen sc1", vTk, vT0 + 6, sDbg, sDbg + 3, sC)
    a.i("s_waitcnt vmcnt(0)")
    a.i("v_readfirstlane_b32 s%d, v%d", sTk, vTk)
    a.i("s_mov_b64 exec, -1")
    a.i("s_and_b32 s%d, s%d, 0xffff", sT0, sTk)
    a.i("s_cmp_eq_u32 s%d, 128", sT0)
    a.i("s_cbranch_scc0 L_zspin")
    a.label("L_zok")
    ts(14)
    vY = vW
    vMl = vW + 32
    a.i("s_lshl_b32 s%d, s%d, 18", sT0, sBr)
    a.i("s_lshl_b32 s%d, s%d, 6", sT1, sNext)
    a.i("s_add_u32 s%d, s%d, s%d", sQoff, sT0, sT1)
    a.i("s_lshl_b32 s%d, s%d, 10", sT0, sBr)
    a.i("s_add_u32 s%d, s%d, 0x80000", sCnt, sT0)
    a.i("s_mov_b32 s%d, 0x10000", sSpin)
    a.label("L_poll")
    a.i("s_mov_b32 s%d, s%d", sCur, sQoff)
    for j in range(8):
        a.i("buffer_load_dwordx2 v[%d:%d], v%d, s[%d:%d], s%d offen offset:%d sc1", vMl + 2 * j, vMl + 2 * j + 1, vMlA, sWs, sWs + 3, sCnt, 128 * j)
    for j in range(8):
        a.i("buffer_load_dwordx4 v[%d:%d], v%d, s[%d:%d], s%d offen sc1", vY + 4 * j, vY + 4 * j + 3, vYoff, sWs, sWs + 3, sCur)
        if j != 7:
            a.i("s_add_u32 s%d, s%d, 32768", sCur, sCur)
    a.i("s_waitcnt vmcnt(8)")
    a.i("v_min3_u32 v%d, v%d, v%d, v%d", vT0, vMl, vMl + 1, vMl + 2)
    for k in range(3, 15, 2):
        a.i("v_min3_u32 v%d, v%d, v%d, v%d", vT0, vT0, vMl + k, vMl + k + 1)
    a.i("v_min_u32 v%d, v%d, v%d", vT0, vT0, vMl + 15)
    for j in range(8):
        a.i("v_max_f32_dpp v%d, v%d, v%d row_ror:4 row_mask:0xf bank_mask:0xf", vS + j, vMl + 2 * j, vMl + 2 * j)
    for j in range(8):
        a.i("v_max_f32_dpp v%d, v%d, v%d row_ror:8 row_mask:0xf bank_mask:0xf", vS + j, vS + j, vS + j)
    for j in range(8):
        a.i("v_sub_f32 v%d, v%d, v%d", vS + j, vMl + 2 * j, vS + j)
    for j in range(8):
        a.i("v_exp_f32 v%d, v%d", vS + j, vS + j)
    for j in range(8):
        a.i("v_mul_f32 v%d, v%d, v%d", vMl + 2 * j + 1, vMl + 2 * j + 1, vS + j)
    for j in range(8):
        a.i("v_add_f32_dpp v%d, v%d, v%d row_ror:4 row_mask:0xf bank_mask:0xf", vMl + 2 * j + 1, vMl + 2 * j + 1, vMl + 2 * j + 1)
    for j in range(8):
        a.i("v_add_f32_dpp v%d, v%d, v%d row_ror:8 row_mask:0xf bank_mask:0xf", vMl + 2 * j + 1, vMl + 2 * j + 1, vMl + 2 * j + 1)
    for j in range(8):
        a.i("v_rcp_f32 v%d, v%d", vMl + 2 * j + 1, vMl + 2 * j + 1)
    for j in range(8):
        a.i("v_mul_f32 v%d, v%d, v%d", vS + j, vS + j, vMl + 2 * j + 1)
    a.i("s_waitcnt vmcnt(0)")
    for k in range(0, 32, 2):
        a.i("v_min3_u32 v%d, v%d, v%d, v%d", vT0, vT0, vY + k, vY + k + 1)
    a.i("v_cmp_eq_u32 vcc, 0, v%d", vT0)
    a.i("s_sub_u32 s%d, s%d, 1", sSpin, sSpin)
    a.i("s_cbranch_scc1 L_pollok")
    a.i("s_cbranch_vccnz L_poll")
    a.label("L_pollok")
    ts(15)
    for e in range(4):
        a.i("v_mul_f32 v%d, v%d, v%d", vAcc + e, vS, vY + e)
    for j in range(1, 8):
        for e in range(4):
            a.i("v_fmac_f32 v%d, v%d, v%d", vAcc + e, vS + j, vY + 4 * j + e)
    for r in (4, 8):
        for e in range(4):
            a.i("v_add_f32_dpp v%d, v%d, v%d row_ror:%d row_mask:0xf bank_mask:0xf", vAcc + e, vAcc + e, vAcc + e, r)
    for e in range(2):
        a.i("v_permlane32_swap_b32 v%d, v%d", vAcc + e, vAcc + 2 + e)
    for e in range(2):
        a.i("v_add_f32 v%d, v%d, v%d", vAcc + e, vAcc + e, vAcc + 2 + e)
    a.i("v_permlane16_swap_b32 v%d, v%d", vAcc, vAcc + 1)
    a.i("v_add_f32 v%d, v%d, v%d", vAcc, vAcc, vAcc + 1)
    a.i("v_lshrrev_b32 v%d, 4, v%d", vT0, vLane)
    a.i("v_and_b32 v%d, 3, v%d", vT0 + 1, vLane)
    a.i("v_lshl_add_u32 v%d, v%d, 2, v%d", vT0, vT0 + 1, vT0)
    a.i("v_lshlrev_b32 v%d, 1, v%d", vT0, vT0)
    a.i("v_cvt_pk_bf16_f32 v%d, v%d, v%d", vAcc, vAcc, vAcc)
    a.i("s_lshl_b32 s%d, s%d, 10", sT0, sBr)
    a.i("s_lshl_b32 s%d, s%d, 5", sT1, sNext)
    a.i("s_add_u32 s%d, s%d, s%d", sT0, sT0, sT1)
    a.i("s_mov_b32 exec_lo, 0x000f000f")
    a.i("s_mov_b32 exec_hi, 0x000f000f")
    a.i("buffer_store_short v%d, v%d, s[%d:%d], s%d offen", vAcc, vT0, sOut, sOut + 3, sT0)
    ts(16)
    a.label("L_done")
    diag_store("h")
    a.i("s_endpgm")

    a.label("L_stream")
    a.i("s_lshl_b32 s%d, s%d, %d", sT0, sW4, lg(T * 1024))
    stride = NS * T * 1024
    a.i("v_lshlrev_b32 v%d, 4, v%d", vOffKV, vLane)
    a.i("v_add_u32 v%d, s%d, v%d", vOffKV, sT0, vOffKV)
    for j in range(1, nOff):
        a.i("v_add_u32 v%d, %d, v%d", vOffKV + j, 4096 * j, vOffKV)
    a.i("s_lshl_b32 s%d, s%d, 22", sT0, sHead)
    a.i("s_lshl_b32 s%d, s%d, 20", sT1, sSplit)
    a.i("s_add_u32 s%d, s%d, s%d", sCur, sT0, sT1)
    a.i("s_waitcnt lgkmcnt(0)")
    a.i("s_cmp_eq_u32 s%d, 0", sBr)
    a.i("s_cselect_b64 s[18:19], s[18:19], s[28:29]")
    a.i("s_cselect_b64 s[20:21], s[20:21], s[30:31]")
    srd(sK, sKp, sCur, 1 << 20)
    srd(sV, sVp, sCur, 1 << 20)

    def kvload(j, soff):
        which, i = ("K", j) if j < T else ("V", j - T)
        ring, srdb = (vK, sK) if which == "K" else (vV, sV)
        a.i("buffer_load_dwordx4 v[%d:%d], v%d, s[%d:%d], %s offen offset:%d%s", ring + 4 * i, ring + 4 * i + 3,
            vOffKV + i // 4, srdb, srdb + 3, soff, (i % 4) * 1024, kvf)
    MASK = (1 << 20) - 1
    if p.stagger:
        a.i("s_mul_i32 s%d, s2, %d", sCur, p.stagger * stride)
        a.i("s_and_b32 s%d, s%d, 0x%x", sCur, sCur, MASK)
    else:
        a.i("s_mov_b32 s%d, 0", sCur)
    for j in range(R):
        kvload(j, "s%d" % sCur)
    a.i("s_add_u32 s%d, s%d, %d", sNext, sCur, stride)
    a.i("s_and_b32 s%d, s%d, 0x%x", sNext, sNext, MASK)
    if p.diag:
        srd(sWs, sWsP, None, WSREC)
    a.i("s_mov_b32 s%d, %s", sC, f32hex(CLOG))
    a.i("s_lshl_b32 s%d, s%d, 9", sT0, sW4)
    a.i("s_add_u32 s%d, s%d, %d", sT0, sT0, L_OP)
    a.i("v_lshlrev_b32 v%d, 3, v%d", vOpA, vLane)
    a.i("v_add_u32 v%d, s%d, v%d", vOpA, sT0, vOpA)
    a.i("s_lshl_b32 s%d, s%d, 3", sT0, sW4)
    a.i("s_add_u32 s%d, s%d, %d", sT0, sT0, L_ML)
    a.i("v_mov_b32 v%d, s%d", vMlA, sT0)
    a.i("v_lshlrev_b32 v%d, 5, v%d", vT0 + 1, vT0 + 1)
    a.i("v_add_u32 v%d, %d, v%d", vT0 + 1, L_QP, vT0 + 1)
    a.i("s_barrier")
    for w in range(4):
        a.i("ds_read_b128 v[%d:%d], v%d offset:%d", vQP + 8 * w, vQP + 8 * w + 3, vT0 + 1, w * 512)
        a.i("ds_read_b128 v[%d:%d], v%d offset:%d", vQP + 8 * w + 4, vQP + 8 * w + 7, vT0 + 1, w * 512 + 16)
    for e in range(8):
        a.i("v_mov_b32 v%d, 0", vAcc + e)
    a.i("v_mov_b32 v%d, 0xff800000", vMc)
    a.i("v_mov_b32 v%d, 0xff800000", vM)
    a.i("v_mov_b32 v%d, 0", vL)
    a.i("s_mov_b32 s%d, %d", sCnt, NIT - 2)
    a.i("s_waitcnt lgkmcnt(0)")
    for d in range(4):
        a.i("v_pk_add_f32 v[%d:%d], v[%d:%d], v[%d:%d]", vQP + 2 * d, vQP + 2 * d + 1, vQP + 2 * d, vQP + 2 * d + 1, vQP + 8 + 2 * d, vQP + 9 + 2 * d)
        a.i("v_pk_add_f32 v[%d:%d], v[%d:%d], v[%d:%d]", vQP + 16 + 2 * d, vQP + 17 + 2 * d, vQP + 16 + 2 * d, vQP + 17 + 2 * d, vQP + 24 + 2 * d, vQP + 25 + 2 * d)
    for d in range(4):
        a.i("v_pk_add_f32 v[%d:%d], v[%d:%d], v[%d:%d]", vQP + 2 * d, vQP + 2 * d + 1, vQP + 2 * d, vQP + 2 * d + 1, vQP + 16 + 2 * d, vQP + 17 + 2 * d)
    for d in range(4):
        a.i("v_cvt_pk_bf16_f32 v%d, v%d, v%d", vQ + d, vQP + 2 * d, vQP + 2 * d + 1)
    ts(1)

    def body(kind):
        def wait(j):
            if kind == "first":
                n = (R - 1 - j) + max(0, j - (R - N))
            elif kind == "mid":
                n = N - 1
            else:
                n = min(R - 1, j + N - 1) - j
            a.i("s_waitcnt vmcnt(%d)", n)

        def issue(j):
            k = j + N
            if k < R:
                if kind != "first":
                    kvload(k, "s%d" % sCur)
            elif kind != "last":
                kvload(k - R, "s%d" % sNext)
        for i in range(T):
            wait(i)
            k = vK + 4 * i
            a.i("v_dot2_f32_bf16 v%d, v%d, v%d, 0", vS + i, k, vQ)
            for d in range(1, 4):
                a.i("v_dot2_f32_bf16 v%d, v%d, v%d, v%d", vS + i, k + d, vQ + d, vS + i)
            issue(i)
        for r in (8, 4, 2, 1):
            for i in range(T):
                a.i("v_add_f32_dpp v%d, v%d, v%d row_ror:%d row_mask:0xf bank_mask:0xf", vS + i, vS + i, vS + i, r)
        a.i("v_max3_f32 v%d, v%d, v%d, v%d", vM, vM, vS, vS + 1)
        for i in range(2, T, 2):
            a.i("v_max3_f32 v%d, v%d, v%d, v%d", vM, vM, vS + i, vS + i + 1)
        a.i("v_mul_f32 v%d, s%d, v%d", vT0, sC, vM)
        a.i("v_sub_f32 v%d, v%d, v%d", vAl, vMc, vT0)
        a.i("v_mov_b32 v%d, v%d", vMc, vT0)
        a.i("v_exp_f32 v%d, v%d", vAl, vAl)
        for i in range(T):
            a.i("v_fma_f32 v%d, v%d, s%d, -v%d", vS + i, vS + i, sC, vMc)
        for i in range(T):
            a.i("v_exp_f32 v%d, v%d", vS + i, vS + i)
        a.i("v_mul_f32 v%d, v%d, v%d", vL, vL, vAl)
        for d in range(4):
            a.i("v_pk_mul_f32 v[%d:%d], v[%d:%d], v[%d:%d] op_sel:[0,%d] op_sel_hi:[1,%d]", vAcc + 2 * d, vAcc + 2 * d + 1,
                vAcc + 2 * d, vAcc + 2 * d + 1, vAl & ~1, (vAl & ~1) + 1, vAl & 1, vAl & 1)
        for i in range(T):
            a.i("v_add_f32 v%d, v%d, v%d", vL, vL, vS + i)
        for i in range(T):
            wait(T + i)
            vv = vV + 4 * i
            sp = (vS + i) & ~1
            hi = (vS + i) & 1
            for d in range(4):
                t = vT0 + 2 * d
                a.i("v_lshlrev_b32 v%d, 16, v%d", t, vv + d)
                a.i("v_and_b32 v%d, 0xffff0000, v%d", t + 1, vv + d)
            for d in range(4):
                t = vT0 + 2 * d
                a.i("v_pk_fma_f32 v[%d:%d], v[%d:%d], v[%d:%d], v[%d:%d] op_sel:[0,%d,0] op_sel_hi:[1,%d,1]", vAcc + 2 * d, vAcc + 2 * d + 1,
                    t, t + 1, sp, sp + 1, vAcc + 2 * d, vAcc + 2 * d + 1, hi, hi)
            issue(T + i)

    body("first")
    a.i("s_mov_b32 s%d, s%d", sCur, sNext)
    a.i("s_add_u32 s%d, s%d, %d", sNext, sNext, stride)
    a.i("s_and_b32 s%d, s%d, 0x%x", sNext, sNext, MASK)
    a(".p2align 6")
    a.label("L_loop")
    body("mid")
    a.i("s_mov_b32 s%d, s%d", sCur, sNext)
    a.i("s_add_u32 s%d, s%d, %d", sNext, sNext, stride)
    a.i("s_and_b32 s%d, s%d, 0x%x", sNext, sNext, MASK)
    a.i("s_sub_u32 s%d, s%d, 1", sCnt, sCnt)
    a.i("s_cmp_lg_u32 s%d, 0", sCnt)
    a.i("s_cbranch_scc1 L_loop")
    body("last")
    ts(2)
    ts(10)
    a.i("v_mov_b32 v%d, v%d", vT0, vMc)
    a.i("v_mov_b32 v%d, v%d", vT0 + 1, vMc)
    a.i("v_permlane32_swap_b32 v%d, v%d", vT0, vT0 + 1)
    a.i("v_max_f32 v%d, v%d, v%d", vT0, vT0, vT0 + 1)
    a.i("v_mov_b32 v%d, v%d", vT0 + 1, vT0)
    a.i("v_permlane16_swap_b32 v%d, v%d", vT0, vT0 + 1)
    a.i("v_max_f32 v%d, v%d, v%d", vT0 + 2, vT0, vT0 + 1)
    a.i("v_sub_f32 v%d, v%d, v%d", vAl, vMc, vT0 + 2)
    a.i("v_exp_f32 v%d, v%d", vAl, vAl)
    a.i("v_mul_f32 v%d, v%d, v%d", vL, vL, vAl)
    for d in range(4):
        a.i("v_pk_mul_f32 v[%d:%d], v[%d:%d], v[%d:%d] op_sel:[0,%d] op_sel_hi:[1,%d]", vAcc + 2 * d, vAcc + 2 * d + 1,
            vAcc + 2 * d, vAcc + 2 * d + 1, vAl & ~1, (vAl & ~1) + 1, vAl & 1, vAl & 1)
    a.i("v_mov_b32 v%d, v%d", vT0 + 1, vL)
    a.i("v_permlane32_swap_b32 v%d, v%d", vL, vT0 + 1)
    a.i("v_add_f32 v%d, v%d, v%d", vL, vL, vT0 + 1)
    a.i("v_mov_b32 v%d, v%d", vT0 + 1, vL)
    reduce_scatter(vAcc)
    a.i("v_permlane16_swap_b32 v%d, v%d", vL, vT0 + 1)
    a.i("v_add_f32 v%d, v%d, v%d", vT0 + 3, vL, vT0 + 1)
    a.i("ds_write_b64 v%d, v[%d:%d]", vOpA, vAcc, vAcc + 1)
    a.i("s_mov_b64 exec, 1")
    a.i("ds_write_b64 v%d, v[%d:%d]", vMlA, vT0 + 2, vT0 + 3)
    a.i("s_waitcnt lgkmcnt(0)")
    ts(11)
    a.i("s_barrier")
    diag_store("s")
    a.label("L_end")
    a.i("s_endpgm")

    descr(a, NAME + "_kernel", NV, 96)
    return a.text()


def parse(argv):
    ap = argparse.ArgumentParser()
    ap.add_argument("-T", type=int, default=4)
    ap.add_argument("-N", type=int, default=6)
    ap.add_argument("--QD", type=int, default=12)
    ap.add_argument("--stagger", type=int, default=0)
    ap.add_argument("--PW", type=int, default=1)
    ap.add_argument("--minlds", type=int, default=0)
    ap.add_argument("--kvflags", default="nt")
    ap.add_argument("--wqflags", default="")
    ap.add_argument("--woflags", default="")
    ap.add_argument("--diag", type=int, default=0)
    ap.add_argument("-o", default="/dev/stdout")
    p = ap.parse_args(argv)
    for k in ("kvflags", "wqflags", "woflags"):
        s = getattr(p, k).strip().replace("+", " ")
        if s == "none":
            s = ""
        setattr(p, k, " " + s if s else "")
    return p


if __name__ == "__main__":
    p = parse(sys.argv[1:])
    open(p.o, "w").write(gen(p))
```

```python
import sys, argparse, math, struct
from asmlib import Asm
from gen2 import VM, lg, f32hex, descr, CLOG, NAME

HEADER = """; Decode attention of two independent branches (A, B) with fused q / output projections; out = concat(A, B).
; Workgroup (branch, head, split) streams 4096 keys.  Waves 0-3 (helpers): q projection, wo prefetch, output
"""


def gen(p):
    T, N = p.T, p.N
    R = 2 * T
    assert N <= R
    NS = 4
    NIT = 1024 // (NS * T)
    NWQ = 32
    RPG = 32
    NX = 4
    QD = p.QD
    assert QD % 2 == 0
    NWO = 32
    F = 32
    kvf = p.kvflags
    L_QP = 0
    L_OP = 2048
    L_ML = 4096
    LDS = max(4352, p.minlds)

    a = Asm()
    a(HEADER.rstrip())
    a("; @launch grid=(256,1,1) block=(512,1,1) lds=%d" % LDS)
    a('.amdgcn_target "amdgcn-amd-amdhsa--gfx950"')
    a(".text")
    a(".globl %s_kernel" % NAME)
    a(".p2align 8")
    a(".type %s_kernel,@function" % NAME)
    a("%s_kernel:" % NAME)

    sXp, sKp, sVp, sWqp, sWop = 16, 18, 20, 22, 24
    sOutP, sDbgP, sWsP = 36, 38, 40
    sK, sV, sWq, sWo, sX, sWs = 44, 48, 52, 56, 60, 64
    sDbg, sOut = 44, 48
    sHead, sSplit, sBr, sWave = 68, 69, 70, 71
    sCur, sCnt, sT0, sT1, sC, sNext = 72, 73, 74, 75, 76, 77
    sP, sQoff = 78, 79
    sTS = 80
    sW4 = 15
    sPlo, sPhi = 12, 13
    sTk = 14
    sSpin = 11
    vLane, vOffKV = 1, 2
    nOff = max(1, T // 4)
    v = 2 + nOff
    vQ = (v + 1) // 2 * 2; v = vQ + 4
    vM, vL, vMc, vAl = v, v + 1, v + 2, v + 3; v += 4
    vT0 = v; v += 8
    vAcc = v; v += 8
    vS = v; v += max(T, 8)
    vOpA, vMlA, vYoff, vWoOff, vWqOff, vTk, vDum = range(v, v + 7); v += 7
    vK = (v + 3) // 4 * 4
    vV = vK + 4 * T
    vW = vK
    vWq = vK
    vXr = vK + 64
    vQP = vK + 8 * T
    vB = vQP + 32
    NV = max(vW + 128, vQP + 32, vB + 8 * T if p.pre else 0)
    assert QD * 4 <= 64 and NV <= 256, NV

    def ts(k):
        if p.diag == 1 and k < 4:
            a.i("s_memrealtime s[%d:%d]", sTS + 2 * k, sTS + 2 * k + 1)
        if p.diag == 5 and k >= 20:
            a.i("s_memtime s[%d:%d]", sTS + 2 * (k - 20), sTS + 2 * (k - 20) + 1)
        if p.diag == 4 and 10 <= k < 20:
            a.i("s_memtime s[%d:%d]", sTS + 2 * (k - 10), sTS + 2 * (k - 10) + 1)

    def srd(base, ptr, offreg, nrec):
        if offreg is None:
            a.i("s_mov_b32 s%d, s%d", base, ptr)
            a.i("s_mov_b32 s%d, s%d", base + 1, ptr + 1)
        else:
            a.i("s_add_u32 s%d, s%d, s%d", base, ptr, offreg)
            a.i("s_addc_u32 s%d, s%d, 0", base + 1, ptr + 1)
        a.i("s_mov_b32 s%d, 0x%x", base + 2, nrec)
        a.i("s_mov_b32 s%d, 0x20000", base + 3)

    def reduce_scatter(base):
        for e in range(4):
            a.i("v_permlane32_swap_b32 v%d, v%d", base + e, base + e + 4)
        for e in range(4):
            a.i("v_add_f32 v%d, v%d, v%d", base + e, base + e, base + e + 4)
        for e in range(2):
            a.i("v_permlane16_swap_b32 v%d, v%d", base + e, base + e + 2)
        for e in range(2):
            a.i("v_add_f32 v%d, v%d, v%d", base + e, base + e, base + e + 2)

    def diag_store(lab):
        if not p.diag:
            return
        ts(3)
        ts(17)
        ts(27)
        a.i("s_mov_b64 exec, 1")
        a.i("s_waitcnt lgkmcnt(0)")
        a.i("v_mov_b32 v%d, 0", vT0)
        for k in range(8):
            a.i("v_mov_b32 v%d, s%d", vK + k, sTS + (2 * k if p.diag >= 4 else k))
        a.i("s_mul_i32 s%d, s2, 8", sT1)
        a.i("s_add_u32 s%d, s%d, s%d", sT1, sT1, sWave)
        a.i("s_lshl_b32 s%d, s%d, 5", sT1, sT1)
        a.i("s_add_u32 s%d, s%d, 0x100000", sT1, sT1)
        a.i("buffer_store_dwordx4 v[%d:%d], v%d, s[%d:%d], s%d offen", vK, vK + 3, vT0, sWs, sWs + 3, sT1)
        a.i("buffer_store_dwordx4 v[%d:%d], v%d, s[%d:%d], s%d offen offset:16", vK + 4, vK + 7, vT0, sWs, sWs + 3, sT1)

    WSREC = 0x100000 if not p.diag else 0x200000
    a.i("s_cmp_ge_u32 s2, 256")
    a.i("s_cbranch_scc1 L_end")
    if p.touch:
        a.i("s_getpc_b64 s[8:9]")
        a.label("L_pc")
        a.i("v_and_b32 v%d, 63, v0", vTk)
        a.i("v_lshlrev_b32 v%d, 7, v%d", vTk, vTk)
        a.i("v_lshrrev_b32 v%d, 6, v0", vDum)
        a.i("v_lshl_add_u32 v%d, v%d, 13, v%d", vTk, vDum, vTk)
        a.i("v_cmp_gt_u32 vcc, L_code_end-L_pc, v%d", vTk)
        a.i("s_and_saveexec_b64 s[6:7], vcc")
        a.i("s_cbranch_execz L_notouch")
        a.i("global_load_dword v%d, v%d, s[8:9]", vDum, vTk)
        a.label("L_notouch")
        a.i("s_mov_b64 exec, s[6:7]")
    a.i("s_load_dwordx16 s[16:31], s[0:1], 0")
    a.i("s_load_dwordx8 s[32:39], s[0:1], 64")
    a.i("s_load_dwordx2 s[40:41], s[0:1], 96")
    ts(0)
    ts(20)
    if p.diag == 4:
        for k in range(16):
            a.i("s_mov_b32 s%d, 0", sTS + k)
    a.i("v_and_b32 v%d, 63, v0", vLane)
    a.i("v_lshrrev_b32 v%d, 6, v0", vT0)
    a.i("s_and_b32 s%d, s2, 31", sHead)
    a.i("s_lshr_b32 s%d, s2, 6", sSplit)
    a.i("s_bfe_u32 s%d, s2, 0x10005", sBr)
    a.i("v_readfirstlane_b32 s%d, v%d", sWave, vT0)
    a.i("s_and_b32 s%d, s2, 63", sP)
    a.i("s_lshl_b32 s%d, s%d, 2", sP, sP)
    a.i("s_add_u32 s%d, s%d, s%d", sP, sP, sSplit)
    a.i("s_and_b32 s%d, s%d, 3", sW4, sWave)
    a.i("v_lshrrev_b32 v%d, 4, v%d", vT0, vLane)
    a.i("v_and_b32 v%d, 15, v%d", vT0 + 1, vLane)
    a.i("s_cmp_ge_u32 s%d, 4", sWave)
    a.i("s_cbranch_scc1 L_stream")

    vm = VM(a)
    a.i("s_lshl_b32 s%d, s%d, %d", sT0, sW4, lg(RPG * 4 * 2))
    a.i("v_lshlrev_b32 v%d, %d, v%d", vT0 + 2, lg(RPG * 2), vT0)
    a.i("v_add_u32 v%d, s%d, v%d", vT0 + 2, sT0, vT0 + 2)
    a.i("v_lshlrev_b32 v%d, %d, v%d", vWqOff, lg(RPG * 8192), vT0)
    a.i("v_lshl_add_u32 v%d, v%d, 4, v%d", vWqOff, vT0 + 1, vWqOff)
    a.i("s_lshl_b32 s%d, s%d, %d", sT0, sW4, lg(RPG * 4 * 8192))
    a.i("s_lshl_b32 s%d, s%d, 8", sT1, sHead)
    a.i("s_add_u32 s%d, s%d, s%d", sQoff, sT0, sT1)
    a.i("v_lshlrev_b32 v%d, 3, v%d", vT0 + 3, vT0)
    a.i("v_lshl_add_u32 v%d, v%d, 5, v%d", vYoff, vT0 + 1, vT0 + 3)
    a.i("s_lshl_b32 s%d, s%d, 9", sT0, sW4)
    a.i("s_lshl_b32 s%d, s%d, 11", sT1, sP)
    a.i("s_add_u32 s%d, s%d, s%d", sT0, sT0, sT1)
    a.i("v_add_u32 v%d, s%d, v%d", vYoff, sT0, vYoff)
    a.i("s_waitcnt lgkmcnt(0)")
    ts(21)
    a.i("s_cmp_eq_u32 s%d, 0", sBr)
    a.i("s_cselect_b64 s[16:17], s[16:17], s[26:27]")
    a.i("s_cselect_b64 s[22:23], s[22:23], s[32:33]")
    a.i("s_cselect_b64 s[24:25], s[24:25], s[34:35]")
    srd(sX, sXp, None, 1024)
    srd(sWq, sWqp, None, 512 * 8192)

    def wqload(j):
        if p.nowq:
            vm.issue("wq%d" % j)
            a.i("buffer_load_dwordx4 v[%d:%d], v%d, s[%d:%d], 0 offen", vWq + 4 * (j % QD), vWq + 4 * (j % QD) + 3, vT0 + 2, sX, sX + 3)
            return
        s = j % QD
        a.i("buffer_load_dwordx4 v[%d:%d], v%d, s[%d:%d], s%d offen%s", vWq + 4 * s, vWq + 4 * s + 3, vWqOff, sWq, sWq + 3, sQoff, p.wqflags)
        vm.issue("wq%d" % j)
        if j != NWQ - 1:
            a.i("s_add_u32 s%d, s%d, 8192", sQoff, sQoff)
    for j in range(NX):
        a.i("buffer_load_dwordx4 v[%d:%d], v%d, s[%d:%d], 0 offen offset:%d", vXr + 4 * j, vXr + 4 * j + 3, vT0 + 2, sX, sX + 3, 16 * j)
        vm.issue("x%d" % j)
    for j in range(QD):
        wqload(j)
    nq = QD
    srd(sWs, sWsP, None, WSREC)
    a.i("s_lshl_b32 s%d, s%d, 3", sT1, sP)
    a.i("s_add_u32 s%d, s%d, 0x80000", sT1, sT1)
    a.i("v_mov_b32 v%d, s%d", vMlA, sT1)
    a.i("s_lshl_b32 s%d, s%d, 17", sT0, sHead)
    srd(sWo, sWop, sT0, 131072)
    srd(sDbg, sDbgP, None, 256)
    srd(sOut, sOutP, None, 2048)
    a.i("s_mov_b32 s%d, 0x05040100", sPlo)
    a.i("s_mov_b32 s%d, 0x07060302", sPhi)
    a.i("v_lshlrev_b32 v%d, 11, v%d", vWoOff, vT0)
    a.i("v_lshl_add_u32 v%d, v%d, 4, v%d", vWoOff, vT0 + 1, vWoOff)
    a.i("s_lshl_b32 s%d, s%d, 8", sT0, sW4)
    a.i("v_add_u32 v%d, s%d, v%d", vWoOff, sT0, vWoOff)
    vA = vAcc
    for e in range(8):
        a.i("v_mov_b32 v%d, 0", vA + e)
    vm.maybe_wait("x%d" % (NX - 1))
    for m in range(NWQ // 2):
        vm.wait("wq%d" % (2 * m + 1))
        if m == 0:
            ts(22)
        if m == 8:
            ts(23)
        s0 = vWq + 4 * ((2 * m) % QD)
        s1 = vWq + 4 * ((2 * m + 1) % QD)
        for d in range(4):
            a.i("v_perm_b32 v%d, v%d, v%d, s%d", vT0 + 2 * (d % 2), s1 + d, s0 + d, sPlo)
            a.i("v_perm_b32 v%d, v%d, v%d, s%d", vT0 + 2 * (d % 2) + 1, s1 + d, s0 + d, sPhi)
            a.i("v_dot2_f32_bf16 v%d, v%d, v%d, v%d", vA + 2 * d, vT0 + 2 * (d % 2), vXr + m, vA + 2 * d)
            a.i("v_dot2_f32_bf16 v%d, v%d, v%d, v%d", vA + 2 * d + 1, vT0 + 2 * (d % 2) + 1, vXr + m, vA + 2 * d + 1)
        for _ in range(2):
            if nq < NWQ:
                wqload(nq); nq += 1
    ts(24)
    reduce_scatter(vA)
    a.i("v_lshrrev_b32 v%d, 4, v%d", vT0, vLane)
    a.i("v_and_b32 v%d, 15, v%d", vT0 + 1, vLane)
    a.i("v_lshlrev_b32 v%d, 3, v%d", vT0, vT0)
    a.i("v_lshl_add_u32 v%d, v%d, 5, v%d", vT0, vT0 + 1, vT0)
    a.i("s_lshl_b32 s%d, s%d, 9", sT0, sW4)
    a.i("s_add_u32 s%d, s%d, %d", sT0, sT0, L_QP)
    a.i("v_add_u32 v%d, s%d, v%d", vT0, sT0, vT0)
    a.i("ds_write_b64 v%d, v[%d:%d]", vT0, vA, vA + 1)
    a.i("s_waitcnt lgkmcnt(0)")
    ts(25)
    a.i("s_barrier")
    ts(1)
    ts(26)
    a.i("s_lshl_b32 s%d, s%d, 7", sC, sBr)
    a.i("s_cmp_lg_u32 s%d, 0", sWave)
    a.i("s_cbranch_scc1 L_noz")
    for e in range(4):
        a.i("v_mov_b32 v%d, 0", vT0 + e)
    a.i("v_lshlrev_b32 v%d, 5, v%d", vT0 + 4, vLane)
    a.i("s_lshl_b32 s%d, s%d, 11", sT1, sP)
    a.i("buffer_store_dwordx4 v[%d:%d], v%d, s[%d:%d], s%d offen sc1", vT0, vT0 + 3, vT0 + 4, sWs, sWs + 3, sT1)
    a.i("buffer_store_dwordx4 v[%d:%d], v%d, s[%d:%d], s%d offen offset:16 sc1", vT0, vT0 + 3, vT0 + 4, sWs, sWs + 3, sT1)
    a.i("v_mov_b32 v%d, 0", vT0 + 6)
    a.i("v_mov_b32 v%d, 1", vT0 + 7)
    a.i("s_mov_b64 exec, 1")
    a.i("buffer_store_dwordx2 v[%d:%d], v%d, s[%d:%d], 0 offen sc1", vT0, vT0 + 1, vMlA, sWs, sWs + 3)
    a.i("s_waitcnt vmcnt(0)")
    a.i("buffer_atomic_add v%d, v%d, s[%d:%d], s%d offen sc1", vT0 + 7, vT0 + 6, sDbg, sDbg + 3, sC)
    a.i("s_mov_b64 exec, -1")
    a.label("L_noz")
    a.i("s_mov_b32 s%d, 0", sCur)
    NP = NWO // 2

    def wo_issue(m):
        b = vW + 8 * m
        if p.nowo:
            return
        a.i("buffer_load_dwordx4 v[%d:%d], v%d, s[%d:%d], s%d offen%s", b, b + 3, vWoOff, sWo, sWo + 3, sCur, p.woflags)
        a.i("buffer_load_dwordx4 v[%d:%d], v%d, s[%d:%d], s%d offen offset:1024%s", b + 4, b + 7, vWoOff, sWo, sWo + 3, sCur, p.woflags)
        a.i("s_add_u32 s%d, s%d, 8192", sCur, sCur)
    for m in range(min(p.PW, NP)):
        wo_issue(m)
    for m in range(NP):
        b = vW + 8 * m
        inflight = min(NP, m + p.PW) - (m + 1)
        a.i("s_waitcnt vmcnt(%d)", 2 * inflight)
        for d in range(4):
            a.i("v_perm_b32 v%d, v%d, v%d, s%d", vT0, b + 4 + d, b + d, sPlo)
            a.i("v_perm_b32 v%d, v%d, v%d, s%d", b + 4 + d, b + 4 + d, b + d, sPhi)
            a.i("v_mov_b32 v%d, v%d", b + d, vT0)
        if m + p.PW < NP:
            wo_issue(m + p.PW)
    a.i("v_lshlrev_b32 v%d, 3, v%d", vOpA, vLane)
    a.i("v_add_u32 v%d, %d, v%d", vOpA, L_OP, vOpA)
    a.i("v_mov_b32 v%d, %d", vT0 + 7, L_ML)
    a.i("v_mov_b32 v%d, 0", vT0 + 6)
    a.i("v_mov_b32 v%d, 0x10000", vTk)
    for e in range(8):
        a.i("v_mov_b32 v%d, 0", vAcc + e)
    ts(2)
    a.i("s_barrier")
    ts(10)
    a.i("s_cmp_lg_u32 s%d, 0", sWave)
    a.i("s_cbranch_scc1 L_notk")
    a.i("s_mov_b64 exec, 1")
    a.i("buffer_atomic_add v%d, v%d, s[%d:%d], s%d offen sc0 sc1", vTk, vT0 + 6, sDbg, sDbg + 3, sC)
    a.i("s_mov_b64 exec, -1")
    a.label("L_notk")
    for w in range(4):
        a.i("ds_read_b64 v[%d:%d], v%d offset:%d", vS + 2 * w, vS + 2 * w + 1, vOpA, 512 * w)
    a.i("ds_read_b128 v[%d:%d], v%d", vT0, vT0 + 3, vT0 + 7)
    a.i("ds_read_b128 v[%d:%d], v%d offset:16", vQ, vQ + 3, vT0 + 7)
    a.i("s_waitcnt lgkmcnt(0)")
    mc = [vT0, vT0 + 2, vQ, vQ + 2]
    a.i("v_max3_f32 v%d, v%d, v%d, v%d", vM, mc[0], mc[1], mc[2])
    a.i("v_max_f32 v%d, v%d, v%d", vM, vM, mc[3])
    for w in range(4):
        a.i("v_sub_f32 v%d, v%d, v%d", mc[w], mc[w], vM)
    for w in range(4):
        a.i("v_exp_f32 v%d, v%d", mc[w], mc[w])
    a.i("v_mul_f32 v%d, v%d, v%d", vL, mc[0], mc[0] + 1)
    for w in range(1, 4):
        a.i("v_fmac_f32 v%d, v%d, v%d", vL, mc[w], mc[w] + 1)
    a.i("v_pk_mul_f32 v[%d:%d], v[%d:%d], v[%d:%d] op_sel_hi:[1,0]", vS, vS + 1, vS, vS + 1, mc[0], mc[0] + 1)
    for w in range(1, 4):
        a.i("v_pk_fma_f32 v[%d:%d], v[%d:%d], v[%d:%d], v[%d:%d] op_sel_hi:[1,0,1]", vS, vS + 1, vS + 2 * w, vS + 2 * w + 1, mc[w], mc[w] + 1, vS, vS + 1)
    a.i("v_cvt_pk_bf16_f32 v%d, v%d, v%d", vS, vS, vS + 1)
    ts(11)
    for m in range(16):
        t = vT0 + (m % 2)
        a.i("v_mov_b32_dpp v%d, v%d row_newbcast:%d row_mask:0xf bank_mask:0xf", t, vS, m)
        for d in range(4):
            a.i("v_dot2_f32_bf16 v%d, v%d, v%d, v%d", vAcc + 2 * d, vW + 8 * m + d, t, vAcc + 2 * d)
            a.i("v_dot2_f32_bf16 v%d, v%d, v%d, v%d", vAcc + 2 * d + 1, vW + 8 * m + 4 + d, t, vAcc + 2 * d + 1)
    ts(12)
    reduce_scatter(vAcc)
    a.i("v_or_b32 v%d, 1, v%d", vAcc, vAcc)
    a.i("v_or_b32 v%d, 1, v%d", vAcc + 1, vAcc + 1)
    a.i("buffer_store_dwordx2 v[%d:%d], v%d, s[%d:%d], 0 offen sc1", vAcc, vAcc + 1, vYoff, sWs, sWs + 3)
    a.i("s_cmp_lg_u32 s%d, 0", sWave)
    a.i("s_cbranch_scc1 L_done")
    a.i("v_or_b32 v%d, 1, v%d", vT0 + 2, vM)
    a.i("v_or_b32 v%d, 1, v%d", vT0 + 3, vL)
    a.i("s_mov_b64 exec, 1")
    a.i("buffer_store_dwordx2 v[%d:%d], v%d, s[%d:%d], 0 offen sc1", vT0 + 2, vT0 + 3, vMlA, sWs, sWs + 3)
    a.i("s_mov_b64 exec, -1")
    ts(13)
    a.i("v_lshrrev_b32 v%d, 2, v%d", vT0, vLane)
    a.i("v_and_b32 v%d, 3, v%d", vT0 + 1, vLane)
    a.i("v_lshlrev_b32 v%d, 11, v%d", vYoff, vT0)
    a.i("v_lshl_add_u32 v%d, v%d, 4, v%d", vYoff, vT0 + 1, vYoff)
    a.i("v_lshlrev_b32 v%d, 3, v%d", vMlA, vT0)
    a.i("s_waitcnt vmcnt(2)")
    a.i("v_readfirstlane_b32 s%d, v%d", sTk, vTk)
    a.i("s_lshr_b32 s%d, s%d, 16", sT0, sTk)
    a.i("s_cmp_lt_u32 s%d, %d", sT0, 128 - F)
    a.i("s_cbranch_scc1 L_done")
    a.i("s_sub_u32 s%d, s%d, %d", sNext, sT0, 128 - F)
    a.i("s_and_b32 s%d, s%d, 0xffff", sT0, sTk)
    a.i("s_cmp_eq_u32 s%d, 128", sT0)
    a.i("s_cbranch_scc1 L_zok")
    a.i("s_mov_b32 s%d, 0x10000", sSpin)
    a.label("L_zspin")
    a.i("s_sub_u32 s%d, s%d, 1", sSpin, sSpin)
    a.i("s_cmp_eq_u32 s%d, 0", sSpin)
    a.i("s_cbranch_scc1 L_zok")
    a.i("s_mov_b64 exec, 1")
    a.i("buffer_load_dword v%d, v%d, s[%d:%d], s%d offen sc1", vTk, vT0 + 6, sDbg, sDbg + 3, sC)
    a.i("s_waitcnt vmcnt(0)")
    a.i("v_readfirstlane_b32 s%d, v%d", sTk, vTk)
    a.i("s_mov_b64 exec, -1")
    a.i("s_and_b32 s%d, s%d, 0xffff", sT0, sTk)
    a.i("s_cmp_eq_u32 s%d, 128", sT0)
    a.i("s_cbranch_scc0 L_zspin")
    a.label("L_zok")
    ts(14)
    vY = vW
    vMl = vW + 32
    a.i("s_lshl_b32 s%d, s%d, 18", sT0, sBr)
    a.i("s_lshl_b32 s%d, s%d, 6", sT1, sNext)
    a.i("s_add_u32 s%d, s%d, s%d", sQoff, sT0, sT1)
    a.i("s_lshl_b32 s%d, s%d, 10", sT0, sBr)
    a.i("s_add_u32 s%d, s%d, 0x80000", sCnt, sT0)
    a.i("s_mov_b32 s%d, 0x10000", sSpin)
    a.label("L_poll")
    a.i("s_mov_b32 s%d, s%d", sCur, sQoff)
    for j in range(8):
        a.i("buffer_load_dwordx2 v[%d:%d], v%d, s[%d:%d], s%d offen offset:%d sc1", vMl + 2 * j, vMl + 2 * j + 1, vMlA, sWs, sWs + 3, sCnt, 128 * j)
    for j in range(8):
        a.i("buffer_load_dwordx4 v[%d:%d], v%d, s[%d:%d], s%d offen sc1", vY + 4 * j, vY + 4 * j + 3, vYoff, sWs, sWs + 3, sCur)
        if j != 7:
            a.i("s_add_u32 s%d, s%d, 32768", sCur, sCur)
    a.i("s_waitcnt vmcnt(8)")
    a.i("v_min3_u32 v%d, v%d, v%d, v%d", vT0, vMl, vMl + 1, vMl + 2)
    for k in range(3, 15, 2):
        a.i("v_min3_u32 v%d, v%d, v%d, v%d", vT0, vT0, vMl + k, vMl + k + 1)
    a.i("v_min_u32 v%d, v%d, v%d", vT0, vT0, vMl + 15)
    for j in range(8):
        a.i("v_max_f32_dpp v%d, v%d, v%d row_ror:4 row_mask:0xf bank_mask:0xf", vS + j, vMl + 2 * j, vMl + 2 * j)
    for j in range(8):
        a.i("v_max_f32_dpp v%d, v%d, v%d row_ror:8 row_mask:0xf bank_mask:0xf", vS + j, vS + j, vS + j)
    for j in range(8):
        a.i("v_sub_f32 v%d, v%d, v%d", vS + j, vMl + 2 * j, vS + j)
    for j in range(8):
        a.i("v_exp_f32 v%d, v%d", vS + j, vS + j)
    for j in range(8):
        a.i("v_mul_f32 v%d, v%d, v%d", vMl + 2 * j + 1, vMl + 2 * j + 1, vS + j)
    for j in range(8):
        a.i("v_add_f32_dpp v%d, v%d, v%d row_ror:4 row_mask:0xf bank_mask:0xf", vMl + 2 * j + 1, vMl + 2 * j + 1, vMl + 2 * j + 1)
    for j in range(8):
        a.i("v_add_f32_dpp v%d, v%d, v%d row_ror:8 row_mask:0xf bank_mask:0xf", vMl + 2 * j + 1, vMl + 2 * j + 1, vMl + 2 * j + 1)
    for j in range(8):
        a.i("v_rcp_f32 v%d, v%d", vMl + 2 * j + 1, vMl + 2 * j + 1)
    for j in range(8):
        a.i("v_mul_f32 v%d, v%d, v%d", vS + j, vS + j, vMl + 2 * j + 1)
    a.i("s_waitcnt vmcnt(0)")
    for k in range(0, 32, 2):
        a.i("v_min3_u32 v%d, v%d, v%d, v%d", vT0, vT0, vY + k, vY + k + 1)
    a.i("v_cmp_eq_u32 vcc, 0, v%d", vT0)
    a.i("s_sub_u32 s%d, s%d, 1", sSpin, sSpin)
    a.i("s_cbranch_scc1 L_pollok")
    a.i("s_cbranch_vccnz L_poll")
    a.label("L_pollok")
    ts(15)
    for e in range(4):
        a.i("v_mul_f32 v%d, v%d, v%d", vAcc + e, vS, vY + e)
    for j in range(1, 8):
        for e in range(4):
            a.i("v_fmac_f32 v%d, v%d, v%d", vAcc + e, vS + j, vY + 4 * j + e)
    for r in (4, 8):
        for e in range(4):
            a.i("v_add_f32_dpp v%d, v%d, v%d row_ror:%d row_mask:0xf bank_mask:0xf", vAcc + e, vAcc + e, vAcc + e, r)
    for e in range(2):
        a.i("v_permlane32_swap_b32 v%d, v%d", vAcc + e, vAcc + 2 + e)
    for e in range(2):
        a.i("v_add_f32 v%d, v%d, v%d", vAcc + e, vAcc + e, vAcc + 2 + e)
    a.i("v_permlane16_swap_b32 v%d, v%d", vAcc, vAcc + 1)
    a.i("v_add_f32 v%d, v%d, v%d", vAcc, vAcc, vAcc + 1)
    a.i("v_lshrrev_b32 v%d, 4, v%d", vT0, vLane)
    a.i("v_and_b32 v%d, 3, v%d", vT0 + 1, vLane)
    a.i("v_lshl_add_u32 v%d, v%d, 2, v%d", vT0, vT0 + 1, vT0)
    a.i("v_lshlrev_b32 v%d, 1, v%d", vT0, vT0)
    a.i("v_cvt_pk_bf16_f32 v%d, v%d, v%d", vAcc, vAcc, vAcc)
    a.i("s_lshl_b32 s%d, s%d, 10", sT0, sBr)
    a.i("s_lshl_b32 s%d, s%d, 5", sT1, sNext)
    a.i("s_add_u32 s%d, s%d, s%d", sT0, sT0, sT1)
    a.i("s_mov_b32 exec_lo, 0x000f000f")
    a.i("s_mov_b32 exec_hi, 0x000f000f")
    a.i("buffer_store_short v%d, v%d, s[%d:%d], s%d offen", vAcc, vT0, sOut, sOut + 3, sT0)
    ts(16)
    a.label("L_done")
    diag_store("h")
    a.i("s_endpgm")

    a.label("L_stream")
    a.i("s_lshl_b32 s%d, s%d, %d", sT0, sW4, lg(T * 1024))
    stride = NS * T * 1024
    a.i("v_lshlrev_b32 v%d, 4, v%d", vOffKV, vLane)
    a.i("v_add_u32 v%d, s%d, v%d", vOffKV, sT0, vOffKV)
    for j in range(1, nOff):
        a.i("v_add_u32 v%d, %d, v%d", vOffKV + j, 4096 * j, vOffKV)
    a.i("s_lshl_b32 s%d, s%d, 22", sT0, sHead)
    a.i("s_lshl_b32 s%d, s%d, 20", sT1, sSplit)
    a.i("s_add_u32 s%d, s%d, s%d", sCur, sT0, sT1)
    a.i("s_waitcnt lgkmcnt(0)")
    a.i("s_cmp_eq_u32 s%d, 0", sBr)
    a.i("s_cselect_b64 s[18:19], s[18:19], s[28:29]")
    a.i("s_cselect_b64 s[20:21], s[20:21], s[30:31]")
    srd(sK, sKp, sCur, 1 << 20)
    srd(sV, sVp, sCur, 1 << 20)

    def kvload(j, soff, base=None):
        which, i = ("K", j) if j < T else ("V", j - T)
        srdb = sK if which == "K" else sV
        reg = (vK if base is None else base) + 4 * j
        a.i("buffer_load_dwordx4 v[%d:%d], v%d, s[%d:%d], %s offen offset:%d%s", reg, reg + 3,
            vOffKV + i // 4, srdb, srdb + 3, soff, (i % 4) * 1024, kvf)
    MASK = (1 << 20) - 1
    if p.stagger:
        a.i("s_mul_i32 s%d, s2, %d", sCur, p.stagger * stride)
        a.i("s_and_b32 s%d, s%d, 0x%x", sCur, sCur, MASK)
    else:
        a.i("s_mov_b32 s%d, 0", sCur)
    a.i("s_add_u32 s%d, s%d, %d", sNext, sCur, stride)
    a.i("s_and_b32 s%d, s%d, 0x%x", sNext, sNext, MASK)
    if p.pre:
        seq = [(j, sCur, vB) for j in range(R)] + [(j, sNext, None) for j in range(N)]
        for k, (j, so, base) in enumerate(seq):
            if k >= p.pre:
                a.i("s_waitcnt vmcnt(%d)", p.pre - 1)
            kvload(j, "s%d" % so, base)
    else:
        for j in range(R):
            kvload(j, "s%d" % sCur)
        if p.pf:
            assert T == 4
            a.i("s_lshl_b32 s%d, s%d, 12", sT0, sW4)
            a.i("v_lshlrev_b32 v%d, 6, v%d", vTk, vLane)
            a.i("v_add_u32 v%d, s%d, v%d", vTk, sT0, vTk)
            a.i("s_mov_b32 s%d, s%d", sT1, sNext)
            for k in range(p.pf):
                a.i("buffer_load_dword v%d, v%d, s[%d:%d], s%d offen%s", vDum, vTk, sK, sK + 3, sT1, p.pfflags)
                a.i("buffer_load_dword v%d, v%d, s[%d:%d], s%d offen%s", vDum, vTk, sV, sV + 3, sT1, p.pfflags)
                if k + 1 < p.pf:
                    a.i("s_add_u32 s%d, s%d, %d", sT1, sT1, stride)
                    a.i("s_and_b32 s%d, s%d, 0x%x", sT1, sT1, MASK)
    if p.diag:
        srd(sWs, sWsP, None, WSREC)
    a.i("s_mov_b32 s%d, %s", sC, f32hex(CLOG))
    a.i("s_lshl_b32 s%d, s%d, 9", sT0, sW4)
    a.i("s_add_u32 s%d, s%d, %d", sT0, sT0, L_OP)
    a.i("v_lshlrev_b32 v%d, 3, v%d", vOpA, vLane)
    a.i("v_add_u32 v%d, s%d, v%d", vOpA, sT0, vOpA)
    a.i("s_lshl_b32 s%d, s%d, 3", sT0, sW4)
    a.i("s_add_u32 s%d, s%d, %d", sT0, sT0, L_ML)
    a.i("v_mov_b32 v%d, s%d", vMlA, sT0)
    a.i("v_lshlrev_b32 v%d, 5, v%d", vT0 + 1, vT0 + 1)
    a.i("v_add_u32 v%d, %d, v%d", vT0 + 1, L_QP, vT0 + 1)
    a.i("s_barrier")
    for w in range(4):
        a.i("ds_read_b128 v[%d:%d], v%d offset:%d", vQP + 8 * w, vQP + 8 * w + 3, vT0 + 1, w * 512)
        a.i("ds_read_b128 v[%d:%d], v%d offset:%d", vQP + 8 * w + 4, vQP + 8 * w + 7, vT0 + 1, w * 512 + 16)
    for e in range(8):
        a.i("v_mov_b32 v%d, 0", vAcc + e)
    a.i("v_mov_b32 v%d, 0xff800000", vMc)
    a.i("v_mov_b32 v%d, 0xff800000", vM)
    a.i("v_mov_b32 v%d, 0", vL)
    a.i("s_mov_b32 s%d, %d", sCnt, NIT - 2)
    a.i("s_waitcnt lgkmcnt(0)")
    for d in range(4):
        a.i("v_pk_add_f32 v[%d:%d], v[%d:%d], v[%d:%d]", vQP + 2 * d, vQP + 2 * d + 1, vQP + 2 * d, vQP + 2 * d + 1, vQP + 8 + 2 * d, vQP + 9 + 2 * d)
        a.i("v_pk_add_f32 v[%d:%d], v[%d:%d], v[%d:%d]", vQP + 16 + 2 * d, vQP + 17 + 2 * d, vQP + 16 + 2 * d, vQP + 17 + 2 * d, vQP + 24 + 2 * d, vQP + 25 + 2 * d)
    for d in range(4):
        a.i("v_pk_add_f32 v[%d:%d], v[%d:%d], v[%d:%d]", vQP + 2 * d, vQP + 2 * d + 1, vQP + 2 * d, vQP + 2 * d + 1, vQP + 16 + 2 * d, vQP + 17 + 2 * d)
    for d in range(4):
        a.i("v_cvt_pk_bf16_f32 v%d, v%d, v%d", vQ + d, vQP + 2 * d, vQP + 2 * d + 1)
    ts(1)

    def body(kind):
        bK, bV = (vB, vB + 4 * T) if kind == "pre" else (vK, vV)

        def wait(j):
            if kind == "pre":
                if j >= R - N + (N - min(N, p.pre)) or True:
                    n = None
                a.i("s_waitcnt vmcnt(%d)", (R - 1 - j) + N)
                return
            if kind == "first":
                n = (R - 1 - j) + max(0, j - (R - N)) + 2 * p.pf
            elif kind == "mid":
                n = N - 1
            else:
                n = min(R - 1, j + N - 1) - j
            a.i("s_waitcnt vmcnt(%d)", n)

        def issue(j):
            if kind == "pre":
                return
            k = j + N
            if k < R:
                if kind != "first":
                    kvload(k, "s%d" % sCur)
            elif kind != "last":
                kvload(k - R, "s%d" % sNext)
        for i in range(T):
            wait(i)
            k = bK + 4 * i
            a.i("v_dot2_f32_bf16 v%d, v%d, v%d, 0", vS + i, k, vQ)
            for d in range(1, 4):
                a.i("v_dot2_f32_bf16 v%d, v%d, v%d, v%d", vS + i, k + d, vQ + d, vS + i)
            issue(i)
        for r in (8, 4, 2, 1):
            for i in range(T):
                a.i("v_add_f32_dpp v%d, v%d, v%d row_ror:%d row_mask:0xf bank_mask:0xf", vS + i, vS + i, vS + i, r)
        a.i("v_max3_f32 v%d, v%d, v%d, v%d", vM, vM, vS, vS + 1)
        for i in range(2, T, 2):
            a.i("v_max3_f32 v%d, v%d, v%d, v%d", vM, vM, vS + i, vS + i + 1)
        a.i("v_mul_f32 v%d, s%d, v%d", vT0, sC, vM)
        a.i("v_sub_f32 v%d, v%d, v%d", vAl, vMc, vT0)
        a.i("v_mov_b32 v%d, v%d", vMc, vT0)
        a.i("v_exp_f32 v%d, v%d", vAl, vAl)
        for i in range(T):
            a.i("v_fma_f32 v%d, v%d, s%d, -v%d", vS + i, vS + i, sC, vMc)
        for i in range(T):
            a.i("v_exp_f32 v%d, v%d", vS + i, vS + i)
        a.i("v_mul_f32 v%d, v%d, v%d", vL, vL, vAl)
        for d in range(4):
            a.i("v_pk_mul_f32 v[%d:%d], v[%d:%d], v[%d:%d] op_sel:[0,%d] op_sel_hi:[1,%d]", vAcc + 2 * d, vAcc + 2 * d + 1,
                vAcc + 2 * d, vAcc + 2 * d + 1, vAl & ~1, (vAl & ~1) + 1, vAl & 1, vAl & 1)
        for i in range(T):
            a.i("v_add_f32 v%d, v%d, v%d", vL, vL, vS + i)
        for i in range(T):
            wait(T + i)
            vv = bV + 4 * i
            sp = (vS + i) & ~1
            hi = (vS + i) & 1
            for d in range(4):
                t = vT0 + 2 * d
                a.i("v_lshlrev_b32 v%d, 16, v%d", t, vv + d)
                a.i("v_and_b32 v%d, 0xffff0000, v%d", t + 1, vv + d)
            for d in range(4):
                t = vT0 + 2 * d
                a.i("v_pk_fma_f32 v[%d:%d], v[%d:%d], v[%d:%d], v[%d:%d] op_sel:[0,%d,0] op_sel_hi:[1,%d,1]", vAcc + 2 * d, vAcc + 2 * d + 1,
                    t, t + 1, sp, sp + 1, vAcc + 2 * d, vAcc + 2 * d + 1, hi, hi)
            issue(T + i)

    body("pre" if p.pre else "first")
    a.i("s_mov_b32 s%d, s%d", sCur, sNext)
    a.i("s_add_u32 s%d, s%d, %d", sNext, sNext, stride)
    a.i("s_and_b32 s%d, s%d, 0x%x", sNext, sNext, MASK)
    a(".p2align 6")
    a.label("L_loop")
    body("mid")
    a.i("s_mov_b32 s%d, s%d", sCur, sNext)
    a.i("s_add_u32 s%d, s%d, %d", sNext, sNext, stride)
    a.i("s_and_b32 s%d, s%d, 0x%x", sNext, sNext, MASK)
    a.i("s_sub_u32 s%d, s%d, 1", sCnt, sCnt)
    a.i("s_cmp_lg_u32 s%d, 0", sCnt)
    a.i("s_cbranch_scc1 L_loop")
    body("last")
    ts(2)
    ts(10)
    a.i("v_mov_b32 v%d, v%d", vT0, vMc)
    a.i("v_mov_b32 v%d, v%d", vT0 + 1, vMc)
    a.i("v_permlane32_swap_b32 v%d, v%d", vT0, vT0 + 1)
    a.i("v_max_f32 v%d, v%d, v%d", vT0, vT0, vT0 + 1)
    a.i("v_mov_b32 v%d, v%d", vT0 + 1, vT0)
    a.i("v_permlane16_swap_b32 v%d, v%d", vT0, vT0 + 1)
    a.i("v_max_f32 v%d, v%d, v%d", vT0 + 2, vT0, vT0 + 1)
    a.i("v_sub_f32 v%d, v%d, v%d", vAl, vMc, vT0 + 2)
    a.i("v_exp_f32 v%d, v%d", vAl, vAl)
    a.i("v_mul_f32 v%d, v%d, v%d", vL, vL, vAl)
    for d in range(4):
        a.i("v_pk_mul_f32 v[%d:%d], v[%d:%d], v[%d:%d] op_sel:[0,%d] op_sel_hi:[1,%d]", vAcc + 2 * d, vAcc + 2 * d + 1,
            vAcc + 2 * d, vAcc + 2 * d + 1, vAl & ~1, (vAl & ~1) + 1, vAl & 1, vAl & 1)
    a.i("v_mov_b32 v%d, v%d", vT0 + 1, vL)
    a.i("v_permlane32_swap_b32 v%d, v%d", vL, vT0 + 1)
    a.i("v_add_f32 v%d, v%d, v%d", vL, vL, vT0 + 1)
    a.i("v_mov_b32 v%d, v%d", vT0 + 1, vL)
    reduce_scatter(vAcc)
    a.i("v_permlane16_swap_b32 v%d, v%d", vL, vT0 + 1)
    a.i("v_add_f32 v%d, v%d, v%d", vT0 + 3, vL, vT0 + 1)
    a.i("ds_write_b64 v%d, v[%d:%d]", vOpA, vAcc, vAcc + 1)
    a.i("s_mov_b64 exec, 1")
    a.i("ds_write_b64 v%d, v[%d:%d]", vMlA, vT0 + 2, vT0 + 3)
    a.i("s_waitcnt lgkmcnt(0)")
    ts(11)
    a.i("s_barrier")
    diag_store("s")
    a.label("L_end")
    a.i("s_endpgm")
    a.label("L_code_end")

    descr(a, NAME + "_kernel", NV, 96)
    return a.text()


def parse(argv):
    ap = argparse.ArgumentParser()
    ap.add_argument("-T", type=int, default=4)
    ap.add_argument("-N", type=int, default=6)
    ap.add_argument("--QD", type=int, default=12)
    ap.add_argument("--stagger", type=int, default=0)
    ap.add_argument("--PW", type=int, default=1)
    ap.add_argument("--pre", type=int, default=0)
    ap.add_argument("--nowq", type=int, default=0)
    ap.add_argument("--nowo", type=int, default=0)
    ap.add_argument("--touch", type=int, default=0)
    ap.add_argument("--pf", type=int, default=0)
    ap.add_argument("--pfflags", default="nt")
    ap.add_argument("--minlds", type=int, default=0)
    ap.add_argument("--kvflags", default="nt")
    ap.add_argument("--wqflags", default="")
    ap.add_argument("--woflags", default="")
    ap.add_argument("--diag", type=int, default=0)
    ap.add_argument("-o", default="/dev/stdout")
    p = ap.parse_args(argv)
    for k in ("kvflags", "wqflags", "woflags", "pfflags"):
        s = getattr(p, k).strip().replace("+", " ")
        if s == "none":
            s = ""
        setattr(p, k, " " + s if s else "")
    return p


if __name__ == "__main__":
    p = parse(sys.argv[1:])
    open(p.o, "w").write(gen(p))
```

```python
import sys, argparse, math, struct
from asmlib import Asm
from gen2 import VM, lg, f32hex, descr, CLOG, NAME

HEADER = """; Decode attention of two independent branches (A, B) with fused q / output projections; out = concat(A, B).
; Workgroup (branch, head, split) streams 4096 keys.  Waves 0-3 (helpers): q projection, wo prefetch, output
"""


def gen(p):
    T, N = p.T, p.N
    R = 2 * T
    assert N <= R
    NS = 4
    NIT = 1024 // (NS * T)
    NWQ = 32
    RPG = 32
    NX = 4
    QD = p.QD
    assert QD % 2 == 0
    NWO = 32
    F = 32
    kvf = p.kvflags
    L_QP = 0
    L_OP = 2048
    L_ML = 4096
    L_ZF = 4160
    LDS = max(4352, p.minlds)

    a = Asm()
    a(HEADER.rstrip())
    a("; @launch grid=(256,1,1) block=(512,1,1) lds=%d" % LDS)
    a('.amdgcn_target "amdgcn-amd-amdhsa--gfx950"')
    a(".text")
    a(".globl %s_kernel" % NAME)
    a(".p2align 8")
    a(".type %s_kernel,@function" % NAME)
    a("%s_kernel:" % NAME)

    sXp, sKp, sVp, sWqp, sWop = 16, 18, 20, 22, 24
    sOutP, sDbgP, sWsP = 36, 38, 40
    sK, sV, sWq, sWo, sX, sWs = 44, 48, 52, 56, 60, 64
    sDbg, sOut = 44, 48
    sHead, sSplit, sBr, sWave = 68, 69, 70, 71
    sCur, sCnt, sT0, sT1, sC, sNext = 72, 73, 74, 75, 76, 77
    sP, sQoff = 78, 79
    sTS = 80
    sW4 = 15
    sPlo, sPhi = 12, 13
    sTk = 14
    sSpin = 11
    vLane, vOffKV = 1, 2
    nOff = max(1, T // 4)
    v = 2 + nOff
    vQ = (v + 1) // 2 * 2; v = vQ + 4
    vM, vL, vMc, vAl = v, v + 1, v + 2, v + 3; v += 4
    vT0 = v; v += 8
    vAcc = v; v += 8
    vS = v; v += max(T, 8)
    vOpA, vMlA, vYoff, vWoOff, vWqOff, vTk, vDum = range(v, v + 7); v += 7
    vK = (v + 3) // 4 * 4
    vV = vK + 4 * T
    vW = vK
    vWq = vK
    vXr = vK + 64
    vQP = vK + 8 * T
    vB = vQP + 32
    NV = max(vW + 128, vQP + 32, vB + 8 * T if p.pre else 0)
    assert QD * 4 <= 64 and NV <= 256, NV

    def ts(k):
        if p.diag == 6 and k == 0:
            a.i("s_memrealtime s[%d:%d]", sTS, sTS + 1)
        if p.diag == 6 and k == 2:
            a.i("s_memrealtime s[%d:%d]", sTS + 14, sTS + 15)
        if p.diag == 1 and k < 4:
            a.i("s_memrealtime s[%d:%d]", sTS + 2 * k, sTS + 2 * k + 1)
        if p.diag == 5 and k >= 20:
            a.i("s_memtime s[%d:%d]", sTS + 2 * (k - 20), sTS + 2 * (k - 20) + 1)
        if p.diag == 4 and 10 <= k < 20:
            a.i("s_memtime s[%d:%d]", sTS + 2 * (k - 10), sTS + 2 * (k - 10) + 1)

    def srd(base, ptr, offreg, nrec):
        if offreg is None:
            a.i("s_mov_b32 s%d, s%d", base, ptr)
            a.i("s_mov_b32 s%d, s%d", base + 1, ptr + 1)
        else:
            a.i("s_add_u32 s%d, s%d, s%d", base, ptr, offreg)
            a.i("s_addc_u32 s%d, s%d, 0", base + 1, ptr + 1)
        a.i("s_mov_b32 s%d, 0x%x", base + 2, nrec)
        a.i("s_mov_b32 s%d, 0x20000", base + 3)

    def reduce_scatter(base):
        for e in range(4):
            a.i("v_permlane32_swap_b32 v%d, v%d", base + e, base + e + 4)
        for e in range(4):
            a.i("v_add_f32 v%d, v%d, v%d", base + e, base + e, base + e + 4)
        for e in range(2):
            a.i("v_permlane16_swap_b32 v%d, v%d", base + e, base + e + 2)
        for e in range(2):
            a.i("v_add_f32 v%d, v%d, v%d", base + e, base + e, base + e + 2)

    def diag_store(lab):
        if not p.diag:
            return
        ts(3)
        ts(17)
        ts(27)
        a.i("s_mov_b64 exec, 1")
        a.i("s_waitcnt vmcnt(0) lgkmcnt(0)")
        a.i("v_mov_b32 v%d, 0", vT0)
        for k in range(8):
            a.i("v_mov_b32 v%d, s%d", vK + k, sTS + (2 * k if p.diag >= 4 else k))
        a.i("s_mul_i32 s%d, s2, 8", sT1)
        a.i("s_add_u32 s%d, s%d, s%d", sT1, sT1, sWave)
        a.i("s_lshl_b32 s%d, s%d, 5", sT1, sT1)
        a.i("s_add_u32 s%d, s%d, 0x100000", sT1, sT1)
        a.i("buffer_store_dwordx4 v[%d:%d], v%d, s[%d:%d], s%d offen", vK, vK + 3, vT0, sWs, sWs + 3, sT1)
        a.i("buffer_store_dwordx4 v[%d:%d], v%d, s[%d:%d], s%d offen offset:16", vK + 4, vK + 7, vT0, sWs, sWs + 3, sT1)

    WSREC = 0x100000 if not p.diag else 0x200000
    a.i("s_cmp_ge_u32 s2, 256")
    a.i("s_cbranch_scc1 L_end")
    if p.touch:
        a.i("s_getpc_b64 s[8:9]")
        a.label("L_pc")
        a.i("v_and_b32 v%d, 63, v0", vTk)
        a.i("v_lshlrev_b32 v%d, 7, v%d", vTk, vTk)
        a.i("v_lshrrev_b32 v%d, 6, v0", vDum)
        a.i("v_lshl_add_u32 v%d, v%d, 13, v%d", vTk, vDum, vTk)
        a.i("v_cmp_gt_u32 vcc, L_code_end-L_pc, v%d", vTk)
        a.i("s_and_saveexec_b64 s[6:7], vcc")
        a.i("s_cbranch_execz L_notouch")
        a.i("global_load_dword v%d, v%d, s[8:9]", vDum, vTk)
        a.label("L_notouch")
        a.i("s_mov_b64 exec, s[6:7]")
    a.i("s_load_dwordx16 s[16:31], s[0:1], 0")
    a.i("s_load_dwordx8 s[32:39], s[0:1], 64")
    a.i("s_load_dwordx2 s[40:41], s[0:1], 96")
    ts(0)
    ts(20)
    if p.diag == 4:
        for k in range(16):
            a.i("s_mov_b32 s%d, 0", sTS + k)
    a.i("v_and_b32 v%d, 63, v0", vLane)
    a.i("v_lshrrev_b32 v%d, 6, v0", vT0)
    a.i("s_and_b32 s%d, s2, 31", sHead)
    a.i("s_lshr_b32 s%d, s2, 6", sSplit)
    a.i("s_bfe_u32 s%d, s2, 0x10005", sBr)
    a.i("v_readfirstlane_b32 s%d, v%d", sWave, vT0)
    a.i("s_and_b32 s%d, s2, 63", sP)
    a.i("s_lshl_b32 s%d, s%d, 2", sP, sP)
    a.i("s_add_u32 s%d, s%d, s%d", sP, sP, sSplit)
    a.i("s_and_b32 s%d, s%d, 3", sW4, sWave)
    a.i("v_lshrrev_b32 v%d, 4, v%d", vT0, vLane)
    a.i("v_and_b32 v%d, 15, v%d", vT0 + 1, vLane)
    a.i("s_cmp_ge_u32 s%d, 4", sWave)
    a.i("s_cbranch_scc1 L_stream")

    vm = VM(a)
    a.i("s_lshl_b32 s%d, s%d, %d", sT0, sW4, lg(RPG * 4 * 2))
    a.i("v_lshlrev_b32 v%d, %d, v%d", vT0 + 2, lg(RPG * 2), vT0)
    a.i("v_add_u32 v%d, s%d, v%d", vT0 + 2, sT0, vT0 + 2)
    a.i("v_lshlrev_b32 v%d, %d, v%d", vWqOff, lg(RPG * 8192), vT0)
    a.i("v_lshl_add_u32 v%d, v%d, 4, v%d", vWqOff, vT0 + 1, vWqOff)
    a.i("s_lshl_b32 s%d, s%d, %d", sT0, sW4, lg(RPG * 4 * 8192))
    a.i("s_lshl_b32 s%d, s%d, 8", sT1, sHead)
    a.i("s_add_u32 s%d, s%d, s%d", sQoff, sT0, sT1)
    a.i("v_lshlrev_b32 v%d, 3, v%d", vT0 + 3, vT0)
    a.i("v_lshl_add_u32 v%d, v%d, 5, v%d", vYoff, vT0 + 1, vT0 + 3)
    a.i("s_lshl_b32 s%d, s%d, 9", sT0, sW4)
    a.i("s_lshl_b32 s%d, s%d, 11", sT1, sP)
    a.i("s_add_u32 s%d, s%d, s%d", sT0, sT0, sT1)
    a.i("v_add_u32 v%d, s%d, v%d", vYoff, sT0, vYoff)
    a.i("s_waitcnt lgkmcnt(0)")
    ts(21)
    a.i("s_cmp_eq_u32 s%d, 0", sBr)
    a.i("s_cselect_b64 s[16:17], s[16:17], s[26:27]")
    a.i("s_cselect_b64 s[22:23], s[22:23], s[32:33]")
    a.i("s_cselect_b64 s[24:25], s[24:25], s[34:35]")
    srd(sX, sXp, None, 1024)
    srd(sWq, sWqp, None, 512 * 8192)

    sQrel = 10
    if p.rot:
        a.i("s_lshl_b32 s%d, s%d, 16", sQrel, sSplit)
        a.i("s_mov_b32 s%d, s%d", sCnt, sQoff)
        a.i("s_add_u32 s%d, s%d, s%d", sQoff, sCnt, sQrel)

    def wqload(j):
        if p.rot:
            s = j % QD
            a.i("buffer_load_dwordx4 v[%d:%d], v%d, s[%d:%d], s%d offen%s", vWq + 4 * s, vWq + 4 * s + 3, vWqOff, sWq, sWq + 3, sQoff, p.wqflags)
            vm.issue("wq%d" % j)
            if j != NWQ - 1:
                a.i("s_add_u32 s%d, s%d, 8192", sQrel, sQrel)
                a.i("s_and_b32 s%d, s%d, 0x3ffff", sQrel, sQrel)
                a.i("s_add_u32 s%d, s%d, s%d", sQoff, sCnt, sQrel)
            return
        if p.nowq:
            vm.issue("wq%d" % j)
            a.i("buffer_load_dwordx4 v[%d:%d], v%d, s[%d:%d], 0 offen", vWq + 4 * (j % QD), vWq + 4 * (j % QD) + 3, vT0 + 2, sX, sX + 3)
            return
        s = j % QD
        a.i("buffer_load_dwordx4 v[%d:%d], v%d, s[%d:%d], s%d offen%s", vWq + 4 * s, vWq + 4 * s + 3, vWqOff, sWq, sWq + 3, sQoff, p.wqflags)
        vm.issue("wq%d" % j)
        if j != NWQ - 1:
            a.i("s_add_u32 s%d, s%d, 8192", sQoff, sQoff)
    for j in range(NX):
        if p.rot:
            a.i("s_add_u32 s%d, s%d, %d", sT0, sSplit, j)
            a.i("s_and_b32 s%d, s%d, 3", sT0, sT0)
            a.i("s_lshl_b32 s%d, s%d, 4", sT0, sT0)
            a.i("buffer_load_dwordx4 v[%d:%d], v%d, s[%d:%d], s%d offen", vXr + 4 * j, vXr + 4 * j + 3, vT0 + 2, sX, sX + 3, sT0)
        else:
            a.i("buffer_load_dwordx4 v[%d:%d], v%d, s[%d:%d], 0 offen offset:%d", vXr + 4 * j, vXr + 4 * j + 3, vT0 + 2, sX, sX + 3, 16 * j)
        vm.issue("x%d" % j)
    for j in range(QD):
        wqload(j)
    nq = QD
    srd(sWs, sWsP, None, WSREC)
    a.i("s_lshl_b32 s%d, s%d, 3", sT1, sP)
    a.i("s_add_u32 s%d, s%d, 0x80000", sT1, sT1)
    a.i("v_mov_b32 v%d, s%d", vMlA, sT1)
    a.i("s_lshl_b32 s%d, s%d, 17", sT0, sHead)
    srd(sWo, sWop, sT0, 131072)
    srd(sDbg, sDbgP, None, 256)
    srd(sOut, sOutP, None, 2048)
    a.i("s_mov_b32 s%d, 0x05040100", sPlo)
    a.i("s_mov_b32 s%d, 0x07060302", sPhi)
    a.i("v_lshlrev_b32 v%d, 11, v%d", vWoOff, vT0)
    a.i("v_lshl_add_u32 v%d, v%d, 4, v%d", vWoOff, vT0 + 1, vWoOff)
    a.i("s_lshl_b32 s%d, s%d, 8", sT0, sW4)
    a.i("v_add_u32 v%d, s%d, v%d", vWoOff, sT0, vWoOff)
    vA = vAcc
    for e in range(8):
        a.i("v_mov_b32 v%d, 0", vA + e)
    vm.maybe_wait("x%d" % (NX - 1))
    for m in range(NWQ // 2):
        vm.wait("wq%d" % (2 * m + 1))
        if m == 0:
            ts(22)
        if m == 8:
            ts(23)
        s0 = vWq + 4 * ((2 * m) % QD)
        s1 = vWq + 4 * ((2 * m + 1) % QD)
        for d in range(4):
            a.i("v_perm_b32 v%d, v%d, v%d, s%d", vT0 + 2 * (d % 2), s1 + d, s0 + d, sPlo)
            a.i("v_perm_b32 v%d, v%d, v%d, s%d", vT0 + 2 * (d % 2) + 1, s1 + d, s0 + d, sPhi)
            a.i("v_dot2_f32_bf16 v%d, v%d, v%d, v%d", vA + 2 * d, vT0 + 2 * (d % 2), vXr + m, vA + 2 * d)
            a.i("v_dot2_f32_bf16 v%d, v%d, v%d, v%d", vA + 2 * d + 1, vT0 + 2 * (d % 2) + 1, vXr + m, vA + 2 * d + 1)
        for _ in range(2):
            if nq < NWQ:
                wqload(nq); nq += 1
    ts(24)
    reduce_scatter(vA)
    a.i("v_lshrrev_b32 v%d, 4, v%d", vT0, vLane)
    a.i("v_and_b32 v%d, 15, v%d", vT0 + 1, vLane)
    a.i("v_lshlrev_b32 v%d, 3, v%d", vT0, vT0)
    a.i("v_lshl_add_u32 v%d, v%d, 5, v%d", vT0, vT0 + 1, vT0)
    a.i("s_lshl_b32 s%d, s%d, 9", sT0, sW4)
    a.i("s_add_u32 s%d, s%d, %d", sT0, sT0, L_QP)
    a.i("v_add_u32 v%d, s%d, v%d", vT0, sT0, vT0)
    a.i("ds_write_b64 v%d, v[%d:%d]", vT0, vA, vA + 1)
    if p.zearly:
        a.i("v_mov_b32 v%d, %d", vT0 + 2, L_ZF)
        a.i("v_mov_b32 v%d, 0", vT0 + 3)
        a.i("ds_write_b32 v%d, v%d", vT0 + 2, vT0 + 3)
    a.i("s_waitcnt lgkmcnt(0)")
    ts(25)
    a.i("s_barrier")
    ts(1)
    ts(26)
    a.i("s_lshl_b32 s%d, s%d, 7", sC, sBr)
    if not p.zearly:
        a.i("s_cmp_lg_u32 s%d, 0", sWave)
        a.i("s_cbranch_scc1 L_noz")
        for e in range(4):
            a.i("v_mov_b32 v%d, 0", vT0 + e)
        a.i("v_lshlrev_b32 v%d, 5, v%d", vT0 + 4, vLane)
        a.i("s_lshl_b32 s%d, s%d, 11", sT1, sP)
        if not p.nozs:
            a.i("buffer_store_dwordx4 v[%d:%d], v%d, s[%d:%d], s%d offen sc1", vT0, vT0 + 3, vT0 + 4, sWs, sWs + 3, sT1)
            a.i("buffer_store_dwordx4 v[%d:%d], v%d, s[%d:%d], s%d offen offset:16 sc1", vT0, vT0 + 3, vT0 + 4, sWs, sWs + 3, sT1)
        a.i("v_mov_b32 v%d, 0", vT0 + 6)
        a.i("v_mov_b32 v%d, 1", vT0 + 7)
        a.i("s_mov_b64 exec, 1")
        if not p.nozs:
            a.i("buffer_store_dwordx2 v[%d:%d], v%d, s[%d:%d], 0 offen sc1", vT0, vT0 + 1, vMlA, sWs, sWs + 3)
        a.i("s_waitcnt vmcnt(0)")
        if not p.noz:
            a.i("buffer_atomic_add v%d, v%d, s[%d:%d], s%d offen sc1", vT0 + 7, vT0 + 6, sDbg, sDbg + 3, sC)
        a.i("s_mov_b64 exec, -1")
        a.label("L_noz")
    a.i("s_mov_b32 s%d, 0", sCur)
    NP = NWO // 2

    def wo_issue(m):
        b = vW + 8 * m
        if p.nowo:
            return
        a.i("buffer_load_dwordx4 v[%d:%d], v%d, s[%d:%d], s%d offen%s", b, b + 3, vWoOff, sWo, sWo + 3, sCur, p.woflags)
        a.i("buffer_load_dwordx4 v[%d:%d], v%d, s[%d:%d], s%d offen offset:1024%s", b + 4, b + 7, vWoOff, sWo, sWo + 3, sCur, p.woflags)
        a.i("s_add_u32 s%d, s%d, 8192", sCur, sCur)
    for m in range(min(p.PW, NP)):
        wo_issue(m)
    for m in range(NP):
        b = vW + 8 * m
        inflight = min(NP, m + p.PW) - (m + 1)
        a.i("s_waitcnt vmcnt(%d)", 2 * inflight)
        for d in range(4):
            a.i("v_perm_b32 v%d, v%d, v%d, s%d", vT0, b + 4 + d, b + d, sPlo)
            a.i("v_perm_b32 v%d, v%d, v%d, s%d", b + 4 + d, b + 4 + d, b + d, sPhi)
            a.i("v_mov_b32 v%d, v%d", b + d, vT0)
        if m + p.PW < NP:
            wo_issue(m + p.PW)
    if p.zearly and not p.noz:
        a.i("s_cmp_lg_u32 s%d, 0", sWave)
        a.i("s_cbranch_scc1 L_noz")
        a.i("v_mov_b32 v%d, %d", vT0 + 2, L_ZF)
        a.label("L_zfw")
        a.i("ds_read_b32 v%d, v%d", vT0 + 3, vT0 + 2)
        a.i("s_waitcnt lgkmcnt(0)")
        a.i("v_readfirstlane_b32 s%d, v%d", sT0, vT0 + 3)
        a.i("s_cmp_eq_u32 s%d, 0", sT0)
        a.i("s_cbranch_scc1 L_zfw")
        a.i("v_mov_b32 v%d, 0", vT0 + 6)
        a.i("v_mov_b32 v%d, 1", vT0 + 7)
        a.i("s_mov_b64 exec, 1")
        a.i("buffer_atomic_add v%d, v%d, s[%d:%d], s%d offen sc1", vT0 + 7, vT0 + 6, sDbg, sDbg + 3, sC)
        a.i("s_mov_b64 exec, -1")
        a.label("L_noz")
    a.i("v_lshlrev_b32 v%d, 3, v%d", vOpA, vLane)
    a.i("v_add_u32 v%d, %d, v%d", vOpA, L_OP, vOpA)
    a.i("v_mov_b32 v%d, %d", vT0 + 7, L_ML)
    a.i("v_mov_b32 v%d, 0", vT0 + 6)
    a.i("v_mov_b32 v%d, 0x10000", vTk)
    for e in range(8):
        a.i("v_mov_b32 v%d, 0", vAcc + e)
    ts(2)
    a.i("s_barrier")
    ts(10)
    a.i("s_cmp_lg_u32 s%d, 0", sWave)
    a.i("s_cbranch_scc1 L_notk")
    if not p.fixfin:
        a.i("s_mov_b64 exec, 1")
        a.i("buffer_atomic_add v%d, v%d, s[%d:%d], s%d offen sc0 sc1", vTk, vT0 + 6, sDbg, sDbg + 3, sC)
        a.i("s_mov_b64 exec, -1")
    a.label("L_notk")
    for w in range(4):
        a.i("ds_read_b64 v[%d:%d], v%d offset:%d", vS + 2 * w, vS + 2 * w + 1, vOpA, 512 * w)
    a.i("ds_read_b128 v[%d:%d], v%d", vT0, vT0 + 3, vT0 + 7)
    a.i("ds_read_b128 v[%d:%d], v%d offset:16", vQ, vQ + 3, vT0 + 7)
    a.i("s_waitcnt lgkmcnt(0)")
    mc = [vT0, vT0 + 2, vQ, vQ + 2]
    a.i("v_max3_f32 v%d, v%d, v%d, v%d", vM, mc[0], mc[1], mc[2])
    a.i("v_max_f32 v%d, v%d, v%d", vM, vM, mc[3])
    for w in range(4):
        a.i("v_sub_f32 v%d, v%d, v%d", mc[w], mc[w], vM)
    for w in range(4):
        a.i("v_exp_f32 v%d, v%d", mc[w], mc[w])
    a.i("v_mul_f32 v%d, v%d, v%d", vL, mc[0], mc[0] + 1)
    for w in range(1, 4):
        a.i("v_fmac_f32 v%d, v%d, v%d", vL, mc[w], mc[w] + 1)
    a.i("v_pk_mul_f32 v[%d:%d], v[%d:%d], v[%d:%d] op_sel_hi:[1,0]", vS, vS + 1, vS, vS + 1, mc[0], mc[0] + 1)
    for w in range(1, 4):
        a.i("v_pk_fma_f32 v[%d:%d], v[%d:%d], v[%d:%d], v[%d:%d] op_sel_hi:[1,0,1]", vS, vS + 1, vS + 2 * w, vS + 2 * w + 1, mc[w], mc[w] + 1, vS, vS + 1)
    a.i("v_cvt_pk_bf16_f32 v%d, v%d, v%d", vS, vS, vS + 1)
    ts(11)
    for m in range(16):
        t = vT0 + (m % 2)
        a.i("v_mov_b32_dpp v%d, v%d row_newbcast:%d row_mask:0xf bank_mask:0xf", t, vS, m)
        for d in range(4):
            a.i("v_dot2_f32_bf16 v%d, v%d, v%d, v%d", vAcc + 2 * d, vW + 8 * m + d, t, vAcc + 2 * d)
            a.i("v_dot2_f32_bf16 v%d, v%d, v%d, v%d", vAcc + 2 * d + 1, vW + 8 * m + 4 + d, t, vAcc + 2 * d + 1)
    ts(12)
    reduce_scatter(vAcc)
    a.i("v_or_b32 v%d, 1, v%d", vAcc, vAcc)
    a.i("v_or_b32 v%d, 1, v%d", vAcc + 1, vAcc + 1)
    a.i("buffer_store_dwordx2 v[%d:%d], v%d, s[%d:%d], 0 offen sc1", vAcc, vAcc + 1, vYoff, sWs, sWs + 3)
    a.i("s_cmp_lg_u32 s%d, 0", sWave)
    a.i("s_cbranch_scc1 L_done")
    a.i("v_or_b32 v%d, 1, v%d", vT0 + 2, vM)
    a.i("v_or_b32 v%d, 1, v%d", vT0 + 3, vL)
    a.i("s_mov_b64 exec, 1")
    a.i("buffer_store_dwordx2 v[%d:%d], v%d, s[%d:%d], 0 offen sc1", vT0 + 2, vT0 + 3, vMlA, sWs, sWs + 3)
    a.i("s_mov_b64 exec, -1")
    ts(13)
    a.i("v_lshrrev_b32 v%d, 2, v%d", vT0, vLane)
    a.i("v_and_b32 v%d, 3, v%d", vT0 + 1, vLane)
    a.i("v_lshlrev_b32 v%d, 11, v%d", vYoff, vT0)
    a.i("v_lshl_add_u32 v%d, v%d, 4, v%d", vYoff, vT0 + 1, vYoff)
    a.i("v_lshlrev_b32 v%d, 3, v%d", vMlA, vT0)
    if p.fixfin:
        a.i("s_cmp_lg_u32 s%d, 3", sSplit)
        a.i("s_cbranch_scc1 L_done")
        a.i("s_mov_b32 s%d, s%d", sNext, sHead)
    else:
        a.i("s_waitcnt vmcnt(2)")
        a.i("v_readfirstlane_b32 s%d, v%d", sTk, vTk)
        a.i("s_lshr_b32 s%d, s%d, 16", sT0, sTk)
        a.i("s_cmp_lt_u32 s%d, %d", sT0, 128 - F)
        a.i("s_cbranch_scc1 L_done")
        a.i("s_sub_u32 s%d, s%d, %d", sNext, sT0, 128 - F)
    if not p.noz and not p.fixfin:
        a.i("s_and_b32 s%d, s%d, 0xffff", sT0, sTk)
        a.i("s_cmp_eq_u32 s%d, 128", sT0)
        a.i("s_cbranch_scc1 L_zok")
        a.i("s_mov_b32 s%d, 0x10000", sSpin)
        a.label("L_zspin")
        a.i("s_sub_u32 s%d, s%d, 1", sSpin, sSpin)
        a.i("s_cmp_eq_u32 s%d, 0", sSpin)
        a.i("s_cbranch_scc1 L_zok")
        a.i("s_mov_b64 exec, 1")
        a.i("buffer_load_dword v%d, v%d, s[%d:%d], s%d offen sc1", vTk, vT0 + 6, sDbg, sDbg + 3, sC)
        a.i("s_waitcnt vmcnt(0)")
        a.i("v_readfirstlane_b32 s%d, v%d", sTk, vTk)
        a.i("s_mov_b64 exec, -1")
        a.i("s_and_b32 s%d, s%d, 0xffff", sT0, sTk)
        a.i("s_cmp_eq_u32 s%d, 128", sT0)
        a.i("s_cbranch_scc0 L_zspin")
    a.label("L_zok")
    ts(14)
    vY = vW
    vMl = vW + 32
    a.i("s_lshl_b32 s%d, s%d, 18", sT0, sBr)
    a.i("s_lshl_b32 s%d, s%d, 6", sT1, sNext)
    a.i("s_add_u32 s%d, s%d, s%d", sQoff, sT0, sT1)
    a.i("s_lshl_b32 s%d, s%d, 10", sT0, sBr)
    a.i("s_add_u32 s%d, s%d, 0x80000", sCnt, sT0)
    if p.mlpoll:
        a.i("v_lshlrev_b32 v%d, 4, v%d", vT0 + 1, vLane)
        a.i("s_mov_b32 s%d, 0x10000", sSpin)
        a.label("L_poll1")
        a.i("buffer_load_dwordx4 v[%d:%d], v%d, s[%d:%d], s%d offen sc1", vMl, vMl + 3, vT0 + 1, sWs, sWs + 3, sCnt)
        a.i("s_waitcnt vmcnt(0)")
        a.i("v_min3_u32 v%d, v%d, v%d, v%d", vT0, vMl, vMl + 1, vMl + 2)
        a.i("v_min_u32 v%d, v%d, v%d", vT0, vT0, vMl + 3)
        a.i("v_cmp_eq_u32 vcc, 0, v%d", vT0)
        a.i("s_sub_u32 s%d, s%d, 1", sSpin, sSpin)
        a.i("s_cbranch_scc1 L_poll1ok")
        a.i("s_cbranch_vccz L_poll1ok")
        a.i("s_sleep %d", p.mlpoll)
        a.i("s_branch L_poll1")
        a.label("L_poll1ok")
    a.i("s_mov_b32 s%d, 0x10000", sSpin)
    a.label("L_poll")
    a.i("s_mov_b32 s%d, s%d", sCur, sQoff)
    for j in range(8):
        a.i("buffer_load_dwordx2 v[%d:%d], v%d, s[%d:%d], s%d offen offset:%d sc1", vMl + 2 * j, vMl + 2 * j + 1, vMlA, sWs, sWs + 3, sCnt, 128 * j)
    for j in range(8):
        a.i("buffer_load_dwordx4 v[%d:%d], v%d, s[%d:%d], s%d offen sc1", vY + 4 * j, vY + 4 * j + 3, vYoff, sWs, sWs + 3, sCur)
        if j != 7:
            a.i("s_add_u32 s%d, s%d, 32768", sCur, sCur)
    a.i("s_waitcnt vmcnt(8)")
    a.i("v_min3_u32 v%d, v%d, v%d, v%d", vT0, vMl, vMl + 1, vMl + 2)
    for k in range(3, 15, 2):
        a.i("v_min3_u32 v%d, v%d, v%d, v%d", vT0, vT0, vMl + k, vMl + k + 1)
    a.i("v_min_u32 v%d, v%d, v%d", vT0, vT0, vMl + 15)
    for j in range(8):
        a.i("v_max_f32_dpp v%d, v%d, v%d row_ror:4 row_mask:0xf bank_mask:0xf", vS + j, vMl + 2 * j, vMl + 2 * j)
    for j in range(8):
        a.i("v_max_f32_dpp v%d, v%d, v%d row_ror:8 row_mask:0xf bank_mask:0xf", vS + j, vS + j, vS + j)
    for j in range(8):
        a.i("v_sub_f32 v%d, v%d, v%d", vS + j, vMl + 2 * j, vS + j)
    for j in range(8):
        a.i("v_exp_f32 v%d, v%d", vS + j, vS + j)
    for j in range(8):
        a.i("v_mul_f32 v%d, v%d, v%d", vMl + 2 * j + 1, vMl + 2 * j + 1, vS + j)
    for j in range(8):
        a.i("v_add_f32_dpp v%d, v%d, v%d row_ror:4 row_mask:0xf bank_mask:0xf", vMl + 2 * j + 1, vMl + 2 * j + 1, vMl + 2 * j + 1)
    for j in range(8):
        a.i("v_add_f32_dpp v%d, v%d, v%d row_ror:8 row_mask:0xf bank_mask:0xf", vMl + 2 * j + 1, vMl + 2 * j + 1, vMl + 2 * j + 1)
    for j in range(8):
        a.i("v_rcp_f32 v%d, v%d", vMl + 2 * j + 1, vMl + 2 * j + 1)
    for j in range(8):
        a.i("v_mul_f32 v%d, v%d, v%d", vS + j, vS + j, vMl + 2 * j + 1)
    a.i("s_waitcnt vmcnt(0)")
    for k in range(0, 32, 2):
        a.i("v_min3_u32 v%d, v%d, v%d, v%d", vT0, vT0, vY + k, vY + k + 1)
    a.i("v_cmp_eq_u32 vcc, 0, v%d", vT0)
    a.i("s_sub_u32 s%d, s%d, 1", sSpin, sSpin)
    a.i("s_cbranch_scc1 L_pollok")
    a.i("s_cbranch_vccnz L_poll")
    a.label("L_pollok")
    ts(15)
    for e in range(4):
        a.i("v_mul_f32 v%d, v%d, v%d", vAcc + e, vS, vY + e)
    for j in range(1, 8):
        for e in range(4):
            a.i("v_fmac_f32 v%d, v%d, v%d", vAcc + e, vS + j, vY + 4 * j + e)
    for r in (4, 8):
        for e in range(4):
            a.i("v_add_f32_dpp v%d, v%d, v%d row_ror:%d row_mask:0xf bank_mask:0xf", vAcc + e, vAcc + e, vAcc + e, r)
    for e in range(2):
        a.i("v_permlane32_swap_b32 v%d, v%d", vAcc + e, vAcc + 2 + e)
    for e in range(2):
        a.i("v_add_f32 v%d, v%d, v%d", vAcc + e, vAcc + e, vAcc + 2 + e)
    a.i("v_permlane16_swap_b32 v%d, v%d", vAcc, vAcc + 1)
    a.i("v_add_f32 v%d, v%d, v%d", vAcc, vAcc, vAcc + 1)
    a.i("v_lshrrev_b32 v%d, 4, v%d", vT0, vLane)
    a.i("v_and_b32 v%d, 3, v%d", vT0 + 1, vLane)
    a.i("v_lshl_add_u32 v%d, v%d, 2, v%d", vT0, vT0 + 1, vT0)
    a.i("v_lshlrev_b32 v%d, 1, v%d", vT0, vT0)
    a.i("v_cvt_pk_bf16_f32 v%d, v%d, v%d", vAcc, vAcc, vAcc)
    a.i("s_lshl_b32 s%d, s%d, 10", sT0, sBr)
    a.i("s_lshl_b32 s%d, s%d, 5", sT1, sNext)
    a.i("s_add_u32 s%d, s%d, s%d", sT0, sT0, sT1)
    a.i("s_mov_b32 exec_lo, 0x000f000f")
    a.i("s_mov_b32 exec_hi, 0x000f000f")
    a.i("buffer_store_short v%d, v%d, s[%d:%d], s%d offen", vAcc, vT0, sOut, sOut + 3, sT0)
    ts(16)
    a.label("L_done")
    diag_store("h")
    a.i("s_endpgm")

    a.label("L_stream")
    a.i("s_lshl_b32 s%d, s%d, %d", sT0, sW4, lg(T * 1024))
    stride = NS * T * 1024
    a.i("v_lshlrev_b32 v%d, 4, v%d", vOffKV, vLane)
    a.i("v_add_u32 v%d, s%d, v%d", vOffKV, sT0, vOffKV)
    for j in range(1, nOff):
        a.i("v_add_u32 v%d, %d, v%d", vOffKV + j, 4096 * j, vOffKV)
    a.i("s_lshl_b32 s%d, s%d, 22", sT0, sHead)
    a.i("s_lshl_b32 s%d, s%d, 20", sT1, sSplit)
    a.i("s_add_u32 s%d, s%d, s%d", sCur, sT0, sT1)
    a.i("s_waitcnt lgkmcnt(0)")
    a.i("s_cmp_eq_u32 s%d, 0", sBr)
    a.i("s_cselect_b64 s[18:19], s[18:19], s[28:29]")
    a.i("s_cselect_b64 s[20:21], s[20:21], s[30:31]")
    srd(sK, sKp, sCur, 1 << 20)
    srd(sV, sVp, sCur, 1 << 20)
    if p.zearly:
        srd(sWs, sWsP, None, WSREC)
        a.i("s_cmp_lg_u32 s%d, 4", sWave)
        a.i("s_cbranch_scc1 L_nozs")
        for e in range(4):
            a.i("v_mov_b32 v%d, 0", vT0 + 4 + e)
        a.i("v_lshlrev_b32 v%d, 5, v%d", vT0 + 2, vLane)
        a.i("s_lshl_b32 s%d, s%d, 11", sT1, sP)
        a.i("buffer_store_dwordx4 v[%d:%d], v%d, s[%d:%d], s%d offen sc1", vT0 + 4, vT0 + 7, vT0 + 2, sWs, sWs + 3, sT1)
        a.i("buffer_store_dwordx4 v[%d:%d], v%d, s[%d:%d], s%d offen offset:16 sc1", vT0 + 4, vT0 + 7, vT0 + 2, sWs, sWs + 3, sT1)
        a.i("s_lshl_b32 s%d, s%d, 3", sT1, sP)
        a.i("s_add_u32 s%d, s%d, 0x80000", sT1, sT1)
        a.i("v_mov_b32 v%d, 0", vT0 + 2)
        a.i("s_mov_b64 exec, 1")
        a.i("buffer_store_dwordx2 v[%d:%d], v%d, s[%d:%d], s%d offen sc1", vT0 + 4, vT0 + 5, vT0 + 2, sWs, sWs + 3, sT1)
        a.i("s_mov_b64 exec, -1")
        a.label("L_nozs")

    def kvload(j, soff, base=None):
        which, i = ("K", j) if j < T else ("V", j - T)
        srdb = sK if which == "K" else sV
        reg = (vK if base is None else base) + 4 * j
        a.i("buffer_load_dwordx4 v[%d:%d], v%d, s[%d:%d], %s offen offset:%d%s", reg, reg + 3,
            vOffKV + i // 4, srdb, srdb + 3, soff, (i % 4) * 1024, kvf)
    MASK = (1 << 20) - 1
    if p.stagger:
        a.i("s_mul_i32 s%d, s2, %d", sCur, p.stagger * stride)
        a.i("s_and_b32 s%d, s%d, 0x%x", sCur, sCur, MASK)
    else:
        a.i("s_mov_b32 s%d, 0", sCur)
    a.i("s_add_u32 s%d, s%d, %d", sNext, sCur, stride)
    a.i("s_and_b32 s%d, s%d, 0x%x", sNext, sNext, MASK)
    if p.single:
        for j in range(N):
            kvload(j, "s%d" % sCur)
    elif p.pre:
        seq = [(j, sCur, vB) for j in range(R)] + [(j, sNext, None) for j in range(N)]
        for k, (j, so, base) in enumerate(seq):
            if k >= p.pre:
                a.i("s_waitcnt vmcnt(%d)", p.pre - 1)
            kvload(j, "s%d" % so, base)
    else:
        for j in range(R):
            kvload(j, "s%d" % sCur)
        if p.pf:
            assert T == 4
            a.i("s_lshl_b32 s%d, s%d, 12", sT0, sW4)
            a.i("v_lshlrev_b32 v%d, 6, v%d", vTk, vLane)
            a.i("v_add_u32 v%d, s%d, v%d", vTk, sT0, vTk)
            a.i("s_mov_b32 s%d, s%d", sT1, sNext)
            for k in range(p.pf):
                a.i("buffer_load_dword v%d, v%d, s[%d:%d], s%d offen%s", vDum, vTk, sK, sK + 3, sT1, p.pfflags)
                a.i("buffer_load_dword v%d, v%d, s[%d:%d], s%d offen%s", vDum, vTk, sV, sV + 3, sT1, p.pfflags)
                if k + 1 < p.pf:
                    a.i("s_add_u32 s%d, s%d, %d", sT1, sT1, stride)
                    a.i("s_and_b32 s%d, s%d, 0x%x", sT1, sT1, MASK)
    if p.diag:
        srd(sWs, sWsP, None, WSREC)
    a.i("s_mov_b32 s%d, %s", sC, f32hex(CLOG))
    a.i("s_lshl_b32 s%d, s%d, 9", sT0, sW4)
    a.i("s_add_u32 s%d, s%d, %d", sT0, sT0, L_OP)
    a.i("v_lshlrev_b32 v%d, 3, v%d", vOpA, vLane)
    a.i("v_add_u32 v%d, s%d, v%d", vOpA, sT0, vOpA)
    a.i("s_lshl_b32 s%d, s%d, 3", sT0, sW4)
    a.i("s_add_u32 s%d, s%d, %d", sT0, sT0, L_ML)
    a.i("v_mov_b32 v%d, s%d", vMlA, sT0)
    a.i("v_lshlrev_b32 v%d, 5, v%d", vT0 + 1, vT0 + 1)
    a.i("v_add_u32 v%d, %d, v%d", vQP, L_QP, vT0 + 1)
    if p.single:
        a.i("s_mov_b32 s79, s%d", sNext)
    if p.single and p.dry:
        a.i("s_mov_b32 s10, 1")
        a.i("s_mov_b64 exec, 0")
        a.i("s_branch L_loop")
        a.label("L_dryret")
        a.i("s_mov_b64 exec, -1")
        a.i("s_mov_b32 s10, 0")
    a.i("s_barrier")
    a.i("v_mov_b32 v%d, v%d", vT0 + 1, vQP)
    for w in range(4):
        a.i("ds_read_b128 v[%d:%d], v%d offset:%d", vQP + 8 * w, vQP + 8 * w + 3, vT0 + 1, w * 512)
        a.i("ds_read_b128 v[%d:%d], v%d offset:%d", vQP + 8 * w + 4, vQP + 8 * w + 7, vT0 + 1, w * 512 + 16)
    for e in range(8):
        a.i("v_mov_b32 v%d, 0", vAcc + e)
    a.i("v_mov_b32 v%d, 0xff800000", vMc)
    a.i("v_mov_b32 v%d, 0xff800000", vM)
    a.i("v_mov_b32 v%d, 0", vL)
    a.i("s_mov_b32 s%d, %d", sCnt, NIT if p.single else NIT - 2)
    a.i("s_waitcnt lgkmcnt(0)")
    for d in range(4):
        a.i("v_pk_add_f32 v[%d:%d], v[%d:%d], v[%d:%d]", vQP + 2 * d, vQP + 2 * d + 1, vQP + 2 * d, vQP + 2 * d + 1, vQP + 8 + 2 * d, vQP + 9 + 2 * d)
        a.i("v_pk_add_f32 v[%d:%d], v[%d:%d], v[%d:%d]", vQP + 16 + 2 * d, vQP + 17 + 2 * d, vQP + 16 + 2 * d, vQP + 17 + 2 * d, vQP + 24 + 2 * d, vQP + 25 + 2 * d)
    for d in range(4):
        a.i("v_pk_add_f32 v[%d:%d], v[%d:%d], v[%d:%d]", vQP + 2 * d, vQP + 2 * d + 1, vQP + 2 * d, vQP + 2 * d + 1, vQP + 16 + 2 * d, vQP + 17 + 2 * d)
    for d in range(4):
        a.i("v_cvt_pk_bf16_f32 v%d, v%d, v%d", vQ + d, vQP + 2 * d, vQP + 2 * d + 1)
    ts(1)

    def body(kind):
        bK, bV = (vB, vB + 4 * T) if kind == "pre" else (vK, vV)

        def wait(j):
            if kind == "pre":
                if j >= R - N + (N - min(N, p.pre)) or True:
                    n = None
                a.i("s_waitcnt vmcnt(%d)", (R - 1 - j) + N)
                return
            if kind == "first":
                n = (R - 1 - j) + max(0, j - (R - N)) + 2 * p.pf
            elif kind == "mid":
                n = N - 1
            else:
                n = min(R - 1, j + N - 1) - j
            a.i("s_waitcnt vmcnt(%d)", n)

        def issue(j):
            if kind == "pre":
                return
            k = j + N
            if k < R:
                if kind != "first":
                    kvload(k, "s%d" % sCur)
            elif kind != "last":
                kvload(k - R, "s%d" % sNext)
        for i in range(T):
            wait(i)
            k = bK + 4 * i
            a.i("v_dot2_f32_bf16 v%d, v%d, v%d, 0", vS + i, k, vQ)
            for d in range(1, 4):
                a.i("v_dot2_f32_bf16 v%d, v%d, v%d, v%d", vS + i, k + d, vQ + d, vS + i)
            issue(i)
        for r in (8, 4, 2, 1):
            for i in range(T):
                a.i("v_add_f32_dpp v%d, v%d, v%d row_ror:%d row_mask:0xf bank_mask:0xf", vS + i, vS + i, vS + i, r)
        a.i("v_max3_f32 v%d, v%d, v%d, v%d", vM, vM, vS, vS + 1)
        for i in range(2, T, 2):
            a.i("v_max3_f32 v%d, v%d, v%d, v%d", vM, vM, vS + i, vS + i + 1)
        a.i("v_mul_f32 v%d, s%d, v%d", vT0, sC, vM)
        a.i("v_sub_f32 v%d, v%d, v%d", vAl, vMc, vT0)
        a.i("v_mov_b32 v%d, v%d", vMc, vT0)
        a.i("v_exp_f32 v%d, v%d", vAl, vAl)
        for i in range(T):
            a.i("v_fma_f32 v%d, v%d, s%d, -v%d", vS + i, vS + i, sC, vMc)
        for i in range(T):
            a.i("v_exp_f32 v%d, v%d", vS + i, vS + i)
        a.i("v_mul_f32 v%d, v%d, v%d", vL, vL, vAl)
        for d in range(4):
            a.i("v_pk_mul_f32 v[%d:%d], v[%d:%d], v[%d:%d] op_sel:[0,%d] op_sel_hi:[1,%d]", vAcc + 2 * d, vAcc + 2 * d + 1,
                vAcc + 2 * d, vAcc + 2 * d + 1, vAl & ~1, (vAl & ~1) + 1, vAl & 1, vAl & 1)
        for i in range(T):
            a.i("v_add_f32 v%d, v%d, v%d", vL, vL, vS + i)
        for i in range(T):
            wait(T + i)
            vv = bV + 4 * i
            sp = (vS + i) & ~1
            hi = (vS + i) & 1
            for d in range(4):
                t = vT0 + 2 * d
                a.i("v_lshlrev_b32 v%d, 16, v%d", t, vv + d)
                a.i("v_and_b32 v%d, 0xffff0000, v%d", t + 1, vv + d)
            for d in range(4):
                t = vT0 + 2 * d
                a.i("v_pk_fma_f32 v[%d:%d], v[%d:%d], v[%d:%d], v[%d:%d] op_sel:[0,%d,0] op_sel_hi:[1,%d,1]", vAcc + 2 * d, vAcc + 2 * d + 1,
                    t, t + 1, sp, sp + 1, vAcc + 2 * d, vAcc + 2 * d + 1, hi, hi)
            issue(T + i)

    if p.single:
        sNr, sDry = 79, 10
        a(".p2align 6")
        a.label("L_loop")
        body("mid")
        if p.dry:
            a.i("s_cmp_lg_u32 s%d, 0", sDry)
            a.i("s_cbranch_scc1 L_dryret")
        a.i("s_mov_b32 s%d, s%d", sCur, sNr)
        a.i("s_add_u32 s%d, s%d, %d", sNr, sNr, stride)
        a.i("s_and_b32 s%d, s%d, 0x%x", sNr, sNr, MASK)
        a.i("s_sub_u32 s%d, s%d, 1", sCnt, sCnt)
        a.i("s_cmp_eq_u32 s%d, 1", sCnt)
        a.i("s_cselect_b32 s%d, 0x100000, s%d", sNext, sNr)
        a.i("s_cmp_lg_u32 s%d, 0", sCnt)
        a.i("s_cbranch_scc1 L_loop")
    else:
        body("pre" if p.pre else "first")
        if p.zearly:
            a.i("s_cmp_lg_u32 s%d, 4", sWave)
            a.i("s_cbranch_scc1 L_nozf")
            a.i("v_mov_b32 v%d, %d", vT0, L_ZF)
            a.i("v_mov_b32 v%d, 1", vT0 + 1)
            a.i("ds_write_b32 v%d, v%d", vT0, vT0 + 1)
            a.label("L_nozf")
        a.i("s_mov_b32 s%d, s%d", sCur, sNext)
        a.i("s_add_u32 s%d, s%d, %d", sNext, sNext, stride)
        a.i("s_and_b32 s%d, s%d, 0x%x", sNext, sNext, MASK)
        a(".p2align 6")
        a.label("L_loop")
        body("mid")
        if p.diag == 6:
            for k, it in enumerate((1, 3, 7, 15, 31, 47)):
                a.i("s_cmp_lg_u32 s%d, %d", sCnt, NIT - 1 - it)
                a.i("s_cbranch_scc1 L_ps%d", k)
                a.i("s_memrealtime s[%d:%d]", sTS + 2 + 2 * k, sTS + 3 + 2 * k)
                a.label("L_ps%d" % k)
        a.i("s_mov_b32 s%d, s%d", sCur, sNext)
        a.i("s_add_u32 s%d, s%d, %d", sNext, sNext, stride)
        a.i("s_and_b32 s%d, s%d, 0x%x", sNext, sNext, MASK)
        a.i("s_sub_u32 s%d, s%d, 1", sCnt, sCnt)
        a.i("s_cmp_lg_u32 s%d, 0", sCnt)
        a.i("s_cbranch_scc1 L_loop")
        body("last")
    ts(2)
    ts(10)
    a.i("v_mov_b32 v%d, v%d", vT0, vMc)
    a.i("v_mov_b32 v%d, v%d", vT0 + 1, vMc)
    a.i("v_permlane32_swap_b32 v%d, v%d", vT0, vT0 + 1)
    a.i("v_max_f32 v%d, v%d, v%d", vT0, vT0, vT0 + 1)
    a.i("v_mov_b32 v%d, v%d", vT0 + 1, vT0)
    a.i("v_permlane16_swap_b32 v%d, v%d", vT0, vT0 + 1)
    a.i("v_max_f32 v%d, v%d, v%d", vT0 + 2, vT0, vT0 + 1)
    a.i("v_sub_f32 v%d, v%d, v%d", vAl, vMc, vT0 + 2)
    a.i("v_exp_f32 v%d, v%d", vAl, vAl)
    a.i("v_mul_f32 v%d, v%d, v%d", vL, vL, vAl)
    for d in range(4):
        a.i("v_pk_mul_f32 v[%d:%d], v[%d:%d], v[%d:%d] op_sel:[0,%d] op_sel_hi:[1,%d]", vAcc + 2 * d, vAcc + 2 * d + 1,
            vAcc + 2 * d, vAcc + 2 * d + 1, vAl & ~1, (vAl & ~1) + 1, vAl & 1, vAl & 1)
    a.i("v_mov_b32 v%d, v%d", vT0 + 1, vL)
    a.i("v_permlane32_swap_b32 v%d, v%d", vL, vT0 + 1)
    a.i("v_add_f32 v%d, v%d, v%d", vL, vL, vT0 + 1)
    a.i("v_mov_b32 v%d, v%d", vT0 + 1, vL)
    reduce_scatter(vAcc)
    a.i("v_permlane16_swap_b32 v%d, v%d", vL, vT0 + 1)
    a.i("v_add_f32 v%d, v%d, v%d", vT0 + 3, vL, vT0 + 1)
    a.i("ds_write_b64 v%d, v[%d:%d]", vOpA, vAcc, vAcc + 1)
    a.i("s_mov_b64 exec, 1")
    a.i("ds_write_b64 v%d, v[%d:%d]", vMlA, vT0 + 2, vT0 + 3)
    a.i("s_waitcnt lgkmcnt(0)")
    ts(11)
    a.i("s_barrier")
    diag_store("s")
    a.label("L_end")
    a.i("s_endpgm")
    a.label("L_code_end")

    descr(a, NAME + "_kernel", NV, 96)
    return a.text()


def parse(argv):
    ap = argparse.ArgumentParser()
    ap.add_argument("-T", type=int, default=4)
    ap.add_argument("-N", type=int, default=6)
    ap.add_argument("--QD", type=int, default=12)
    ap.add_argument("--stagger", type=int, default=0)
    ap.add_argument("--PW", type=int, default=1)
    ap.add_argument("--pre", type=int, default=0)
    ap.add_argument("--nowq", type=int, default=0)
    ap.add_argument("--nowo", type=int, default=0)
    ap.add_argument("--touch", type=int, default=0)
    ap.add_argument("--pf", type=int, default=0)
    ap.add_argument("--pfflags", default="nt")
    ap.add_argument("--rot", type=int, default=0)
    ap.add_argument("--noz", type=int, default=0)
    ap.add_argument("--fixfin", type=int, default=0)
    ap.add_argument("--mlpoll", type=int, default=0)
    ap.add_argument("--nozs", type=int, default=0)
    ap.add_argument("--zearly", type=int, default=0)
    ap.add_argument("--single", type=int, default=0)
    ap.add_argument("--dry", type=int, default=0)
    ap.add_argument("--minlds", type=int, default=0)
    ap.add_argument("--kvflags", default="nt")
    ap.add_argument("--wqflags", default="")
    ap.add_argument("--woflags", default="")
    ap.add_argument("--diag", type=int, default=0)
    ap.add_argument("-o", default="/dev/stdout")
    p = ap.parse_args(argv)
    for k in ("kvflags", "wqflags", "woflags", "pfflags"):
        s = getattr(p, k).strip().replace("+", " ")
        if s == "none":
            s = ""
        setattr(p, k, " " + s if s else "")
    return p


if __name__ == "__main__":
    p = parse(sys.argv[1:])
    open(p.o, "w").write(gen(p))
```

```python
import sys, argparse, math, struct
from asmlib import Asm
from gen2 import VM, lg, f32hex, descr, CLOG, NAME

HEADER = """; Decode attention of two independent branches (A, B) with fused q / output projections; out = concat(A, B).
; Workgroup (branch, head, split) streams 4096 keys.  Waves 0-3 (helpers): q projection, wo prefetch, output
; Hand-offs between workgroups go through ws as 8-byte {data, tag} granules; see the generator for the layout.
"""


def gen(p):
    T, N = p.T, p.N
    R = 2 * T
    assert N <= R
    NS = 4
    NIT = 1024 // (NS * T)
    NWQ = 32
    RPG = 32
    NX = 4
    QD = p.QD
    assert QD % 2 == 0
    NWO = 32
    F = 32
    kvf = p.kvflags
    L_QP = 0
    L_OP = 2048
    L_ML = 4096
    L_ZF = 4160
    LDS = max(4352, p.minlds)

    a = Asm()
    a(HEADER.rstrip())
    a("; @launch grid=(256,1,1) block=(512,1,1) lds=%d" % LDS)
    a('.amdgcn_target "amdgcn-amd-amdhsa--gfx950"')
    a(".text")
    a(".globl %s_kernel" % NAME)
    a(".p2align 8")
    a(".type %s_kernel,@function" % NAME)
    a("%s_kernel:" % NAME)

    sXp, sKp, sVp, sWqp, sWop = 16, 18, 20, 22, 24
    sOutP, sDbgP, sWsP = 36, 38, 40
    sK, sV, sWq, sWo, sX, sWs = 44, 48, 52, 56, 60, 64
    sDbg, sOut = 44, 48
    sHead, sSplit, sBr, sWave = 68, 69, 70, 71
    sCur, sCnt, sT0, sT1, sC, sNext = 72, 73, 74, 75, 76, 77
    sP, sQoff = 78, 79
    sTS = 80
    sW4 = 15
    sPlo, sPhi = 12, 13
    sTk = 14
    sTag = 9
    sSpin = 11
    vLane, vOffKV = 1, 2
    nOff = max(1, T // 4)
    v = 2 + nOff
    vQ = (v + 1) // 2 * 2; v = vQ + 4
    vM, vL, vMc, vAl = v, v + 1, v + 2, v + 3; v += 4
    vT0 = v; v += 8
    vAcc = v; v += 8
    vS = v; v += max(T, 8)
    vOpA, vMlA, vYoff, vWoOff, vWqOff, vTk, vDum = range(v, v + 7); v += 7
    vK = (v + 3) // 4 * 4
    vV = vK + 4 * T
    vW = vK
    vWq = vK
    vXr = vK + 64
    vQP = vK + 8 * T
    vB = vQP + 32
    NV = max(vW + 128, vQP + 32, vB + 8 * T if p.pre else 0)
    assert QD * 4 <= 64 and NV <= 256, NV

    def ts(k):
        if p.diag == 6 and k == 0:
            a.i("s_memrealtime s[%d:%d]", sTS, sTS + 1)
        if p.diag == 6 and k == 2:
            a.i("s_memrealtime s[%d:%d]", sTS + 14, sTS + 15)
        if p.diag == 1 and k < 4:
            a.i("s_memrealtime s[%d:%d]", sTS + 2 * k, sTS + 2 * k + 1)
        if p.diag == 5 and k >= 20:
            a.i("s_memtime s[%d:%d]", sTS + 2 * (k - 20), sTS + 2 * (k - 20) + 1)
        if p.diag == 4 and 10 <= k < 20:
            a.i("s_memtime s[%d:%d]", sTS + 2 * (k - 10), sTS + 2 * (k - 10) + 1)

    def srd(base, ptr, offreg, nrec):
        if offreg is None:
            a.i("s_mov_b32 s%d, s%d", base, ptr)
            a.i("s_mov_b32 s%d, s%d", base + 1, ptr + 1)
        else:
            a.i("s_add_u32 s%d, s%d, s%d", base, ptr, offreg)
            a.i("s_addc_u32 s%d, s%d, 0", base + 1, ptr + 1)
        a.i("s_mov_b32 s%d, 0x%x", base + 2, nrec)
        a.i("s_mov_b32 s%d, 0x20000", base + 3)

    def reduce_scatter(base):
        for e in range(4):
            a.i("v_permlane32_swap_b32 v%d, v%d", base + e, base + e + 4)
        for e in range(4):
            a.i("v_add_f32 v%d, v%d, v%d", base + e, base + e, base + e + 4)
        for e in range(2):
            a.i("v_permlane16_swap_b32 v%d, v%d", base + e, base + e + 2)
        for e in range(2):
            a.i("v_add_f32 v%d, v%d, v%d", base + e, base + e, base + e + 2)

    def diag_store(lab):
        if not p.diag:
            return
        ts(3)
        ts(17)
        ts(27)
        a.i("s_mov_b64 exec, 1")
        a.i("s_waitcnt vmcnt(0) lgkmcnt(0)")
        a.i("v_mov_b32 v%d, 0", vT0)
        for k in range(8):
            a.i("v_mov_b32 v%d, s%d", vK + k, sTS + (2 * k if p.diag >= 4 else k))
        a.i("s_mul_i32 s%d, s2, 8", sT1)
        a.i("s_add_u32 s%d, s%d, s%d", sT1, sT1, sWave)
        a.i("s_lshl_b32 s%d, s%d, 5", sT1, sT1)
        a.i("s_add_u32 s%d, s%d, 0x100000", sT1, sT1)
        a.i("buffer_store_dwordx4 v[%d:%d], v%d, s[%d:%d], s%d offen", vK, vK + 3, vT0, sWs, sWs + 3, sT1)
        a.i("buffer_store_dwordx4 v[%d:%d], v%d, s[%d:%d], s%d offen offset:16", vK + 4, vK + 7, vT0, sWs, sWs + 3, sT1)

    WSREC = 0x100000 if not p.diag else 0x200000
    a.i("s_cmp_ge_u32 s2, 256")
    a.i("s_cbranch_scc1 L_end")
    if p.touch:
        a.i("s_getpc_b64 s[8:9]")
        a.label("L_pc")
        a.i("v_and_b32 v%d, 63, v0", vTk)
        a.i("v_lshlrev_b32 v%d, 7, v%d", vTk, vTk)
        a.i("v_lshrrev_b32 v%d, 6, v0", vDum)
        a.i("v_lshl_add_u32 v%d, v%d, 13, v%d", vTk, vDum, vTk)
        a.i("v_cmp_gt_u32 vcc, L_code_end-L_pc, v%d", vTk)
        a.i("s_and_saveexec_b64 s[6:7], vcc")
        a.i("s_cbranch_execz L_notouch")
        a.i("global_load_dword v%d, v%d, s[8:9]", vDum, vTk)
        a.label("L_notouch")
        a.i("s_mov_b64 exec, s[6:7]")
    a.i("s_load_dwordx16 s[16:31], s[0:1], 0")
    a.i("s_load_dwordx8 s[32:39], s[0:1], 64")
    a.i("s_load_dwordx2 s[40:41], s[0:1], 96")
    ts(0)
    ts(20)
    if p.diag == 4:
        for k in range(16):
            a.i("s_mov_b32 s%d, 0", sTS + k)
    a.i("v_and_b32 v%d, 63, v0", vLane)
    a.i("v_lshrrev_b32 v%d, 6, v0", vT0)
    a.i("s_and_b32 s%d, s2, 31", sHead)
    a.i("s_lshr_b32 s%d, s2, 6", sSplit)
    a.i("s_bfe_u32 s%d, s2, 0x10005", sBr)
    a.i("v_readfirstlane_b32 s%d, v%d", sWave, vT0)
    a.i("s_and_b32 s%d, s2, 63", sP)
    a.i("s_lshl_b32 s%d, s%d, 2", sP, sP)
    a.i("s_add_u32 s%d, s%d, s%d", sP, sP, sSplit)
    a.i("s_and_b32 s%d, s%d, 3", sW4, sWave)
    a.i("v_lshrrev_b32 v%d, 4, v%d", vT0, vLane)
    a.i("v_and_b32 v%d, 15, v%d", vT0 + 1, vLane)
    a.i("s_cmp_ge_u32 s%d, 4", sWave)
    a.i("s_cbranch_scc1 L_stream")

    vm = VM(a)
    a.i("s_lshl_b32 s%d, s%d, %d", sT0, sW4, lg(RPG * 4 * 2))
    a.i("v_lshlrev_b32 v%d, %d, v%d", vT0 + 2, lg(RPG * 2), vT0)
    a.i("v_add_u32 v%d, s%d, v%d", vT0 + 2, sT0, vT0 + 2)
    a.i("v_lshlrev_b32 v%d, %d, v%d", vWqOff, lg(RPG * 8192), vT0)
    a.i("v_lshl_add_u32 v%d, v%d, 4, v%d", vWqOff, vT0 + 1, vWqOff)
    a.i("s_lshl_b32 s%d, s%d, %d", sT0, sW4, lg(RPG * 4 * 8192))
    a.i("s_lshl_b32 s%d, s%d, 8", sT1, sHead)
    a.i("s_add_u32 s%d, s%d, s%d", sQoff, sT0, sT1)
    a.i("v_lshlrev_b32 v%d, 3, v%d", vT0 + 3, vT0)
    a.i("v_lshl_add_u32 v%d, v%d, 5, v%d", vYoff, vT0 + 1, vT0 + 3)
    a.i("s_lshl_b32 s%d, s%d, 9", sT0, sW4)
    a.i("s_lshl_b32 s%d, s%d, 11", sT1, sP)
    a.i("s_add_u32 s%d, s%d, s%d", sT0, sT0, sT1)
    a.i("v_add_u32 v%d, s%d, v%d", vYoff, sT0, vYoff)
    a.i("s_waitcnt lgkmcnt(0)")
    ts(21)
    a.i("s_cmp_eq_u32 s%d, 0", sBr)
    a.i("s_cselect_b64 s[16:17], s[16:17], s[26:27]")
    a.i("s_cselect_b64 s[22:23], s[22:23], s[32:33]")
    a.i("s_cselect_b64 s[24:25], s[24:25], s[34:35]")
    if p.tags:
        a.i("s_lshl_b32 s%d, s%d, 7", sT0, sBr)
        a.i("s_load_dword s%d, s[%d:%d], s%d offset:0x90000", sTag, sWsP, sWsP + 1, sT0)
    srd(sX, sXp, None, 1024)
    srd(sWq, sWqp, None, 512 * 8192)

    sQrel = 10
    if p.rot:
        a.i("s_lshl_b32 s%d, s%d, 16", sQrel, sSplit)
        a.i("s_mov_b32 s%d, s%d", sCnt, sQoff)
        a.i("s_add_u32 s%d, s%d, s%d", sQoff, sCnt, sQrel)

    def wqload(j):
        if p.rot:
            s = j % QD
            a.i("buffer_load_dwordx4 v[%d:%d], v%d, s[%d:%d], s%d offen%s", vWq + 4 * s, vWq + 4 * s + 3, vWqOff, sWq, sWq + 3, sQoff, p.wqflags)
            vm.issue("wq%d" % j)
            if j != NWQ - 1:
                a.i("s_add_u32 s%d, s%d, 8192", sQrel, sQrel)
                a.i("s_and_b32 s%d, s%d, 0x3ffff", sQrel, sQrel)
                a.i("s_add_u32 s%d, s%d, s%d", sQoff, sCnt, sQrel)
            return
        if p.nowq:
            vm.issue("wq%d" % j)
            a.i("buffer_load_dwordx4 v[%d:%d], v%d, s[%d:%d], 0 offen", vWq + 4 * (j % QD), vWq + 4 * (j % QD) + 3, vT0 + 2, sX, sX + 3)
            return
        s = j % QD
        a.i("buffer_load_dwordx4 v[%d:%d], v%d, s[%d:%d], s%d offen%s", vWq + 4 * s, vWq + 4 * s + 3, vWqOff, sWq, sWq + 3, sQoff, p.wqflags)
        vm.issue("wq%d" % j)
        if j != NWQ - 1:
            a.i("s_add_u32 s%d, s%d, 8192", sQoff, sQoff)
    for j in range(NX):
        if p.rot:
            a.i("s_add_u32 s%d, s%d, %d", sT0, sSplit, j)
            a.i("s_and_b32 s%d, s%d, 3", sT0, sT0)
            a.i("s_lshl_b32 s%d, s%d, 4", sT0, sT0)
            a.i("buffer_load_dwordx4 v[%d:%d], v%d, s[%d:%d], s%d offen", vXr + 4 * j, vXr + 4 * j + 3, vT0 + 2, sX, sX + 3, sT0)
        else:
            a.i("buffer_load_dwordx4 v[%d:%d], v%d, s[%d:%d], 0 offen offset:%d", vXr + 4 * j, vXr + 4 * j + 3, vT0 + 2, sX, sX + 3, 16 * j)
        vm.issue("x%d" % j)
    for j in range(QD):
        wqload(j)
    nq = QD
    srd(sWs, sWsP, None, WSREC)
    a.i("s_lshl_b32 s%d, s%d, %d", sT1, sP, 4 if p.tags else 3)
    a.i("s_add_u32 s%d, s%d, 0x80000", sT1, sT1)
    a.i("v_mov_b32 v%d, s%d", vMlA, sT1)
    a.i("s_lshl_b32 s%d, s%d, 17", sT0, sHead)
    srd(sWo, sWop, sT0, 131072)
    srd(sDbg, sDbgP, None, 256)
    srd(sOut, sOutP, None, 2048)
    a.i("s_mov_b32 s%d, 0x05040100", sPlo)
    a.i("s_mov_b32 s%d, 0x07060302", sPhi)
    a.i("v_lshlrev_b32 v%d, 11, v%d", vWoOff, vT0)
    a.i("v_lshl_add_u32 v%d, v%d, 4, v%d", vWoOff, vT0 + 1, vWoOff)
    a.i("s_lshl_b32 s%d, s%d, 8", sT0, sW4)
    a.i("v_add_u32 v%d, s%d, v%d", vWoOff, sT0, vWoOff)
    vA = vAcc
    for e in range(8):
        a.i("v_mov_b32 v%d, 0", vA + e)
    vm.maybe_wait("x%d" % (NX - 1))
    for m in range(NWQ // 2):
        vm.wait("wq%d" % (2 * m + 1))
        if m == 0:
            ts(22)
        if m == 8:
            ts(23)
        s0 = vWq + 4 * ((2 * m) % QD)
        s1 = vWq + 4 * ((2 * m + 1) % QD)
        for d in range(4):
            a.i("v_perm_b32 v%d, v%d, v%d, s%d", vT0 + 2 * (d % 2), s1 + d, s0 + d, sPlo)
            a.i("v_perm_b32 v%d, v%d, v%d, s%d", vT0 + 2 * (d % 2) + 1, s1 + d, s0 + d, sPhi)
            a.i("v_dot2_f32_bf16 v%d, v%d, v%d, v%d", vA + 2 * d, vT0 + 2 * (d % 2), vXr + m, vA + 2 * d)
            a.i("v_dot2_f32_bf16 v%d, v%d, v%d, v%d", vA + 2 * d + 1, vT0 + 2 * (d % 2) + 1, vXr + m, vA + 2 * d + 1)
        for _ in range(2):
            if nq < NWQ:
                wqload(nq); nq += 1
    ts(24)
    reduce_scatter(vA)
    a.i("v_lshrrev_b32 v%d, 4, v%d", vT0, vLane)
    a.i("v_and_b32 v%d, 15, v%d", vT0 + 1, vLane)
    a.i("v_lshlrev_b32 v%d, 3, v%d", vT0, vT0)
    a.i("v_lshl_add_u32 v%d, v%d, 5, v%d", vT0, vT0 + 1, vT0)
    a.i("s_lshl_b32 s%d, s%d, 9", sT0, sW4)
    a.i("s_add_u32 s%d, s%d, %d", sT0, sT0, L_QP)
    a.i("v_add_u32 v%d, s%d, v%d", vT0, sT0, vT0)
    a.i("ds_write_b64 v%d, v[%d:%d]", vT0, vA, vA + 1)
    if p.zearly:
        a.i("v_mov_b32 v%d, %d", vT0 + 2, L_ZF)
        a.i("v_mov_b32 v%d, 0", vT0 + 3)
        a.i("ds_write_b32 v%d, v%d", vT0 + 2, vT0 + 3)
    a.i("s_waitcnt lgkmcnt(0)")
    ts(25)
    a.i("s_barrier")
    ts(1)
    ts(26)
    a.i("s_lshl_b32 s%d, s%d, 7", sC, sBr)
    if p.tags:
        a.i("s_mul_i32 s%d, s%d, 0x9E3779B1", sTag, sTag)
        a.i("s_add_u32 s%d, s%d, 0x7F4A7C15", sTag, sTag)
    if not p.zearly and not p.tags:
        a.i("s_cmp_lg_u32 s%d, 0", sWave)
        a.i("s_cbranch_scc1 L_noz")
        for e in range(4):
            a.i("v_mov_b32 v%d, 0", vT0 + e)
        a.i("v_lshlrev_b32 v%d, 5, v%d", vT0 + 4, vLane)
        a.i("s_lshl_b32 s%d, s%d, 11", sT1, sP)
        if not p.nozs:
            a.i("buffer_store_dwordx4 v[%d:%d], v%d, s[%d:%d], s%d offen sc1", vT0, vT0 + 3, vT0 + 4, sWs, sWs + 3, sT1)
            a.i("buffer_store_dwordx4 v[%d:%d], v%d, s[%d:%d], s%d offen offset:16 sc1", vT0, vT0 + 3, vT0 + 4, sWs, sWs + 3, sT1)
        a.i("v_mov_b32 v%d, 0", vT0 + 6)
        a.i("v_mov_b32 v%d, 1", vT0 + 7)
        a.i("s_mov_b64 exec, 1")
        if not p.nozs:
            a.i("buffer_store_dwordx2 v[%d:%d], v%d, s[%d:%d], 0 offen sc1", vT0, vT0 + 1, vMlA, sWs, sWs + 3)
        a.i("s_waitcnt vmcnt(0)")
        if not p.noz:
            a.i("buffer_atomic_add v%d, v%d, s[%d:%d], s%d offen sc1", vT0 + 7, vT0 + 6, sDbg, sDbg + 3, sC)
        a.i("s_mov_b64 exec, -1")
        a.label("L_noz")
    a.i("s_mov_b32 s%d, 0", sCur)
    NP = NWO // 2

    def wo_issue(m):
        b = vW + 8 * m
        if p.nowo:
            return
        a.i("buffer_load_dwordx4 v[%d:%d], v%d, s[%d:%d], s%d offen%s", b, b + 3, vWoOff, sWo, sWo + 3, sCur, p.woflags)
        a.i("buffer_load_dwordx4 v[%d:%d], v%d, s[%d:%d], s%d offen offset:1024%s", b + 4, b + 7, vWoOff, sWo, sWo + 3, sCur, p.woflags)
        a.i("s_add_u32 s%d, s%d, 8192", sCur, sCur)
    for m in range(min(p.PW, NP)):
        wo_issue(m)
    for m in range(NP):
        b = vW + 8 * m
        inflight = min(NP, m + p.PW) - (m + 1)
        a.i("s_waitcnt vmcnt(%d)", 2 * inflight)
        for d in range(4):
            a.i("v_perm_b32 v%d, v%d, v%d, s%d", vT0, b + 4 + d, b + d, sPlo)
            a.i("v_perm_b32 v%d, v%d, v%d, s%d", b + 4 + d, b + 4 + d, b + d, sPhi)
            a.i("v_mov_b32 v%d, v%d", b + d, vT0)
        if m + p.PW < NP:
            wo_issue(m + p.PW)
    if p.zearly and not p.noz:
        a.i("s_cmp_lg_u32 s%d, 0", sWave)
        a.i("s_cbranch_scc1 L_noz")
        a.i("v_mov_b32 v%d, %d", vT0 + 2, L_ZF)
        a.label("L_zfw")
        a.i("ds_read_b32 v%d, v%d", vT0 + 3, vT0 + 2)
        a.i("s_waitcnt lgkmcnt(0)")
        a.i("v_readfirstlane_b32 s%d, v%d", sT0, vT0 + 3)
        a.i("s_cmp_eq_u32 s%d, 0", sT0)
        a.i("s_cbranch_scc1 L_zfw")
        a.i("v_mov_b32 v%d, 0", vT0 + 6)
        a.i("v_mov_b32 v%d, 1", vT0 + 7)
        a.i("s_mov_b64 exec, 1")
        a.i("buffer_atomic_add v%d, v%d, s[%d:%d], s%d offen sc1", vT0 + 7, vT0 + 6, sDbg, sDbg + 3, sC)
        a.i("s_mov_b64 exec, -1")
        a.label("L_noz")
    if p.touchout:
        a.i("v_mov_b32 v%d, 0", vT0 + 2)
        a.i("s_lshl_b32 s%d, s%d, 10", sT0, sBr)
        a.i("s_mov_b64 exec, 1")
        a.i("buffer_load_dword v%d, v%d, s[%d:%d], s%d offen", vDum, vT0 + 2, sOut, sOut + 3, sT0)
        a.i("s_mov_b64 exec, -1")
        a.i("s_waitcnt vmcnt(0)")
    a.i("v_lshlrev_b32 v%d, 3, v%d", vOpA, vLane)
    a.i("v_add_u32 v%d, %d, v%d", vOpA, L_OP, vOpA)
    a.i("v_mov_b32 v%d, %d", vT0 + 7, L_ML)
    a.i("v_mov_b32 v%d, 0", vT0 + 6)
    a.i("v_mov_b32 v%d, 0x10000", vTk)
    for e in range(8):
        a.i("v_mov_b32 v%d, 0", vAcc + e)
    ts(2)
    a.i("s_barrier")
    ts(10)
    a.i("s_cmp_lg_u32 s%d, 0", sWave)
    a.i("s_cbranch_scc1 L_notk")
    if not p.fixfin:
        a.i("s_mov_b64 exec, 1")
        a.i("buffer_atomic_add v%d, v%d, s[%d:%d], s%d offen sc0 sc1", vTk, vT0 + 6, sDbg, sDbg + 3, sC)
        a.i("s_mov_b64 exec, -1")
    a.label("L_notk")
    for w in range(4):
        a.i("ds_read_b64 v[%d:%d], v%d offset:%d", vS + 2 * w, vS + 2 * w + 1, vOpA, 512 * w)
    a.i("ds_read_b128 v[%d:%d], v%d", vT0, vT0 + 3, vT0 + 7)
    a.i("ds_read_b128 v[%d:%d], v%d offset:16", vQ, vQ + 3, vT0 + 7)
    a.i("s_waitcnt lgkmcnt(0)")
    mc = [vT0, vT0 + 2, vQ, vQ + 2]
    a.i("v_max3_f32 v%d, v%d, v%d, v%d", vM, mc[0], mc[1], mc[2])
    a.i("v_max_f32 v%d, v%d, v%d", vM, vM, mc[3])
    for w in range(4):
        a.i("v_sub_f32 v%d, v%d, v%d", mc[w], mc[w], vM)
    for w in range(4):
        a.i("v_exp_f32 v%d, v%d", mc[w], mc[w])
    a.i("v_mul_f32 v%d, v%d, v%d", vL, mc[0], mc[0] + 1)
    for w in range(1, 4):
        a.i("v_fmac_f32 v%d, v%d, v%d", vL, mc[w], mc[w] + 1)
    a.i("v_pk_mul_f32 v[%d:%d], v[%d:%d], v[%d:%d] op_sel_hi:[1,0]", vS, vS + 1, vS, vS + 1, mc[0], mc[0] + 1)
    for w in range(1, 4):
        a.i("v_pk_fma_f32 v[%d:%d], v[%d:%d], v[%d:%d], v[%d:%d] op_sel_hi:[1,0,1]", vS, vS + 1, vS + 2 * w, vS + 2 * w + 1, mc[w], mc[w] + 1, vS, vS + 1)
    a.i("v_cvt_pk_bf16_f32 v%d, v%d, v%d", vS, vS, vS + 1)
    ts(11)
    a(".p2align 3")
    for m in range(16):
        t = vT0 + (m % 2)
        a.i("v_mov_b32_dpp v%d, v%d row_newbcast:%d row_mask:0xf bank_mask:0xf", t, vS, m)
        for d in range(4):
            a.i("v_dot2_f32_bf16 v%d, v%d, v%d, v%d", vAcc + 2 * d, vW + 8 * m + d, t, vAcc + 2 * d)
            a.i("v_dot2_f32_bf16 v%d, v%d, v%d, v%d", vAcc + 2 * d + 1, vW + 8 * m + 4 + d, t, vAcc + 2 * d + 1)
    ts(12)
    reduce_scatter(vAcc)
    if p.tags:
        a.i("v_cvt_pk_bf16_f32 v%d, v%d, v%d", vAcc, vAcc, vAcc + 1)
        a.i("v_mov_b32 v%d, s%d", vAcc + 1, sTag)
    else:
        a.i("v_max_u32 v%d, 1, v%d", vAcc, vAcc)
        a.i("v_max_u32 v%d, 1, v%d", vAcc + 1, vAcc + 1)
    a.i("buffer_store_dwordx2 v[%d:%d], v%d, s[%d:%d], 0 offen sc1", vAcc, vAcc + 1, vYoff, sWs, sWs + 3)
    a.i("s_cmp_lg_u32 s%d, 0", sWave)
    a.i("s_cbranch_scc1 L_done")
    if p.tags:
        a.i("v_mov_b32 v%d, v%d", vT0, vM)
        a.i("v_mov_b32 v%d, s%d", vT0 + 1, sTag)
        a.i("v_mov_b32 v%d, v%d", vT0 + 2, vL)
        a.i("v_mov_b32 v%d, s%d", vT0 + 3, sTag)
        a.i("s_mov_b64 exec, 1")
        a.i("buffer_store_dwordx4 v[%d:%d], v%d, s[%d:%d], 0 offen sc1", vT0, vT0 + 3, vMlA, sWs, sWs + 3)
        a.i("s_mov_b64 exec, -1")
        a.i("s_nop 1")
    else:
        a.i("v_max_u32 v%d, 1, v%d", vT0 + 2, vM)
        a.i("v_max_u32 v%d, 1, v%d", vT0 + 3, vL)
        a.i("s_mov_b64 exec, 1")
        a.i("buffer_store_dwordx2 v[%d:%d], v%d, s[%d:%d], 0 offen sc1", vT0 + 2, vT0 + 3, vMlA, sWs, sWs + 3)
        a.i("s_mov_b64 exec, -1")
    ts(13)
    a.i("v_lshrrev_b32 v%d, 2, v%d", vT0, vLane)
    a.i("v_and_b32 v%d, 3, v%d", vT0 + 1, vLane)
    a.i("v_lshlrev_b32 v%d, 11, v%d", vYoff, vT0)
    a.i("v_lshl_add_u32 v%d, v%d, 4, v%d", vYoff, vT0 + 1, vYoff)
    a.i("v_lshlrev_b32 v%d, %d, v%d", vMlA, 4 if p.tags else 3, vT0)
    if p.fixfin:
        a.i("s_cmp_lg_u32 s%d, 3", sSplit)
        a.i("s_cbranch_scc1 L_done")
        a.i("s_mov_b32 s%d, s%d", sNext, sHead)
    else:
        a.i("s_waitcnt vmcnt(2)")
        a.i("v_readfirstlane_b32 s%d, v%d", sTk, vTk)
        a.i("s_lshr_b32 s%d, s%d, 16", sT0, sTk)
        a.i("s_cmp_lt_u32 s%d, %d", sT0, 128 - F)
        a.i("s_cbranch_scc1 L_done")
        a.i("s_sub_u32 s%d, s%d, %d", sNext, sT0, 128 - F)
    if not p.noz and not p.fixfin and not p.tags:
        a.i("s_and_b32 s%d, s%d, 0xffff", sT0, sTk)
        a.i("s_cmp_eq_u32 s%d, 128", sT0)
        a.i("s_cbranch_scc1 L_zok")
        a.i("s_mov_b32 s%d, 0x10000", sSpin)
        a.label("L_zspin")
        a.i("s_sub_u32 s%d, s%d, 1", sSpin, sSpin)
        a.i("s_cmp_eq_u32 s%d, 0", sSpin)
        a.i("s_cbranch_scc1 L_zok")
        a.i("s_mov_b64 exec, 1")
        a.i("buffer_load_dword v%d, v%d, s[%d:%d], s%d offen sc1", vTk, vT0 + 6, sDbg, sDbg + 3, sC)
        a.i("s_waitcnt vmcnt(0)")
        a.i("v_readfirstlane_b32 s%d, v%d", sTk, vTk)
        a.i("s_mov_b64 exec, -1")
        a.i("s_and_b32 s%d, s%d, 0xffff", sT0, sTk)
        a.i("s_cmp_eq_u32 s%d, 128", sT0)
        a.i("s_cbranch_scc0 L_zspin")
    a.label("L_zok")
    ts(14)
    vY = vW
    vMl = vW + 32
    a.i("s_lshl_b32 s%d, s%d, 18", sT0, sBr)
    a.i("s_lshl_b32 s%d, s%d, 6", sT1, sNext)
    a.i("s_add_u32 s%d, s%d, s%d", sQoff, sT0, sT1)
    a.i("s_lshl_b32 s%d, s%d, %d", sT0, sBr, 11 if p.tags else 10)
    a.i("s_add_u32 s%d, s%d, 0x80000", sCnt, sT0)
    if p.mlpoll:
        a.i("v_lshlrev_b32 v%d, 4, v%d", vT0 + 1, vLane)
        a.i("s_mov_b32 s%d, 0x10000", sSpin)
        a.label("L_poll1")
        a.i("buffer_load_dwordx4 v[%d:%d], v%d, s[%d:%d], s%d offen sc1", vMl, vMl + 3, vT0 + 1, sWs, sWs + 3, sCnt)
        a.i("s_waitcnt vmcnt(0)")
        a.i("v_min3_u32 v%d, v%d, v%d, v%d", vT0, vMl, vMl + 1, vMl + 2)
        a.i("v_min_u32 v%d, v%d, v%d", vT0, vT0, vMl + 3)
        a.i("v_cmp_eq_u32 vcc, 0, v%d", vT0)
        a.i("s_sub_u32 s%d, s%d, 1", sSpin, sSpin)
        a.i("s_cbranch_scc1 L_poll1ok")
        a.i("s_cbranch_vccz L_poll1ok")
        a.i("s_sleep %d", p.mlpoll)
        a.i("s_branch L_poll1")
        a.label("L_poll1ok")
    if p.tags:
        vMl = vW + 32
        vLo, vHi = vT0, vT0 + 1
        a.i("s_mov_b32 s%d, 0x10000", sSpin)
        a.label("L_poll")
        a.i("s_mov_b32 s%d, s%d", sCur, sQoff)
        for j in range(8):
            a.i("buffer_load_dwordx4 v[%d:%d], v%d, s[%d:%d], s%d offen offset:%d sc1", vMl + 4 * j, vMl + 4 * j + 3, vMlA, sWs, sWs + 3, sCnt, 256 * j)
        for j in range(8):
            a.i("buffer_load_dwordx4 v[%d:%d], v%d, s[%d:%d], s%d offen sc1", vY + 4 * j, vY + 4 * j + 3, vYoff, sWs, sWs + 3, sCur)
            if j != 7:
                a.i("s_add_u32 s%d, s%d, 32768", sCur, sCur)
        a.i("v_mov_b32 v%d, s%d", vLo, sTag)
        a.i("v_mov_b32 v%d, s%d", vHi, sTag)
        a.i("s_waitcnt vmcnt(8)")
        for j in range(8):
            a.i("v_min3_u32 v%d, v%d, v%d, v%d", vLo, vLo, vMl + 4 * j + 1, vMl + 4 * j + 3)
            a.i("v_max3_u32 v%d, v%d, v%d, v%d", vHi, vHi, vMl + 4 * j + 1, vMl + 4 * j + 3)
        for j in range(8):
            a.i("v_max_f32_dpp v%d, v%d, v%d row_ror:4 row_mask:0xf bank_mask:0xf", vS + j, vMl + 4 * j, vMl + 4 * j)
        for j in range(8):
            a.i("v_max_f32_dpp v%d, v%d, v%d row_ror:8 row_mask:0xf bank_mask:0xf", vS + j, vS + j, vS + j)
        for j in range(8):
            a.i("v_sub_f32 v%d, v%d, v%d", vS + j, vMl + 4 * j, vS + j)
        for j in range(8):
            a.i("v_exp_f32 v%d, v%d", vS + j, vS + j)
        for j in range(8):
            a.i("v_mul_f32 v%d, v%d, v%d", vMl + 4 * j + 2, vMl + 4 * j + 2, vS + j)
        for r in (4, 8):
            for j in range(8):
                a.i("v_add_f32_dpp v%d, v%d, v%d row_ror:%d row_mask:0xf bank_mask:0xf", vMl + 4 * j + 2, vMl + 4 * j + 2, vMl + 4 * j + 2, r)
        for j in range(8):
            a.i("v_rcp_f32 v%d, v%d", vMl + 4 * j + 2, vMl + 4 * j + 2)
        for j in range(8):
            a.i("v_mul_f32 v%d, v%d, v%d", vS + j, vS + j, vMl + 4 * j + 2)
        a.i("s_waitcnt vmcnt(0)")
        for j in range(8):
            a.i("v_min3_u32 v%d, v%d, v%d, v%d", vLo, vLo, vY + 4 * j + 1, vY + 4 * j + 3)
            a.i("v_max3_u32 v%d, v%d, v%d, v%d", vHi, vHi, vY + 4 * j + 1, vY + 4 * j + 3)
        a.i("v_cmp_ne_u32 vcc, v%d, v%d", vLo, vHi)
        a.i("s_sub_u32 s%d, s%d, 1", sSpin, sSpin)
        a.i("s_cbranch_scc1 L_pollok")
        a.i("s_cbranch_vccnz L_poll")
        a.label("L_pollok")
        ts(15)
        a.i("s_cmp_lg_u32 s%d, 0", sNext)
        a.i("s_cbranch_scc1 L_noep")
        a.i("s_lshl_b32 s%d, s%d, 7", sT0, sBr)
        a.i("s_add_u32 s%d, s%d, 0x90000", sT0, sT0)
        a.i("v_mov_b32 v%d, 0", vT0 + 2)
        a.i("v_mov_b32 v%d, s%d", vT0 + 3, sTag)
        a.i("s_mov_b64 exec, 1")
        a.i("buffer_store_dword v%d, v%d, s[%d:%d], s%d offen sc1", vT0 + 3, vT0 + 2, sWs, sWs + 3, sT0)
        a.i("s_mov_b64 exec, -1")
        a.label("L_noep")
        for j in range(8):
            y = vY + 4 * j
            a.i("v_lshlrev_b32 v%d, 16, v%d", vT0 + 4, y)
            a.i("v_and_b32 v%d, 0xffff0000, v%d", vT0 + 5, y)
            a.i("v_lshlrev_b32 v%d, 16, v%d", vT0 + 6, y + 2)
            a.i("v_and_b32 v%d, 0xffff0000, v%d", vT0 + 7, y + 2)
            for e in range(4):
                if j == 0:
                    a.i("v_mul_f32 v%d, v%d, v%d", vAcc + e, vS, vT0 + 4 + e)
                else:
                    a.i("v_fmac_f32 v%d, v%d, v%d", vAcc + e, vS + j, vT0 + 4 + e)
    else:
        a.i("s_mov_b32 s%d, 0x10000", sSpin)
        a.label("L_poll")
        a.i("s_mov_b32 s%d, s%d", sCur, sQoff)
        for j in range(8):
            a.i("buffer_load_dwordx2 v[%d:%d], v%d, s[%d:%d], s%d offen offset:%d sc1", vMl + 2 * j, vMl + 2 * j + 1, vMlA, sWs, sWs + 3, sCnt, 128 * j)
        for j in range(8):
            a.i("buffer_load_dwordx4 v[%d:%d], v%d, s[%d:%d], s%d offen sc1", vY + 4 * j, vY + 4 * j + 3, vYoff, sWs, sWs + 3, sCur)
            if j != 7:
                a.i("s_add_u32 s%d, s%d, 32768", sCur, sCur)
        a.i("s_waitcnt vmcnt(8)")
        a.i("v_min3_u32 v%d, v%d, v%d, v%d", vT0, vMl, vMl + 1, vMl + 2)
        for k in range(3, 15, 2):
            a.i("v_min3_u32 v%d, v%d, v%d, v%d", vT0, vT0, vMl + k, vMl + k + 1)
        a.i("v_min_u32 v%d, v%d, v%d", vT0, vT0, vMl + 15)
        if p.fastpoll:
            a.i("v_cmp_eq_u32 vcc, 0, v%d", vT0)
            a.i("s_sub_u32 s%d, s%d, 1", sSpin, sSpin)
            a.i("s_cbranch_scc1 L_mlok")
            a.i("s_cbranch_vccnz L_poll")
            a.label("L_mlok")
        for j in range(8):
            a.i("v_max_f32_dpp v%d, v%d, v%d row_ror:4 row_mask:0xf bank_mask:0xf", vS + j, vMl + 2 * j, vMl + 2 * j)
        for j in range(8):
            a.i("v_max_f32_dpp v%d, v%d, v%d row_ror:8 row_mask:0xf bank_mask:0xf", vS + j, vS + j, vS + j)
        for j in range(8):
            a.i("v_sub_f32 v%d, v%d, v%d", vS + j, vMl + 2 * j, vS + j)
        for j in range(8):
            a.i("v_exp_f32 v%d, v%d", vS + j, vS + j)
        for j in range(8):
            a.i("v_mul_f32 v%d, v%d, v%d", vMl + 2 * j + 1, vMl + 2 * j + 1, vS + j)
        for j in range(8):
            a.i("v_add_f32_dpp v%d, v%d, v%d row_ror:4 row_mask:0xf bank_mask:0xf", vMl + 2 * j + 1, vMl + 2 * j + 1, vMl + 2 * j + 1)
        for j in range(8):
            a.i("v_add_f32_dpp v%d, v%d, v%d row_ror:8 row_mask:0xf bank_mask:0xf", vMl + 2 * j + 1, vMl + 2 * j + 1, vMl + 2 * j + 1)
        for j in range(8):
            a.i("v_rcp_f32 v%d, v%d", vMl + 2 * j + 1, vMl + 2 * j + 1)
        for j in range(8):
            a.i("v_mul_f32 v%d, v%d, v%d", vS + j, vS + j, vMl + 2 * j + 1)
        a.i("s_waitcnt vmcnt(0)")
        for k in range(0, 32, 2):
            a.i("v_min3_u32 v%d, v%d, v%d, v%d", vT0, vT0, vY + k, vY + k + 1)
        a.i("v_cmp_eq_u32 vcc, 0, v%d", vT0)
        a.i("s_sub_u32 s%d, s%d, 1", sSpin, sSpin)
        a.i("s_cbranch_scc1 L_pollok")
        a.i("s_cbranch_vccnz L_poll")
        a.label("L_pollok")
        ts(15)
        for e in range(4):
            a.i("v_mul_f32 v%d, v%d, v%d", vAcc + e, vS, vY + e)
        for j in range(1, 8):
            for e in range(4):
                a.i("v_fmac_f32 v%d, v%d, v%d", vAcc + e, vS + j, vY + 4 * j + e)
    for r in (4, 8):
        for e in range(4):
            a.i("v_add_f32_dpp v%d, v%d, v%d row_ror:%d row_mask:0xf bank_mask:0xf", vAcc + e, vAcc + e, vAcc + e, r)
    for e in range(2):
        a.i("v_permlane32_swap_b32 v%d, v%d", vAcc + e, vAcc + 2 + e)
    for e in range(2):
        a.i("v_add_f32 v%d, v%d, v%d", vAcc + e, vAcc + e, vAcc + 2 + e)
    a.i("v_permlane16_swap_b32 v%d, v%d", vAcc, vAcc + 1)
    a.i("v_add_f32 v%d, v%d, v%d", vAcc, vAcc, vAcc + 1)
    a.i("v_lshrrev_b32 v%d, 4, v%d", vT0, vLane)
    a.i("v_and_b32 v%d, 3, v%d", vT0 + 1, vLane)
    a.i("v_lshl_add_u32 v%d, v%d, 2, v%d", vT0, vT0 + 1, vT0)
    a.i("v_lshlrev_b32 v%d, 1, v%d", vT0, vT0)
    a.i("v_cvt_pk_bf16_f32 v%d, v%d, v%d", vAcc, vAcc, vAcc)
    a.i("s_lshl_b32 s%d, s%d, 10", sT0, sBr)
    a.i("s_lshl_b32 s%d, s%d, 5", sT1, sNext)
    a.i("s_add_u32 s%d, s%d, s%d", sT0, sT0, sT1)
    a.i("s_mov_b32 exec_lo, 0x000f000f")
    a.i("s_mov_b32 exec_hi, 0x000f000f")
    a.i("buffer_store_short v%d, v%d, s[%d:%d], s%d offen", vAcc, vT0, sOut, sOut + 3, sT0)
    if p.diag == 4:
        a.i("s_waitcnt vmcnt(0)")
    ts(16)
    a.label("L_done")
    diag_store("h")
    a.i("s_endpgm")

    a.label("L_stream")
    a.i("s_lshl_b32 s%d, s%d, %d", sT0, sW4, lg(T * 1024))
    stride = NS * T * 1024
    a.i("v_lshlrev_b32 v%d, 4, v%d", vOffKV, vLane)
    a.i("v_add_u32 v%d, s%d, v%d", vOffKV, sT0, vOffKV)
    for j in range(1, nOff):
        a.i("v_add_u32 v%d, %d, v%d", vOffKV + j, 4096 * j, vOffKV)
    a.i("s_lshl_b32 s%d, s%d, 22", sT0, sHead)
    a.i("s_lshl_b32 s%d, s%d, 20", sT1, sSplit)
    a.i("s_add_u32 s%d, s%d, s%d", sCur, sT0, sT1)
    a.i("s_waitcnt lgkmcnt(0)")
    a.i("s_cmp_eq_u32 s%d, 0", sBr)
    a.i("s_cselect_b64 s[18:19], s[18:19], s[28:29]")
    a.i("s_cselect_b64 s[20:21], s[20:21], s[30:31]")
    srd(sK, sKp, sCur, 1 << 20)
    srd(sV, sVp, sCur, 1 << 20)
    if p.zearly:
        srd(sWs, sWsP, None, WSREC)
        a.i("s_cmp_lg_u32 s%d, 4", sWave)
        a.i("s_cbranch_scc1 L_nozs")
        for e in range(4):
            a.i("v_mov_b32 v%d, 0", vT0 + 4 + e)
        a.i("v_lshlrev_b32 v%d, 5, v%d", vT0 + 2, vLane)
        a.i("s_lshl_b32 s%d, s%d, 11", sT1, sP)
        a.i("buffer_store_dwordx4 v[%d:%d], v%d, s[%d:%d], s%d offen sc1", vT0 + 4, vT0 + 7, vT0 + 2, sWs, sWs + 3, sT1)
        a.i("buffer_store_dwordx4 v[%d:%d], v%d, s[%d:%d], s%d offen offset:16 sc1", vT0 + 4, vT0 + 7, vT0 + 2, sWs, sWs + 3, sT1)
        a.i("s_lshl_b32 s%d, s%d, 3", sT1, sP)
        a.i("s_add_u32 s%d, s%d, 0x80000", sT1, sT1)
        a.i("v_mov_b32 v%d, 0", vT0 + 2)
        a.i("s_mov_b64 exec, 1")
        a.i("buffer_store_dwordx2 v[%d:%d], v%d, s[%d:%d], s%d offen sc1", vT0 + 4, vT0 + 5, vT0 + 2, sWs, sWs + 3, sT1)
        a.i("s_mov_b64 exec, -1")
        a.label("L_nozs")

    def kvload(j, soff, base=None):
        which, i = ("K", j) if j < T else ("V", j - T)
        srdb = sK if which == "K" else sV
        reg = (vK if base is None else base) + 4 * j
        a.i("buffer_load_dwordx4 v[%d:%d], v%d, s[%d:%d], %s offen offset:%d%s", reg, reg + 3,
            vOffKV + i // 4, srdb, srdb + 3, soff, (i % 4) * 1024, kvf)
    MASK = (1 << 20) - 1
    if p.stagger:
        a.i("s_mul_i32 s%d, s2, %d", sCur, p.stagger * stride)
        a.i("s_and_b32 s%d, s%d, 0x%x", sCur, sCur, MASK)
    else:
        a.i("s_mov_b32 s%d, 0", sCur)
    a.i("s_add_u32 s%d, s%d, %d", sNext, sCur, stride)
    a.i("s_and_b32 s%d, s%d, 0x%x", sNext, sNext, MASK)
    if p.single:
        for j in range(N):
            kvload(j, "s%d" % sCur)
    elif p.pre:
        seq = [(j, sCur, vB) for j in range(R)] + [(j, sNext, None) for j in range(N)]
        for k, (j, so, base) in enumerate(seq):
            if k >= p.pre:
                a.i("s_waitcnt vmcnt(%d)", p.pre - 1)
            kvload(j, "s%d" % so, base)
    else:
        for j in range(R):
            kvload(j, "s%d" % sCur)
        if p.pf:
            assert T == 4
            a.i("s_lshl_b32 s%d, s%d, 12", sT0, sW4)
            a.i("v_lshlrev_b32 v%d, 6, v%d", vTk, vLane)
            a.i("v_add_u32 v%d, s%d, v%d", vTk, sT0, vTk)
            a.i("s_mov_b32 s%d, s%d", sT1, sNext)
            for k in range(p.pf):
                a.i("buffer_load_dword v%d, v%d, s[%d:%d], s%d offen%s", vDum, vTk, sK, sK + 3, sT1, p.pfflags)
                a.i("buffer_load_dword v%d, v%d, s[%d:%d], s%d offen%s", vDum, vTk, sV, sV + 3, sT1, p.pfflags)
                if k + 1 < p.pf:
                    a.i("s_add_u32 s%d, s%d, %d", sT1, sT1, stride)
                    a.i("s_and_b32 s%d, s%d, 0x%x", sT1, sT1, MASK)
    if p.diag:
        srd(sWs, sWsP, None, WSREC)
    a.i("s_mov_b32 s%d, %s", sC, f32hex(CLOG))
    a.i("s_lshl_b32 s%d, s%d, 9", sT0, sW4)
    a.i("s_add_u32 s%d, s%d, %d", sT0, sT0, L_OP)
    a.i("v_lshlrev_b32 v%d, 3, v%d", vOpA, vLane)
    a.i("v_add_u32 v%d, s%d, v%d", vOpA, sT0, vOpA)
    a.i("s_lshl_b32 s%d, s%d, 3", sT0, sW4)
    a.i("s_add_u32 s%d, s%d, %d", sT0, sT0, L_ML)
    a.i("v_mov_b32 v%d, s%d", vMlA, sT0)
    a.i("v_lshlrev_b32 v%d, 5, v%d", vT0 + 1, vT0 + 1)
    a.i("v_add_u32 v%d, %d, v%d", vQP, L_QP, vT0 + 1)
    if p.single:
        a.i("s_mov_b32 s79, s%d", sNext)
    if p.single and p.dry:
        a.i("s_mov_b32 s10, 1")
        a.i("s_mov_b64 exec, 0")
        a.i("s_branch L_loop")
        a.label("L_dryret")
        a.i("s_mov_b64 exec, -1")
        a.i("s_mov_b32 s10, 0")
    a.i("s_barrier")
    a.i("v_mov_b32 v%d, v%d", vT0 + 1, vQP)
    for w in range(4):
        a.i("ds_read_b128 v[%d:%d], v%d offset:%d", vQP + 8 * w, vQP + 8 * w + 3, vT0 + 1, w * 512)
        a.i("ds_read_b128 v[%d:%d], v%d offset:%d", vQP + 8 * w + 4, vQP + 8 * w + 7, vT0 + 1, w * 512 + 16)
    for e in range(8):
        a.i("v_mov_b32 v%d, 0", vAcc + e)
    a.i("v_mov_b32 v%d, 0xff800000", vMc)
    a.i("v_mov_b32 v%d, 0xff800000", vM)
    a.i("v_mov_b32 v%d, 0", vL)
    a.i("s_mov_b32 s%d, %d", sCnt, NIT if p.single else NIT - 2)
    a.i("s_waitcnt lgkmcnt(0)")
    for d in range(4):
        a.i("v_pk_add_f32 v[%d:%d], v[%d:%d], v[%d:%d]", vQP + 2 * d, vQP + 2 * d + 1, vQP + 2 * d, vQP + 2 * d + 1, vQP + 8 + 2 * d, vQP + 9 + 2 * d)
        a.i("v_pk_add_f32 v[%d:%d], v[%d:%d], v[%d:%d]", vQP + 16 + 2 * d, vQP + 17 + 2 * d, vQP + 16 + 2 * d, vQP + 17 + 2 * d, vQP + 24 + 2 * d, vQP + 25 + 2 * d)
    for d in range(4):
        a.i("v_pk_add_f32 v[%d:%d], v[%d:%d], v[%d:%d]", vQP + 2 * d, vQP + 2 * d + 1, vQP + 2 * d, vQP + 2 * d + 1, vQP + 16 + 2 * d, vQP + 17 + 2 * d)
    for d in range(4):
        a.i("v_cvt_pk_bf16_f32 v%d, v%d, v%d", vQ + d, vQP + 2 * d, vQP + 2 * d + 1)
    ts(1)

    def body(kind):
        bK, bV = (vB, vB + 4 * T) if kind == "pre" else (vK, vV)

        def wait(j):
            if kind == "pre":
                if j >= R - N + (N - min(N, p.pre)) or True:
                    n = None
                a.i("s_waitcnt vmcnt(%d)", (R - 1 - j) + N)
                return
            if kind == "first":
                n = (R - 1 - j) + max(0, j - (R - N)) + 2 * p.pf
            elif kind == "mid":
                n = N - 1
            else:
                n = min(R - 1, j + N - 1) - j
            a.i("s_waitcnt vmcnt(%d)", n)

        def issue(j):
            if kind == "pre":
                return
            k = j + N
            if k < R:
                if kind != "first":
                    kvload(k, "s%d" % sCur)
            elif kind != "last":
                kvload(k - R, "s%d" % sNext)
        for i in range(T):
            wait(i)
            k = bK + 4 * i
            a.i("v_dot2_f32_bf16 v%d, v%d, v%d, 0", vS + i, k, vQ)
            for d in range(1, 4):
                a.i("v_dot2_f32_bf16 v%d, v%d, v%d, v%d", vS + i, k + d, vQ + d, vS + i)
            issue(i)
        for r in (8, 4, 2, 1):
            for i in range(T):
                a.i("v_add_f32_dpp v%d, v%d, v%d row_ror:%d row_mask:0xf bank_mask:0xf", vS + i, vS + i, vS + i, r)
        a.i("v_max3_f32 v%d, v%d, v%d, v%d", vM, vM, vS, vS + 1)
        for i in range(2, T, 2):
            a.i("v_max3_f32 v%d, v%d, v%d, v%d", vM, vM, vS + i, vS + i + 1)
        a.i("v_mul_f32 v%d, s%d, v%d", vT0, sC, vM)
        a.i("v_sub_f32 v%d, v%d, v%d", vAl, vMc, vT0)
        a.i("v_mov_b32 v%d, v%d", vMc, vT0)
        a.i("v_exp_f32 v%d, v%d", vAl, vAl)
        for i in range(T):
            a.i("v_fma_f32 v%d, v%d, s%d, -v%d", vS + i, vS + i, sC, vMc)
        for i in range(T):
            a.i("v_exp_f32 v%d, v%d", vS + i, vS + i)
        a.i("v_mul_f32 v%d, v%d, v%d", vL, vL, vAl)
        for d in range(4):
            a.i("v_pk_mul_f32 v[%d:%d], v[%d:%d], v[%d:%d] op_sel:[0,%d] op_sel_hi:[1,%d]", vAcc + 2 * d, vAcc + 2 * d + 1,
                vAcc + 2 * d, vAcc + 2 * d + 1, vAl & ~1, (vAl & ~1) + 1, vAl & 1, vAl & 1)
        for i in range(T):
            a.i("v_add_f32 v%d, v%d, v%d", vL, vL, vS + i)
        for i in range(T):
            wait(T + i)
            vv = bV + 4 * i
            sp = (vS + i) & ~1
            hi = (vS + i) & 1
            for d in range(4):
                t = vT0 + 2 * d
                a.i("v_lshlrev_b32 v%d, 16, v%d", t, vv + d)
                a.i("v_and_b32 v%d, 0xffff0000, v%d", t + 1, vv + d)
            for d in range(4):
                t = vT0 + 2 * d
                a.i("v_pk_fma_f32 v[%d:%d], v[%d:%d], v[%d:%d], v[%d:%d] op_sel:[0,%d,0] op_sel_hi:[1,%d,1]", vAcc + 2 * d, vAcc + 2 * d + 1,
                    t, t + 1, sp, sp + 1, vAcc + 2 * d, vAcc + 2 * d + 1, hi, hi)
            issue(T + i)

    if p.single:
        sNr, sDry = 79, 10
        a(".p2align 6")
        a.label("L_loop")
        body("mid")
        if p.dry:
            a.i("s_cmp_lg_u32 s%d, 0", sDry)
            a.i("s_cbranch_scc1 L_dryret")
        a.i("s_mov_b32 s%d, s%d", sCur, sNr)
        a.i("s_add_u32 s%d, s%d, %d", sNr, sNr, stride)
        a.i("s_and_b32 s%d, s%d, 0x%x", sNr, sNr, MASK)
        a.i("s_sub_u32 s%d, s%d, 1", sCnt, sCnt)
        a.i("s_cmp_eq_u32 s%d, 1", sCnt)
        a.i("s_cselect_b32 s%d, 0x100000, s%d", sNext, sNr)
        a.i("s_cmp_lg_u32 s%d, 0", sCnt)
        a.i("s_cbranch_scc1 L_loop")
    else:
        body("pre" if p.pre else "first")
        if p.zearly:
            a.i("s_cmp_lg_u32 s%d, 4", sWave)
            a.i("s_cbranch_scc1 L_nozf")
            a.i("v_mov_b32 v%d, %d", vT0, L_ZF)
            a.i("v_mov_b32 v%d, 1", vT0 + 1)
            a.i("ds_write_b32 v%d, v%d", vT0, vT0 + 1)
            a.label("L_nozf")
        a.i("s_mov_b32 s%d, s%d", sCur, sNext)
        a.i("s_add_u32 s%d, s%d, %d", sNext, sNext, stride)
        a.i("s_and_b32 s%d, s%d, 0x%x", sNext, sNext, MASK)
        a(".p2align 6")
        a.label("L_loop")
        body("mid")
        if p.diag == 6:
            for k, it in enumerate((1, 3, 7, 15, 31, 47)):
                a.i("s_cmp_lg_u32 s%d, %d", sCnt, NIT - 1 - it)
                a.i("s_cbranch_scc1 L_ps%d", k)
                a.i("s_memrealtime s[%d:%d]", sTS + 2 + 2 * k, sTS + 3 + 2 * k)
                a.label("L_ps%d" % k)
        a.i("s_mov_b32 s%d, s%d", sCur, sNext)
        a.i("s_add_u32 s%d, s%d, %d", sNext, sNext, stride)
        a.i("s_and_b32 s%d, s%d, 0x%x", sNext, sNext, MASK)
        a.i("s_sub_u32 s%d, s%d, 1", sCnt, sCnt)
        a.i("s_cmp_lg_u32 s%d, 0", sCnt)
        a.i("s_cbranch_scc1 L_loop")
        body("last")
    ts(2)
    ts(10)
    a.i("v_mov_b32 v%d, v%d", vT0, vMc)
    a.i("v_mov_b32 v%d, v%d", vT0 + 1, vMc)
    a.i("v_permlane32_swap_b32 v%d, v%d", vT0, vT0 + 1)
    a.i("v_max_f32 v%d, v%d, v%d", vT0, vT0, vT0 + 1)
    a.i("v_mov_b32 v%d, v%d", vT0 + 1, vT0)
    a.i("v_permlane16_swap_b32 v%d, v%d", vT0, vT0 + 1)
    a.i("v_max_f32 v%d, v%d, v%d", vT0 + 2, vT0, vT0 + 1)
    a.i("v_sub_f32 v%d, v%d, v%d", vAl, vMc, vT0 + 2)
    a.i("v_exp_f32 v%d, v%d", vAl, vAl)
    a.i("v_mul_f32 v%d, v%d, v%d", vL, vL, vAl)
    for d in range(4):
        a.i("v_pk_mul_f32 v[%d:%d], v[%d:%d], v[%d:%d] op_sel:[0,%d] op_sel_hi:[1,%d]", vAcc + 2 * d, vAcc + 2 * d + 1,
            vAcc + 2 * d, vAcc + 2 * d + 1, vAl & ~1, (vAl & ~1) + 1, vAl & 1, vAl & 1)
    a.i("v_mov_b32 v%d, v%d", vT0 + 1, vL)
    a.i("v_permlane32_swap_b32 v%d, v%d", vL, vT0 + 1)
    a.i("v_add_f32 v%d, v%d, v%d", vL, vL, vT0 + 1)
    a.i("v_mov_b32 v%d, v%d", vT0 + 1, vL)
    reduce_scatter(vAcc)
    a.i("v_permlane16_swap_b32 v%d, v%d", vL, vT0 + 1)
    a.i("v_add_f32 v%d, v%d, v%d", vT0 + 3, vL, vT0 + 1)
    a.i("ds_write_b64 v%d, v[%d:%d]", vOpA, vAcc, vAcc + 1)
    a.i("s_mov_b64 exec, 1")
    a.i("ds_write_b64 v%d, v[%d:%d]", vMlA, vT0 + 2, vT0 + 3)
    a.i("s_waitcnt lgkmcnt(0)")
    ts(11)
    a.i("s_barrier")
    diag_store("s")
    a.label("L_end")
    a.i("s_endpgm")
    a.label("L_code_end")

    descr(a, NAME + "_kernel", NV, 96)
    return a.text()


def parse(argv):
    ap = argparse.ArgumentParser()
    ap.add_argument("-T", type=int, default=4)
    ap.add_argument("-N", type=int, default=6)
    ap.add_argument("--QD", type=int, default=12)
    ap.add_argument("--stagger", type=int, default=0)
    ap.add_argument("--PW", type=int, default=1)
    ap.add_argument("--pre", type=int, default=0)
    ap.add_argument("--nowq", type=int, default=0)
    ap.add_argument("--nowo", type=int, default=0)
    ap.add_argument("--touch", type=int, default=0)
    ap.add_argument("--pf", type=int, default=0)
    ap.add_argument("--pfflags", default="nt")
    ap.add_argument("--rot", type=int, default=0)
    ap.add_argument("--noz", type=int, default=0)
    ap.add_argument("--fixfin", type=int, default=0)
    ap.add_argument("--mlpoll", type=int, default=0)
    ap.add_argument("--nozs", type=int, default=0)
    ap.add_argument("--zearly", type=int, default=0)
    ap.add_argument("--single", type=int, default=0)
    ap.add_argument("--dry", type=int, default=0)
    ap.add_argument("--tags", type=int, default=0)
    ap.add_argument("--fastpoll", type=int, default=0)
    ap.add_argument("--touchout", type=int, default=0)
    ap.add_argument("--minlds", type=int, default=0)
    ap.add_argument("--kvflags", default="nt")
    ap.add_argument("--wqflags", default="")
    ap.add_argument("--woflags", default="")
    ap.add_argument("--diag", type=int, default=0)
    ap.add_argument("-o", default="/dev/stdout")
    p = ap.parse_args(argv)
    for k in ("kvflags", "wqflags", "woflags", "pfflags"):
        s = getattr(p, k).strip().replace("+", " ")
        if s == "none":
            s = ""
        setattr(p, k, " " + s if s else "")
    return p


if __name__ == "__main__":
    p = parse(sys.argv[1:])
    open(p.o, "w").write(gen(p))
```

```python
import sys, argparse, math, struct
from asmlib import Asm
from gen2 import VM, lg, f32hex, descr, CLOG, NAME

HEADER = """; Decode attention of two independent branches (A, B) with fused q / output projections; out = concat(A, B).
; Workgroup (branch, head, split) streams 4096 keys.  Waves 0-3 (helpers): q projection, wo prefetch, output
; Hand-offs between workgroups go through ws as 8-byte {data, tag} granules; see the generator for the layout.
"""


def gen(p):
    T, N = p.T, p.N
    R = 2 * T
    assert N <= R
    NS = 4
    NIT = 1024 // (NS * T)
    NWQ = 32
    RPG = 32
    NX = 4
    QD = p.QD
    assert QD % 2 == 0
    NWO = 32
    F = 32
    kvf = p.kvflags
    L_QP = 0
    L_OP = 2048
    L_ML = 4096
    L_ZF = 4160
    LDS = max(4352, p.minlds)

    a = Asm()
    a(HEADER.rstrip())
    a("; @launch grid=(256,1,1) block=(512,1,1) lds=%d" % LDS)
    a('.amdgcn_target "amdgcn-amd-amdhsa--gfx950"')
    a(".text")
    a(".globl %s_kernel" % NAME)
    a(".p2align 8")
    a(".type %s_kernel,@function" % NAME)
    a("%s_kernel:" % NAME)

    sXp, sKp, sVp, sWqp, sWop = 16, 18, 20, 22, 24
    sOutP, sDbgP, sWsP = 36, 38, 40
    sK, sV, sWq, sWo, sX, sWs = 44, 48, 52, 56, 60, 64
    sDbg, sOut = 44, 48
    sHead, sSplit, sBr, sWave = 68, 69, 70, 71
    sCur, sCnt, sT0, sT1, sC, sNext = 72, 73, 74, 75, 76, 77
    sP, sQoff = 78, 79
    sTS = 80
    sW4 = 15
    sPlo, sPhi = 12, 13
    sTk = 14
    sTag = 9
    sSpin = 11
    vLane, vOffKV = 1, 2
    nOff = max(1, T // 4)
    v = 2 + nOff
    vQ = (v + 1) // 2 * 2; v = vQ + 4
    vM, vL, vMc, vAl = v, v + 1, v + 2, v + 3; v += 4
    vT0 = v; v += 8
    vAcc = v; v += 8
    vS = v; v += max(T, 8)
    vOpA, vMlA, vYoff, vWoOff, vWqOff, vTk, vDum = range(v, v + 7); v += 7
    vK = (v + 3) // 4 * 4
    vV = vK + 4 * T
    vW = vK
    vWq = vK
    vXr = vK + 64
    vQP = vK + 8 * T
    vB = vQP + 32
    NV = max(vW + 128, vQP + 32, vB + 8 * T if p.pre else 0)
    assert QD * 4 <= 64 and NV <= 256, NV

    def ts(k):
        if p.diag == 6 and k == 0:
            a.i("s_memrealtime s[%d:%d]", sTS, sTS + 1)
        if p.diag == 6 and k == 2:
            a.i("s_memrealtime s[%d:%d]", sTS + 14, sTS + 15)
        if p.diag == 1 and k < 4:
            a.i("s_memrealtime s[%d:%d]", sTS + 2 * k, sTS + 2 * k + 1)
        if p.diag == 5 and k >= 20:
            a.i("s_memtime s[%d:%d]", sTS + 2 * (k - 20), sTS + 2 * (k - 20) + 1)
        if p.diag == 4 and 10 <= k < 20:
            a.i("s_memtime s[%d:%d]", sTS + 2 * (k - 10), sTS + 2 * (k - 10) + 1)

    def srd(base, ptr, offreg, nrec):
        if offreg is None:
            a.i("s_mov_b32 s%d, s%d", base, ptr)
            a.i("s_mov_b32 s%d, s%d", base + 1, ptr + 1)
        else:
            a.i("s_add_u32 s%d, s%d, s%d", base, ptr, offreg)
            a.i("s_addc_u32 s%d, s%d, 0", base + 1, ptr + 1)
        a.i("s_mov_b32 s%d, 0x%x", base + 2, nrec)
        a.i("s_mov_b32 s%d, 0x20000", base + 3)

    def reduce_scatter(base):
        for e in range(4):
            a.i("v_permlane32_swap_b32 v%d, v%d", base + e, base + e + 4)
        for e in range(4):
            a.i("v_add_f32 v%d, v%d, v%d", base + e, base + e, base + e + 4)
        for e in range(2):
            a.i("v_permlane16_swap_b32 v%d, v%d", base + e, base + e + 2)
        for e in range(2):
            a.i("v_add_f32 v%d, v%d, v%d", base + e, base + e, base + e + 2)

    def diag_store(lab):
        if not p.diag:
            return
        ts(3)
        ts(17)
        ts(27)
        a.i("s_mov_b64 exec, 1")
        a.i("s_waitcnt vmcnt(0) lgkmcnt(0)")
        a.i("v_mov_b32 v%d, 0", vT0)
        for k in range(8):
            a.i("v_mov_b32 v%d, s%d", vK + k, sTS + (2 * k if p.diag >= 4 else k))
        a.i("s_mul_i32 s%d, s2, 8", sT1)
        a.i("s_add_u32 s%d, s%d, s%d", sT1, sT1, sWave)
        a.i("s_lshl_b32 s%d, s%d, 5", sT1, sT1)
        a.i("s_add_u32 s%d, s%d, 0x100000", sT1, sT1)
        a.i("buffer_store_dwordx4 v[%d:%d], v%d, s[%d:%d], s%d offen", vK, vK + 3, vT0, sWs, sWs + 3, sT1)
        a.i("buffer_store_dwordx4 v[%d:%d], v%d, s[%d:%d], s%d offen offset:16", vK + 4, vK + 7, vT0, sWs, sWs + 3, sT1)

    WSREC = 0x100000 if not p.diag else 0x200000
    a.i("s_cmp_ge_u32 s2, 256")
    a.i("s_cbranch_scc1 L_end")
    if p.touch:
        a.i("s_getpc_b64 s[8:9]")
        a.label("L_pc")
        a.i("v_and_b32 v%d, 63, v0", vTk)
        a.i("v_lshlrev_b32 v%d, 7, v%d", vTk, vTk)
        a.i("v_lshrrev_b32 v%d, 6, v0", vDum)
        a.i("v_lshl_add_u32 v%d, v%d, 13, v%d", vTk, vDum, vTk)
        a.i("v_cmp_gt_u32 vcc, L_code_end-L_pc, v%d", vTk)
        a.i("s_and_saveexec_b64 s[6:7], vcc")
        a.i("s_cbranch_execz L_notouch")
        a.i("global_load_dword v%d, v%d, s[8:9]", vDum, vTk)
        a.label("L_notouch")
        a.i("s_mov_b64 exec, s[6:7]")
    a.i("s_load_dwordx16 s[16:31], s[0:1], 0")
    a.i("s_load_dwordx8 s[32:39], s[0:1], 64")
    a.i("s_load_dwordx2 s[40:41], s[0:1], 96")
    ts(0)
    ts(20)
    if p.diag == 4:
        for k in range(16):
            a.i("s_mov_b32 s%d, 0", sTS + k)
    a.i("v_and_b32 v%d, 63, v0", vLane)
    a.i("v_lshrrev_b32 v%d, 6, v0", vT0)
    a.i("s_and_b32 s%d, s2, 31", sHead)
    a.i("s_lshr_b32 s%d, s2, 6", sSplit)
    a.i("s_bfe_u32 s%d, s2, 0x10005", sBr)
    a.i("v_readfirstlane_b32 s%d, v%d", sWave, vT0)
    a.i("s_and_b32 s%d, s2, 63", sP)
    a.i("s_lshl_b32 s%d, s%d, 2", sP, sP)
    a.i("s_add_u32 s%d, s%d, s%d", sP, sP, sSplit)
    a.i("s_and_b32 s%d, s%d, 3", sW4, sWave)
    a.i("v_lshrrev_b32 v%d, 4, v%d", vT0, vLane)
    a.i("v_and_b32 v%d, 15, v%d", vT0 + 1, vLane)
    a.i("s_cmp_ge_u32 s%d, 4", sWave)
    a.i("s_cbranch_scc1 L_stream")

    vm = VM(a)
    a.i("s_lshl_b32 s%d, s%d, %d", sT0, sW4, lg(RPG * 4 * 2))
    a.i("v_lshlrev_b32 v%d, %d, v%d", vT0 + 2, lg(RPG * 2), vT0)
    a.i("v_add_u32 v%d, s%d, v%d", vT0 + 2, sT0, vT0 + 2)
    a.i("v_lshlrev_b32 v%d, %d, v%d", vWqOff, lg(RPG * 8192), vT0)
    a.i("v_lshl_add_u32 v%d, v%d, 4, v%d", vWqOff, vT0 + 1, vWqOff)
    a.i("s_lshl_b32 s%d, s%d, %d", sT0, sW4, lg(RPG * 4 * 8192))
    a.i("s_lshl_b32 s%d, s%d, 8", sT1, sHead)
    a.i("s_add_u32 s%d, s%d, s%d", sQoff, sT0, sT1)
    a.i("v_lshlrev_b32 v%d, 3, v%d", vT0 + 3, vT0)
    a.i("v_lshl_add_u32 v%d, v%d, 5, v%d", vYoff, vT0 + 1, vT0 + 3)
    a.i("s_lshl_b32 s%d, s%d, 9", sT0, sW4)
    a.i("s_lshl_b32 s%d, s%d, 11", sT1, sP)
    a.i("s_add_u32 s%d, s%d, s%d", sT0, sT0, sT1)
    a.i("v_add_u32 v%d, s%d, v%d", vYoff, sT0, vYoff)
    a.i("s_waitcnt lgkmcnt(0)")
    ts(21)
    a.i("s_cmp_eq_u32 s%d, 0", sBr)
    a.i("s_cselect_b64 s[16:17], s[16:17], s[26:27]")
    a.i("s_cselect_b64 s[22:23], s[22:23], s[32:33]")
    a.i("s_cselect_b64 s[24:25], s[24:25], s[34:35]")
    if p.tags:
        a.i("s_lshl_b32 s%d, s%d, 7", sT0, sBr)
        a.i("s_load_dword s%d, s[%d:%d], s%d offset:0x90000", sTag, sWsP, sWsP + 1, sT0)
    srd(sX, sXp, None, 1024)
    srd(sWq, sWqp, None, 512 * 8192)

    sQrel = 10
    if p.rot:
        a.i("s_lshl_b32 s%d, s%d, 16", sQrel, sSplit)
        a.i("s_mov_b32 s%d, s%d", sCnt, sQoff)
        a.i("s_add_u32 s%d, s%d, s%d", sQoff, sCnt, sQrel)

    def wqload(j):
        if p.rot:
            s = j % QD
            a.i("buffer_load_dwordx4 v[%d:%d], v%d, s[%d:%d], s%d offen%s", vWq + 4 * s, vWq + 4 * s + 3, vWqOff, sWq, sWq + 3, sQoff, p.wqflags)
            vm.issue("wq%d" % j)
            if j != NWQ - 1:
                a.i("s_add_u32 s%d, s%d, 8192", sQrel, sQrel)
                a.i("s_and_b32 s%d, s%d, 0x3ffff", sQrel, sQrel)
                a.i("s_add_u32 s%d, s%d, s%d", sQoff, sCnt, sQrel)
            return
        if p.nowq:
            vm.issue("wq%d" % j)
            a.i("buffer_load_dwordx4 v[%d:%d], v%d, s[%d:%d], 0 offen", vWq + 4 * (j % QD), vWq + 4 * (j % QD) + 3, vT0 + 2, sX, sX + 3)
            return
        s = j % QD
        a.i("buffer_load_dwordx4 v[%d:%d], v%d, s[%d:%d], s%d offen%s", vWq + 4 * s, vWq + 4 * s + 3, vWqOff, sWq, sWq + 3, sQoff, p.wqflags)
        vm.issue("wq%d" % j)
        if j != NWQ - 1:
            a.i("s_add_u32 s%d, s%d, 8192", sQoff, sQoff)
    if p.xdw:
        a.i("v_lshl_add_u32 v%d, v%d, 2, v%d", vT0 + 2, vT0 + 1, vT0 + 2)
        a.i("buffer_load_dword v%d, v%d, s[%d:%d], 0 offen", vXr, vT0 + 2, sX, sX + 3)
        vm.issue("x%d" % (NX - 1))
    else:
        for j in range(NX):
            if p.rot:
                a.i("s_add_u32 s%d, s%d, %d", sT0, sSplit, j)
                a.i("s_and_b32 s%d, s%d, 3", sT0, sT0)
                a.i("s_lshl_b32 s%d, s%d, 4", sT0, sT0)
                a.i("buffer_load_dwordx4 v[%d:%d], v%d, s[%d:%d], s%d offen", vXr + 4 * j, vXr + 4 * j + 3, vT0 + 2, sX, sX + 3, sT0)
            else:
                a.i("buffer_load_dwordx4 v[%d:%d], v%d, s[%d:%d], 0 offen offset:%d", vXr + 4 * j, vXr + 4 * j + 3, vT0 + 2, sX, sX + 3, 16 * j)
            vm.issue("x%d" % j)
    for j in range(QD):
        wqload(j)
    nq = QD
    srd(sWs, sWsP, None, WSREC)
    a.i("s_lshl_b32 s%d, s%d, %d", sT1, sP, 4 if p.tags else 3)
    a.i("s_add_u32 s%d, s%d, 0x80000", sT1, sT1)
    a.i("v_mov_b32 v%d, s%d", vMlA, sT1)
    a.i("s_lshl_b32 s%d, s%d, 17", sT0, sHead)
    srd(sWo, sWop, sT0, 131072)
    srd(sDbg, sDbgP, None, 256)
    srd(sOut, sOutP, None, 2048)
    a.i("s_mov_b32 s%d, 0x05040100", sPlo)
    a.i("s_mov_b32 s%d, 0x07060302", sPhi)
    a.i("v_lshlrev_b32 v%d, 11, v%d", vWoOff, vT0)
    a.i("v_lshl_add_u32 v%d, v%d, 4, v%d", vWoOff, vT0 + 1, vWoOff)
    a.i("s_lshl_b32 s%d, s%d, 8", sT0, sW4)
    a.i("v_add_u32 v%d, s%d, v%d", vWoOff, sT0, vWoOff)
    vA = vAcc
    for e in range(8):
        a.i("v_mov_b32 v%d, 0", vA + e)
    vm.maybe_wait("x%d" % (NX - 1))
    for m in range(NWQ // 2):
        vm.wait("wq%d" % (2 * m + 1))
        if m == 0:
            ts(22)
        if m == 8:
            ts(23)
        s0 = vWq + 4 * ((2 * m) % QD)
        s1 = vWq + 4 * ((2 * m + 1) % QD)
        xr = vXr + m
        if p.xdw:
            xr = vXr + 1 + (m % 2)
            a.i("v_mov_b32_dpp v%d, v%d row_newbcast:%d row_mask:0xf bank_mask:0xf", xr, vXr, m)
        for d in range(4):
            a.i("v_perm_b32 v%d, v%d, v%d, s%d", vT0 + 2 * (d % 2), s1 + d, s0 + d, sPlo)
            a.i("v_perm_b32 v%d, v%d, v%d, s%d", vT0 + 2 * (d % 2) + 1, s1 + d, s0 + d, sPhi)
            a.i("v_dot2_f32_bf16 v%d, v%d, v%d, v%d", vA + 2 * d, vT0 + 2 * (d % 2), xr, vA + 2 * d)
            a.i("v_dot2_f32_bf16 v%d, v%d, v%d, v%d", vA + 2 * d + 1, vT0 + 2 * (d % 2) + 1, xr, vA + 2 * d + 1)
        for _ in range(2):
            if nq < NWQ:
                wqload(nq); nq += 1
    ts(24)
    reduce_scatter(vA)
    a.i("v_lshrrev_b32 v%d, 4, v%d", vT0, vLane)
    a.i("v_and_b32 v%d, 15, v%d", vT0 + 1, vLane)
    a.i("v_lshlrev_b32 v%d, 3, v%d", vT0, vT0)
    a.i("v_lshl_add_u32 v%d, v%d, 5, v%d", vT0, vT0 + 1, vT0)
    a.i("s_lshl_b32 s%d, s%d, 9", sT0, sW4)
    a.i("s_add_u32 s%d, s%d, %d", sT0, sT0, L_QP)
    a.i("v_add_u32 v%d, s%d, v%d", vT0, sT0, vT0)
    a.i("ds_write_b64 v%d, v[%d:%d]", vT0, vA, vA + 1)
    if p.zearly:
        a.i("v_mov_b32 v%d, %d", vT0 + 2, L_ZF)
        a.i("v_mov_b32 v%d, 0", vT0 + 3)
        a.i("ds_write_b32 v%d, v%d", vT0 + 2, vT0 + 3)
    a.i("s_waitcnt lgkmcnt(0)")
    ts(25)
    a.i("s_barrier")
    ts(1)
    ts(26)
    a.i("s_lshl_b32 s%d, s%d, 7", sC, sBr)
    if p.tags:
        a.i("s_mul_i32 s%d, s%d, 0x9E3779B1", sTag, sTag)
        a.i("s_add_u32 s%d, s%d, 0x7F4A7C15", sTag, sTag)
    if not p.zearly and not p.tags:
        a.i("s_cmp_lg_u32 s%d, 0", sWave)
        a.i("s_cbranch_scc1 L_noz")
        for e in range(4):
            a.i("v_mov_b32 v%d, 0", vT0 + e)
        a.i("v_lshlrev_b32 v%d, 5, v%d", vT0 + 4, vLane)
        a.i("s_lshl_b32 s%d, s%d, 11", sT1, sP)
        if not p.nozs:
            a.i("buffer_store_dwordx4 v[%d:%d], v%d, s[%d:%d], s%d offen sc1", vT0, vT0 + 3, vT0 + 4, sWs, sWs + 3, sT1)
            a.i("buffer_store_dwordx4 v[%d:%d], v%d, s[%d:%d], s%d offen offset:16 sc1", vT0, vT0 + 3, vT0 + 4, sWs, sWs + 3, sT1)
        a.i("v_mov_b32 v%d, 0", vT0 + 6)
        a.i("v_mov_b32 v%d, 1", vT0 + 7)
        a.i("s_mov_b64 exec, 1")
        if not p.nozs:
            a.i("buffer_store_dwordx2 v[%d:%d], v%d, s[%d:%d], 0 offen sc1", vT0, vT0 + 1, vMlA, sWs, sWs + 3)
        a.i("s_waitcnt vmcnt(0)")
        if not p.noz:
            a.i("buffer_atomic_add v%d, v%d, s[%d:%d], s%d offen sc1", vT0 + 7, vT0 + 6, sDbg, sDbg + 3, sC)
        a.i("s_mov_b64 exec, -1")
        a.label("L_noz")
    a.i("s_mov_b32 s%d, 0", sCur)
    NP = NWO // 2

    def wo_issue(m):
        b = vW + 8 * m
        if p.nowo:
            return
        a.i("buffer_load_dwordx4 v[%d:%d], v%d, s[%d:%d], s%d offen%s", b, b + 3, vWoOff, sWo, sWo + 3, sCur, p.woflags)
        a.i("buffer_load_dwordx4 v[%d:%d], v%d, s[%d:%d], s%d offen offset:1024%s", b + 4, b + 7, vWoOff, sWo, sWo + 3, sCur, p.woflags)
        a.i("s_add_u32 s%d, s%d, 8192", sCur, sCur)
    for m in range(min(p.PW, NP)):
        wo_issue(m)
    for m in range(NP):
        b = vW + 8 * m
        inflight = min(NP, m + p.PW) - (m + 1)
        a.i("s_waitcnt vmcnt(%d)", 2 * inflight)
        for d in range(4):
            a.i("v_perm_b32 v%d, v%d, v%d, s%d", vT0, b + 4 + d, b + d, sPlo)
            a.i("v_perm_b32 v%d, v%d, v%d, s%d", b + 4 + d, b + 4 + d, b + d, sPhi)
            a.i("v_mov_b32 v%d, v%d", b + d, vT0)
        if m + p.PW < NP:
            wo_issue(m + p.PW)
    if p.zearly and not p.noz:
        a.i("s_cmp_lg_u32 s%d, 0", sWave)
        a.i("s_cbranch_scc1 L_noz")
        a.i("v_mov_b32 v%d, %d", vT0 + 2, L_ZF)
        a.label("L_zfw")
        a.i("ds_read_b32 v%d, v%d", vT0 + 3, vT0 + 2)
        a.i("s_waitcnt lgkmcnt(0)")
        a.i("v_readfirstlane_b32 s%d, v%d", sT0, vT0 + 3)
        a.i("s_cmp_eq_u32 s%d, 0", sT0)
        a.i("s_cbranch_scc1 L_zfw")
        a.i("v_mov_b32 v%d, 0", vT0 + 6)
        a.i("v_mov_b32 v%d, 1", vT0 + 7)
        a.i("s_mov_b64 exec, 1")
        a.i("buffer_atomic_add v%d, v%d, s[%d:%d], s%d offen sc1", vT0 + 7, vT0 + 6, sDbg, sDbg + 3, sC)
        a.i("s_mov_b64 exec, -1")
        a.label("L_noz")
    if p.touchout:
        a.i("v_mov_b32 v%d, 0", vT0 + 2)
        a.i("s_lshl_b32 s%d, s%d, 10", sT0, sBr)
        a.i("s_mov_b64 exec, 1")
        a.i("buffer_load_dword v%d, v%d, s[%d:%d], s%d offen", vDum, vT0 + 2, sOut, sOut + 3, sT0)
        a.i("s_mov_b64 exec, -1")
        a.i("s_waitcnt vmcnt(0)")
    a.i("v_lshlrev_b32 v%d, 3, v%d", vOpA, vLane)
    a.i("v_add_u32 v%d, %d, v%d", vOpA, L_OP, vOpA)
    a.i("v_mov_b32 v%d, %d", vT0 + 7, L_ML)
    a.i("v_mov_b32 v%d, 0", vT0 + 6)
    a.i("v_mov_b32 v%d, 0x10000", vTk)
    for e in range(8):
        a.i("v_mov_b32 v%d, 0", vAcc + e)
    ts(2)
    a.i("s_barrier")
    ts(10)
    a.i("s_cmp_lg_u32 s%d, 0", sWave)
    a.i("s_cbranch_scc1 L_notk")
    if not p.fixfin:
        a.i("s_mov_b64 exec, 1")
        a.i("buffer_atomic_add v%d, v%d, s[%d:%d], s%d offen sc0 sc1", vTk, vT0 + 6, sDbg, sDbg + 3, sC)
        a.i("s_mov_b64 exec, -1")
    a.label("L_notk")
    for w in range(4):
        a.i("ds_read_b64 v[%d:%d], v%d offset:%d", vS + 2 * w, vS + 2 * w + 1, vOpA, 512 * w)
    a.i("ds_read_b128 v[%d:%d], v%d", vT0, vT0 + 3, vT0 + 7)
    a.i("ds_read_b128 v[%d:%d], v%d offset:16", vQ, vQ + 3, vT0 + 7)
    a.i("s_waitcnt lgkmcnt(0)")
    mc = [vT0, vT0 + 2, vQ, vQ + 2]
    a.i("v_max3_f32 v%d, v%d, v%d, v%d", vM, mc[0], mc[1], mc[2])
    a.i("v_max_f32 v%d, v%d, v%d", vM, vM, mc[3])
    for w in range(4):
        a.i("v_sub_f32 v%d, v%d, v%d", mc[w], mc[w], vM)
    for w in range(4):
        a.i("v_exp_f32 v%d, v%d", mc[w], mc[w])
    a.i("v_mul_f32 v%d, v%d, v%d", vL, mc[0], mc[0] + 1)
    for w in range(1, 4):
        a.i("v_fmac_f32 v%d, v%d, v%d", vL, mc[w], mc[w] + 1)
    a.i("v_pk_mul_f32 v[%d:%d], v[%d:%d], v[%d:%d] op_sel_hi:[1,0]", vS, vS + 1, vS, vS + 1, mc[0], mc[0] + 1)
    for w in range(1, 4):
        a.i("v_pk_fma_f32 v[%d:%d], v[%d:%d], v[%d:%d], v[%d:%d] op_sel_hi:[1,0,1]", vS, vS + 1, vS + 2 * w, vS + 2 * w + 1, mc[w], mc[w] + 1, vS, vS + 1)
    a.i("v_cvt_pk_bf16_f32 v%d, v%d, v%d", vS, vS, vS + 1)
    ts(11)
    a(".p2align 3")
    for m in range(16):
        t = vT0 + (m % 2)
        a.i("v_mov_b32_dpp v%d, v%d row_newbcast:%d row_mask:0xf bank_mask:0xf", t, vS, m)
        for d in range(4):
            a.i("v_dot2_f32_bf16 v%d, v%d, v%d, v%d", vAcc + 2 * d, vW + 8 * m + d, t, vAcc + 2 * d)
            a.i("v_dot2_f32_bf16 v%d, v%d, v%d, v%d", vAcc + 2 * d + 1, vW + 8 * m + 4 + d, t, vAcc + 2 * d + 1)
    ts(12)
    reduce_scatter(vAcc)
    if p.tags:
        a.i("v_cvt_pk_bf16_f32 v%d, v%d, v%d", vAcc, vAcc, vAcc + 1)
        a.i("v_mov_b32 v%d, s%d", vAcc + 1, sTag)
    else:
        a.i("v_max_u32 v%d, 1, v%d", vAcc, vAcc)
        a.i("v_max_u32 v%d, 1, v%d", vAcc + 1, vAcc + 1)
    a.i("buffer_store_dwordx2 v[%d:%d], v%d, s[%d:%d], 0 offen sc1", vAcc, vAcc + 1, vYoff, sWs, sWs + 3)
    a.i("s_cmp_lg_u32 s%d, 0", sWave)
    a.i("s_cbranch_scc1 L_done")
    if p.tags:
        a.i("v_mov_b32 v%d, v%d", vT0, vM)
        a.i("v_mov_b32 v%d, s%d", vT0 + 1, sTag)
        a.i("v_mov_b32 v%d, v%d", vT0 + 2, vL)
        a.i("v_mov_b32 v%d, s%d", vT0 + 3, sTag)
        a.i("s_mov_b64 exec, 1")
        a.i("buffer_store_dwordx4 v[%d:%d], v%d, s[%d:%d], 0 offen sc1", vT0, vT0 + 3, vMlA, sWs, sWs + 3)
        a.i("s_mov_b64 exec, -1")
        a.i("s_nop 1")
    else:
        a.i("v_max_u32 v%d, 1, v%d", vT0 + 2, vM)
        a.i("v_max_u32 v%d, 1, v%d", vT0 + 3, vL)
        a.i("s_mov_b64 exec, 1")
        a.i("buffer_store_dwordx2 v[%d:%d], v%d, s[%d:%d], 0 offen sc1", vT0 + 2, vT0 + 3, vMlA, sWs, sWs + 3)
        a.i("s_mov_b64 exec, -1")
    ts(13)
    a.i("v_lshrrev_b32 v%d, 2, v%d", vT0, vLane)
    a.i("v_and_b32 v%d, 3, v%d", vT0 + 1, vLane)
    a.i("v_lshlrev_b32 v%d, 11, v%d", vYoff, vT0)
    a.i("v_lshl_add_u32 v%d, v%d, 4, v%d", vYoff, vT0 + 1, vYoff)
    a.i("v_lshlrev_b32 v%d, %d, v%d", vMlA, 4 if p.tags else 3, vT0)
    if p.fixfin:
        a.i("s_cmp_lg_u32 s%d, 3", sSplit)
        a.i("s_cbranch_scc1 L_done")
        a.i("s_mov_b32 s%d, s%d", sNext, sHead)
    else:
        a.i("s_waitcnt vmcnt(2)")
        a.i("v_readfirstlane_b32 s%d, v%d", sTk, vTk)
        a.i("s_lshr_b32 s%d, s%d, 16", sT0, sTk)
        a.i("s_cmp_lt_u32 s%d, %d", sT0, 128 - F)
        a.i("s_cbranch_scc1 L_done")
        a.i("s_sub_u32 s%d, s%d, %d", sNext, sT0, 128 - F)
    if not p.noz and not p.fixfin and not p.tags:
        a.i("s_and_b32 s%d, s%d, 0xffff", sT0, sTk)
        a.i("s_cmp_eq_u32 s%d, 128", sT0)
        a.i("s_cbranch_scc1 L_zok")
        a.i("s_mov_b32 s%d, 0x10000", sSpin)
        a.label("L_zspin")
        a.i("s_sub_u32 s%d, s%d, 1", sSpin, sSpin)
        a.i("s_cmp_eq_u32 s%d, 0", sSpin)
        a.i("s_cbranch_scc1 L_zok")
        a.i("s_mov_b64 exec, 1")
        a.i("buffer_load_dword v%d, v%d, s[%d:%d], s%d offen sc1", vTk, vT0 + 6, sDbg, sDbg + 3, sC)
        a.i("s_waitcnt vmcnt(0)")
        a.i("v_readfirstlane_b32 s%d, v%d", sTk, vTk)
        a.i("s_mov_b64 exec, -1")
        a.i("s_and_b32 s%d, s%d, 0xffff", sT0, sTk)
        a.i("s_cmp_eq_u32 s%d, 128", sT0)
        a.i("s_cbranch_scc0 L_zspin")
    a.label("L_zok")
    ts(14)
    vY = vW
    vMl = vW + 32
    a.i("s_lshl_b32 s%d, s%d, 18", sT0, sBr)
    a.i("s_lshl_b32 s%d, s%d, 6", sT1, sNext)
    a.i("s_add_u32 s%d, s%d, s%d", sQoff, sT0, sT1)
    a.i("s_lshl_b32 s%d, s%d, %d", sT0, sBr, 11 if p.tags else 10)
    a.i("s_add_u32 s%d, s%d, 0x80000", sCnt, sT0)
    if p.mlpoll:
        a.i("v_lshlrev_b32 v%d, 4, v%d", vT0 + 1, vLane)
        a.i("s_mov_b32 s%d, 0x10000", sSpin)
        a.label("L_poll1")
        a.i("buffer_load_dwordx4 v[%d:%d], v%d, s[%d:%d], s%d offen sc1", vMl, vMl + 3, vT0 + 1, sWs, sWs + 3, sCnt)
        a.i("s_waitcnt vmcnt(0)")
        a.i("v_min3_u32 v%d, v%d, v%d, v%d", vT0, vMl, vMl + 1, vMl + 2)
        a.i("v_min_u32 v%d, v%d, v%d", vT0, vT0, vMl + 3)
        a.i("v_cmp_eq_u32 vcc, 0, v%d", vT0)
        a.i("s_sub_u32 s%d, s%d, 1", sSpin, sSpin)
        a.i("s_cbranch_scc1 L_poll1ok")
        a.i("s_cbranch_vccz L_poll1ok")
        a.i("s_sleep %d", p.mlpoll)
        a.i("s_branch L_poll1")
        a.label("L_poll1ok")
    if p.tags:
        vMl = vW + 32
        vLo, vHi = vT0, vT0 + 1
        a.i("s_mov_b32 s%d, 0x10000", sSpin)
        a.label("L_poll")
        a.i("s_mov_b32 s%d, s%d", sCur, sQoff)
        for j in range(8):
            a.i("buffer_load_dwordx4 v[%d:%d], v%d, s[%d:%d], s%d offen offset:%d sc1", vMl + 4 * j, vMl + 4 * j + 3, vMlA, sWs, sWs + 3, sCnt, 256 * j)
        for j in range(8):
            a.i("buffer_load_dwordx4 v[%d:%d], v%d, s[%d:%d], s%d offen sc1", vY + 4 * j, vY + 4 * j + 3, vYoff, sWs, sWs + 3, sCur)
            if j != 7:
                a.i("s_add_u32 s%d, s%d, 32768", sCur, sCur)
        a.i("v_mov_b32 v%d, s%d", vLo, sTag)
        a.i("v_mov_b32 v%d, s%d", vHi, sTag)
        a.i("s_waitcnt vmcnt(8)")
        for j in range(8):
            a.i("v_min3_u32 v%d, v%d, v%d, v%d", vLo, vLo, vMl + 4 * j + 1, vMl + 4 * j + 3)
            a.i("v_max3_u32 v%d, v%d, v%d, v%d", vHi, vHi, vMl + 4 * j + 1, vMl + 4 * j + 3)
        for j in range(8):
            a.i("v_max_f32_dpp v%d, v%d, v%d row_ror:4 row_mask:0xf bank_mask:0xf", vS + j, vMl + 4 * j, vMl + 4 * j)
        for j in range(8):
            a.i("v_max_f32_dpp v%d, v%d, v%d row_ror:8 row_mask:0xf bank_mask:0xf", vS + j, vS + j, vS + j)
        for j in range(8):
            a.i("v_sub_f32 v%d, v%d, v%d", vS + j, vMl + 4 * j, vS + j)
        for j in range(8):
            a.i("v_exp_f32 v%d, v%d", vS + j, vS + j)
        for j in range(8):
            a.i("v_mul_f32 v%d, v%d, v%d", vMl + 4 * j + 2, vMl + 4 * j + 2, vS + j)
        for r in (4, 8):
            for j in range(8):
                a.i("v_add_f32_dpp v%d, v%d, v%d row_ror:%d row_mask:0xf bank_mask:0xf", vMl + 4 * j + 2, vMl + 4 * j + 2, vMl + 4 * j + 2, r)
        for j in range(8):
            a.i("v_rcp_f32 v%d, v%d", vMl + 4 * j + 2, vMl + 4 * j + 2)
        for j in range(8):
            a.i("v_mul_f32 v%d, v%d, v%d", vS + j, vS + j, vMl + 4 * j + 2)
        a.i("s_waitcnt vmcnt(0)")
        for j in range(8):
            a.i("v_min3_u32 v%d, v%d, v%d, v%d", vLo, vLo, vY + 4 * j + 1, vY + 4 * j + 3)
            a.i("v_max3_u32 v%d, v%d, v%d, v%d", vHi, vHi, vY + 4 * j + 1, vY + 4 * j + 3)
        a.i("v_cmp_ne_u32 vcc, v%d, v%d", vLo, vHi)
        a.i("s_sub_u32 s%d, s%d, 1", sSpin, sSpin)
        a.i("s_cbranch_scc1 L_pollok")
        a.i("s_cbranch_vccnz L_poll")
        a.label("L_pollok")
        ts(15)
        a.i("s_cmp_lg_u32 s%d, 0", sNext)
        a.i("s_cbranch_scc1 L_noep")
        a.i("s_lshl_b32 s%d, s%d, 7", sT0, sBr)
        a.i("s_add_u32 s%d, s%d, 0x90000", sT0, sT0)
        a.i("v_mov_b32 v%d, 0", vT0 + 2)
        a.i("v_mov_b32 v%d, s%d", vT0 + 3, sTag)
        a.i("s_mov_b64 exec, 1")
        a.i("buffer_store_dword v%d, v%d, s[%d:%d], s%d offen sc1", vT0 + 3, vT0 + 2, sWs, sWs + 3, sT0)
        a.i("s_mov_b64 exec, -1")
        a.label("L_noep")
        for j in range(8):
            y = vY + 4 * j
            a.i("v_lshlrev_b32 v%d, 16, v%d", vT0 + 4, y)
            a.i("v_and_b32 v%d, 0xffff0000, v%d", vT0 + 5, y)
            a.i("v_lshlrev_b32 v%d, 16, v%d", vT0 + 6, y + 2)
            a.i("v_and_b32 v%d, 0xffff0000, v%d", vT0 + 7, y + 2)
            for e in range(4):
                if j == 0:
                    a.i("v_mul_f32 v%d, v%d, v%d", vAcc + e, vS, vT0 + 4 + e)
                else:
                    a.i("v_fmac_f32 v%d, v%d, v%d", vAcc + e, vS + j, vT0 + 4 + e)
    else:
        a.i("s_mov_b32 s%d, 0x10000", sSpin)
        a.label("L_poll")
        a.i("s_mov_b32 s%d, s%d", sCur, sQoff)
        for j in range(8):
            a.i("buffer_load_dwordx2 v[%d:%d], v%d, s[%d:%d], s%d offen offset:%d sc1", vMl + 2 * j, vMl + 2 * j + 1, vMlA, sWs, sWs + 3, sCnt, 128 * j)
        for j in range(8):
            a.i("buffer_load_dwordx4 v[%d:%d], v%d, s[%d:%d], s%d offen sc1", vY + 4 * j, vY + 4 * j + 3, vYoff, sWs, sWs + 3, sCur)
            if j != 7:
                a.i("s_add_u32 s%d, s%d, 32768", sCur, sCur)
        a.i("s_waitcnt vmcnt(8)")
        a.i("v_min3_u32 v%d, v%d, v%d, v%d", vT0, vMl, vMl + 1, vMl + 2)
        for k in range(3, 15, 2):
            a.i("v_min3_u32 v%d, v%d, v%d, v%d", vT0, vT0, vMl + k, vMl + k + 1)
        a.i("v_min_u32 v%d, v%d, v%d", vT0, vT0, vMl + 15)
        if p.fastpoll:
            a.i("v_cmp_eq_u32 vcc, 0, v%d", vT0)
            a.i("s_sub_u32 s%d, s%d, 1", sSpin, sSpin)
            a.i("s_cbranch_scc1 L_mlok")
            a.i("s_cbranch_vccnz L_poll")
            a.label("L_mlok")
        for j in range(8):
            a.i("v_max_f32_dpp v%d, v%d, v%d row_ror:4 row_mask:0xf bank_mask:0xf", vS + j, vMl + 2 * j, vMl + 2 * j)
        for j in range(8):
            a.i("v_max_f32_dpp v%d, v%d, v%d row_ror:8 row_mask:0xf bank_mask:0xf", vS + j, vS + j, vS + j)
        for j in range(8):
            a.i("v_sub_f32 v%d, v%d, v%d", vS + j, vMl + 2 * j, vS + j)
        for j in range(8):
            a.i("v_exp_f32 v%d, v%d", vS + j, vS + j)
        for j in range(8):
            a.i("v_mul_f32 v%d, v%d, v%d", vMl + 2 * j + 1, vMl + 2 * j + 1, vS + j)
        for j in range(8):
            a.i("v_add_f32_dpp v%d, v%d, v%d row_ror:4 row_mask:0xf bank_mask:0xf", vMl + 2 * j + 1, vMl + 2 * j + 1, vMl + 2 * j + 1)
        for j in range(8):
            a.i("v_add_f32_dpp v%d, v%d, v%d row_ror:8 row_mask:0xf bank_mask:0xf", vMl + 2 * j + 1, vMl + 2 * j + 1, vMl + 2 * j + 1)
        for j in range(8):
            a.i("v_rcp_f32 v%d, v%d", vMl + 2 * j + 1, vMl + 2 * j + 1)
        for j in range(8):
            a.i("v_mul_f32 v%d, v%d, v%d", vS + j, vS + j, vMl + 2 * j + 1)
        a.i("s_waitcnt vmcnt(0)")
        for k in range(0, 32, 2):
            a.i("v_min3_u32 v%d, v%d, v%d, v%d", vT0, vT0, vY + k, vY + k + 1)
        a.i("v_cmp_eq_u32 vcc, 0, v%d", vT0)
        a.i("s_sub_u32 s%d, s%d, 1", sSpin, sSpin)
        a.i("s_cbranch_scc1 L_pollok")
        a.i("s_cbranch_vccnz L_poll")
        a.label("L_pollok")
        ts(15)
        for e in range(4):
            a.i("v_mul_f32 v%d, v%d, v%d", vAcc + e, vS, vY + e)
        for j in range(1, 8):
            for e in range(4):
                a.i("v_fmac_f32 v%d, v%d, v%d", vAcc + e, vS + j, vY + 4 * j + e)
    for r in (4, 8):
        for e in range(4):
            a.i("v_add_f32_dpp v%d, v%d, v%d row_ror:%d row_mask:0xf bank_mask:0xf", vAcc + e, vAcc + e, vAcc + e, r)
    for e in range(2):
        a.i("v_permlane32_swap_b32 v%d, v%d", vAcc + e, vAcc + 2 + e)
    for e in range(2):
        a.i("v_add_f32 v%d, v%d, v%d", vAcc + e, vAcc + e, vAcc + 2 + e)
    a.i("v_permlane16_swap_b32 v%d, v%d", vAcc, vAcc + 1)
    a.i("v_add_f32 v%d, v%d, v%d", vAcc, vAcc, vAcc + 1)
    a.i("v_lshrrev_b32 v%d, 4, v%d", vT0, vLane)
    a.i("v_and_b32 v%d, 3, v%d", vT0 + 1, vLane)
    a.i("v_lshl_add_u32 v%d, v%d, 2, v%d", vT0, vT0 + 1, vT0)
    a.i("v_lshlrev_b32 v%d, 1, v%d", vT0, vT0)
    a.i("v_cvt_pk_bf16_f32 v%d, v%d, v%d", vAcc, vAcc, vAcc)
    a.i("s_lshl_b32 s%d, s%d, 10", sT0, sBr)
    a.i("s_lshl_b32 s%d, s%d, 5", sT1, sNext)
    a.i("s_add_u32 s%d, s%d, s%d", sT0, sT0, sT1)
    a.i("s_mov_b32 exec_lo, 0x000f000f")
    a.i("s_mov_b32 exec_hi, 0x000f000f")
    a.i("buffer_store_short v%d, v%d, s[%d:%d], s%d offen%s", vAcc, vT0, sOut, sOut + 3, sT0, p.outflags)
    if p.diag == 4:
        a.i("s_waitcnt vmcnt(0)")
    ts(16)
    a.label("L_done")
    diag_store("h")
    a.i("s_endpgm")

    a.label("L_stream")
    a.i("s_lshl_b32 s%d, s%d, %d", sT0, sW4, lg(T * 1024))
    stride = NS * T * 1024
    a.i("v_lshlrev_b32 v%d, 4, v%d", vOffKV, vLane)
    a.i("v_add_u32 v%d, s%d, v%d", vOffKV, sT0, vOffKV)
    for j in range(1, nOff):
        a.i("v_add_u32 v%d, %d, v%d", vOffKV + j, 4096 * j, vOffKV)
    a.i("s_lshl_b32 s%d, s%d, 22", sT0, sHead)
    a.i("s_lshl_b32 s%d, s%d, 20", sT1, sSplit)
    a.i("s_add_u32 s%d, s%d, s%d", sCur, sT0, sT1)
    a.i("s_waitcnt lgkmcnt(0)")
    a.i("s_cmp_eq_u32 s%d, 0", sBr)
    a.i("s_cselect_b64 s[18:19], s[18:19], s[28:29]")
    a.i("s_cselect_b64 s[20:21], s[20:21], s[30:31]")
    srd(sK, sKp, sCur, 1 << 20)
    srd(sV, sVp, sCur, 1 << 20)
    if p.zearly:
        srd(sWs, sWsP, None, WSREC)
        a.i("s_cmp_lg_u32 s%d, 4", sWave)
        a.i("s_cbranch_scc1 L_nozs")
        for e in range(4):
            a.i("v_mov_b32 v%d, 0", vT0 + 4 + e)
        a.i("v_lshlrev_b32 v%d, 5, v%d", vT0 + 2, vLane)
        a.i("s_lshl_b32 s%d, s%d, 11", sT1, sP)
        a.i("buffer_store_dwordx4 v[%d:%d], v%d, s[%d:%d], s%d offen sc1", vT0 + 4, vT0 + 7, vT0 + 2, sWs, sWs + 3, sT1)
        a.i("buffer_store_dwordx4 v[%d:%d], v%d, s[%d:%d], s%d offen offset:16 sc1", vT0 + 4, vT0 + 7, vT0 + 2, sWs, sWs + 3, sT1)
        a.i("s_lshl_b32 s%d, s%d, 3", sT1, sP)
        a.i("s_add_u32 s%d, s%d, 0x80000", sT1, sT1)
        a.i("v_mov_b32 v%d, 0", vT0 + 2)
        a.i("s_mov_b64 exec, 1")
        a.i("buffer_store_dwordx2 v[%d:%d], v%d, s[%d:%d], s%d offen sc1", vT0 + 4, vT0 + 5, vT0 + 2, sWs, sWs + 3, sT1)
        a.i("s_mov_b64 exec, -1")
        a.label("L_nozs")

    def kvload(j, soff, base=None):
        which, i = ("K", j) if j < T else ("V", j - T)
        srdb = sK if which == "K" else sV
        reg = (vK if base is None else base) + 4 * j
        a.i("buffer_load_dwordx4 v[%d:%d], v%d, s[%d:%d], %s offen offset:%d%s", reg, reg + 3,
            vOffKV + i // 4, srdb, srdb + 3, soff, (i % 4) * 1024, kvf)
    MASK = (1 << 20) - 1
    if p.stagger:
        a.i("s_mul_i32 s%d, s2, %d", sCur, p.stagger * stride)
        a.i("s_and_b32 s%d, s%d, 0x%x", sCur, sCur, MASK)
    else:
        a.i("s_mov_b32 s%d, 0", sCur)
    a.i("s_add_u32 s%d, s%d, %d", sNext, sCur, stride)
    a.i("s_and_b32 s%d, s%d, 0x%x", sNext, sNext, MASK)
    if p.single:
        for j in range(N):
            kvload(j, "s%d" % sCur)
    elif p.pre:
        seq = [(j, sCur, vB) for j in range(R)] + [(j, sNext, None) for j in range(N)]
        for k, (j, so, base) in enumerate(seq):
            if k >= p.pre:
                a.i("s_waitcnt vmcnt(%d)", p.pre - 1)
            kvload(j, "s%d" % so, base)
    else:
        for j in range(R):
            kvload(j, "s%d" % sCur)
        if p.pf:
            assert T == 4
            a.i("s_lshl_b32 s%d, s%d, 12", sT0, sW4)
            a.i("v_lshlrev_b32 v%d, 6, v%d", vTk, vLane)
            a.i("v_add_u32 v%d, s%d, v%d", vTk, sT0, vTk)
            a.i("s_mov_b32 s%d, s%d", sT1, sNext)
            for k in range(p.pf):
                a.i("buffer_load_dword v%d, v%d, s[%d:%d], s%d offen%s", vDum, vTk, sK, sK + 3, sT1, p.pfflags)
                a.i("buffer_load_dword v%d, v%d, s[%d:%d], s%d offen%s", vDum, vTk, sV, sV + 3, sT1, p.pfflags)
                if k + 1 < p.pf:
                    a.i("s_add_u32 s%d, s%d, %d", sT1, sT1, stride)
                    a.i("s_and_b32 s%d, s%d, 0x%x", sT1, sT1, MASK)
    if p.diag:
        srd(sWs, sWsP, None, WSREC)
    a.i("s_mov_b32 s%d, %s", sC, f32hex(CLOG))
    a.i("s_lshl_b32 s%d, s%d, 9", sT0, sW4)
    a.i("s_add_u32 s%d, s%d, %d", sT0, sT0, L_OP)
    a.i("v_lshlrev_b32 v%d, 3, v%d", vOpA, vLane)
    a.i("v_add_u32 v%d, s%d, v%d", vOpA, sT0, vOpA)
    a.i("s_lshl_b32 s%d, s%d, 3", sT0, sW4)
    a.i("s_add_u32 s%d, s%d, %d", sT0, sT0, L_ML)
    a.i("v_mov_b32 v%d, s%d", vMlA, sT0)
    a.i("v_lshlrev_b32 v%d, 5, v%d", vT0 + 1, vT0 + 1)
    a.i("v_add_u32 v%d, %d, v%d", vQP, L_QP, vT0 + 1)
    if p.single:
        a.i("s_mov_b32 s79, s%d", sNext)
    if p.single and p.dry:
        a.i("s_mov_b32 s10, 1")
        a.i("s_mov_b64 exec, 0")
        a.i("s_branch L_loop")
        a.label("L_dryret")
        a.i("s_mov_b64 exec, -1")
        a.i("s_mov_b32 s10, 0")
    a.i("s_barrier")
    a.i("v_mov_b32 v%d, v%d", vT0 + 1, vQP)
    for w in range(4):
        a.i("ds_read_b128 v[%d:%d], v%d offset:%d", vQP + 8 * w, vQP + 8 * w + 3, vT0 + 1, w * 512)
        a.i("ds_read_b128 v[%d:%d], v%d offset:%d", vQP + 8 * w + 4, vQP + 8 * w + 7, vT0 + 1, w * 512 + 16)
    for e in range(8):
        a.i("v_mov_b32 v%d, 0", vAcc + e)
    a.i("v_mov_b32 v%d, 0xff800000", vMc)
    a.i("v_mov_b32 v%d, 0xff800000", vM)
    a.i("v_mov_b32 v%d, 0", vL)
    a.i("s_mov_b32 s%d, %d", sCnt, NIT if p.single else NIT - 2)
    a.i("s_waitcnt lgkmcnt(0)")
    for d in range(4):
        a.i("v_pk_add_f32 v[%d:%d], v[%d:%d], v[%d:%d]", vQP + 2 * d, vQP + 2 * d + 1, vQP + 2 * d, vQP + 2 * d + 1, vQP + 8 + 2 * d, vQP + 9 + 2 * d)
        a.i("v_pk_add_f32 v[%d:%d], v[%d:%d], v[%d:%d]", vQP + 16 + 2 * d, vQP + 17 + 2 * d, vQP + 16 + 2 * d, vQP + 17 + 2 * d, vQP + 24 + 2 * d, vQP + 25 + 2 * d)
    for d in range(4):
        a.i("v_pk_add_f32 v[%d:%d], v[%d:%d], v[%d:%d]", vQP + 2 * d, vQP + 2 * d + 1, vQP + 2 * d, vQP + 2 * d + 1, vQP + 16 + 2 * d, vQP + 17 + 2 * d)
    for d in range(4):
        a.i("v_cvt_pk_bf16_f32 v%d, v%d, v%d", vQ + d, vQP + 2 * d, vQP + 2 * d + 1)
    ts(1)

    def body(kind):
        bK, bV = (vB, vB + 4 * T) if kind == "pre" else (vK, vV)

        def wait(j):
            if kind == "pre":
                if j >= R - N + (N - min(N, p.pre)) or True:
                    n = None
                a.i("s_waitcnt vmcnt(%d)", (R - 1 - j) + N)
                return
            if kind == "first":
                n = (R - 1 - j) + max(0, j - (R - N)) + 2 * p.pf
            elif kind == "mid":
                n = N - 1
            else:
                n = min(R - 1, j + N - 1) - j
            a.i("s_waitcnt vmcnt(%d)", n)

        def issue(j):
            if kind == "pre":
                return
            k = j + N
            if k < R:
                if kind != "first":
                    kvload(k, "s%d" % sCur)
            elif kind != "last":
                kvload(k - R, "s%d" % sNext)
        for i in range(T):
            wait(i)
            k = bK + 4 * i
            a.i("v_dot2_f32_bf16 v%d, v%d, v%d, 0", vS + i, k, vQ)
            for d in range(1, 4):
                a.i("v_dot2_f32_bf16 v%d, v%d, v%d, v%d", vS + i, k + d, vQ + d, vS + i)
            issue(i)
        for r in (8, 4, 2, 1):
            for i in range(T):
                a.i("v_add_f32_dpp v%d, v%d, v%d row_ror:%d row_mask:0xf bank_mask:0xf", vS + i, vS + i, vS + i, r)
        a.i("v_max3_f32 v%d, v%d, v%d, v%d", vM, vM, vS, vS + 1)
        for i in range(2, T, 2):
            a.i("v_max3_f32 v%d, v%d, v%d, v%d", vM, vM, vS + i, vS + i + 1)
        a.i("v_mul_f32 v%d, s%d, v%d", vT0, sC, vM)
        a.i("v_sub_f32 v%d, v%d, v%d", vAl, vMc, vT0)
        a.i("v_mov_b32 v%d, v%d", vMc, vT0)
        a.i("v_exp_f32 v%d, v%d", vAl, vAl)
        for i in range(T):
            a.i("v_fma_f32 v%d, v%d, s%d, -v%d", vS + i, vS + i, sC, vMc)
        for i in range(T):
            a.i("v_exp_f32 v%d, v%d", vS + i, vS + i)
        a.i("v_mul_f32 v%d, v%d, v%d", vL, vL, vAl)
        for d in range(4):
            a.i("v_pk_mul_f32 v[%d:%d], v[%d:%d], v[%d:%d] op_sel:[0,%d] op_sel_hi:[1,%d]", vAcc + 2 * d, vAcc + 2 * d + 1,
                vAcc + 2 * d, vAcc + 2 * d + 1, vAl & ~1, (vAl & ~1) + 1, vAl & 1, vAl & 1)
        for i in range(T):
            a.i("v_add_f32 v%d, v%d, v%d", vL, vL, vS + i)
        for i in range(T):
            wait(T + i)
            vv = bV + 4 * i
            sp = (vS + i) & ~1
            hi = (vS + i) & 1
            for d in range(4):
                t = vT0 + 2 * d
                a.i("v_lshlrev_b32 v%d, 16, v%d", t, vv + d)
                a.i("v_and_b32 v%d, 0xffff0000, v%d", t + 1, vv + d)
            for d in range(4):
                t = vT0 + 2 * d
                a.i("v_pk_fma_f32 v[%d:%d], v[%d:%d], v[%d:%d], v[%d:%d] op_sel:[0,%d,0] op_sel_hi:[1,%d,1]", vAcc + 2 * d, vAcc + 2 * d + 1,
                    t, t + 1, sp, sp + 1, vAcc + 2 * d, vAcc + 2 * d + 1, hi, hi)
            issue(T + i)

    if p.single:
        sNr, sDry = 79, 10
        a(".p2align 6")
        a.label("L_loop")
        body("mid")
        if p.dry:
            a.i("s_cmp_lg_u32 s%d, 0", sDry)
            a.i("s_cbranch_scc1 L_dryret")
        a.i("s_mov_b32 s%d, s%d", sCur, sNr)
        a.i("s_add_u32 s%d, s%d, %d", sNr, sNr, stride)
        a.i("s_and_b32 s%d, s%d, 0x%x", sNr, sNr, MASK)
        a.i("s_sub_u32 s%d, s%d, 1", sCnt, sCnt)
        a.i("s_cmp_eq_u32 s%d, 1", sCnt)
        a.i("s_cselect_b32 s%d, 0x100000, s%d", sNext, sNr)
        a.i("s_cmp_lg_u32 s%d, 0", sCnt)
        a.i("s_cbranch_scc1 L_loop")
    else:
        body("pre" if p.pre else "first")
        if p.zearly:
            a.i("s_cmp_lg_u32 s%d, 4", sWave)
            a.i("s_cbranch_scc1 L_nozf")
            a.i("v_mov_b32 v%d, %d", vT0, L_ZF)
            a.i("v_mov_b32 v%d, 1", vT0 + 1)
            a.i("ds_write_b32 v%d, v%d", vT0, vT0 + 1)
            a.label("L_nozf")
        a.i("s_mov_b32 s%d, s%d", sCur, sNext)
        a.i("s_add_u32 s%d, s%d, %d", sNext, sNext, stride)
        a.i("s_and_b32 s%d, s%d, 0x%x", sNext, sNext, MASK)
        a(".p2align 6")
        a.label("L_loop")
        body("mid")
        if p.diag == 6:
            for k, it in enumerate((1, 3, 7, 15, 31, 47)):
                a.i("s_cmp_lg_u32 s%d, %d", sCnt, NIT - 1 - it)
                a.i("s_cbranch_scc1 L_ps%d", k)
                a.i("s_memrealtime s[%d:%d]", sTS + 2 + 2 * k, sTS + 3 + 2 * k)
                a.label("L_ps%d" % k)
        a.i("s_mov_b32 s%d, s%d", sCur, sNext)
        a.i("s_add_u32 s%d, s%d, %d", sNext, sNext, stride)
        a.i("s_and_b32 s%d, s%d, 0x%x", sNext, sNext, MASK)
        a.i("s_sub_u32 s%d, s%d, 1", sCnt, sCnt)
        a.i("s_cmp_lg_u32 s%d, 0", sCnt)
        a.i("s_cbranch_scc1 L_loop")
        body("last")
    ts(2)
    ts(10)
    a.i("v_mov_b32 v%d, v%d", vT0, vMc)
    a.i("v_mov_b32 v%d, v%d", vT0 + 1, vMc)
    a.i("v_permlane32_swap_b32 v%d, v%d", vT0, vT0 + 1)
    a.i("v_max_f32 v%d, v%d, v%d", vT0, vT0, vT0 + 1)
    a.i("v_mov_b32 v%d, v%d", vT0 + 1, vT0)
    a.i("v_permlane16_swap_b32 v%d, v%d", vT0, vT0 + 1)
    a.i("v_max_f32 v%d, v%d, v%d", vT0 + 2, vT0, vT0 + 1)
    a.i("v_sub_f32 v%d, v%d, v%d", vAl, vMc, vT0 + 2)
    a.i("v_exp_f32 v%d, v%d", vAl, vAl)
    a.i("v_mul_f32 v%d, v%d, v%d", vL, vL, vAl)
    for d in range(4):
        a.i("v_pk_mul_f32 v[%d:%d], v[%d:%d], v[%d:%d] op_sel:[0,%d] op_sel_hi:[1,%d]", vAcc + 2 * d, vAcc + 2 * d + 1,
            vAcc + 2 * d, vAcc + 2 * d + 1, vAl & ~1, (vAl & ~1) + 1, vAl & 1, vAl & 1)
    a.i("v_mov_b32 v%d, v%d", vT0 + 1, vL)
    a.i("v_permlane32_swap_b32 v%d, v%d", vL, vT0 + 1)
    a.i("v_add_f32 v%d, v%d, v%d", vL, vL, vT0 + 1)
    a.i("v_mov_b32 v%d, v%d", vT0 + 1, vL)
    reduce_scatter(vAcc)
    a.i("v_permlane16_swap_b32 v%d, v%d", vL, vT0 + 1)
    a.i("v_add_f32 v%d, v%d, v%d", vT0 + 3, vL, vT0 + 1)
    a.i("ds_write_b64 v%d, v[%d:%d]", vOpA, vAcc, vAcc + 1)
    a.i("s_mov_b64 exec, 1")
    a.i("ds_write_b64 v%d, v[%d:%d]", vMlA, vT0 + 2, vT0 + 3)
    a.i("s_waitcnt lgkmcnt(0)")
    ts(11)
    a.i("s_barrier")
    diag_store("s")
    a.label("L_end")
    a.i("s_endpgm")
    a.label("L_code_end")

    descr(a, NAME + "_kernel", NV, 96)
    return a.text()


def parse(argv):
    ap = argparse.ArgumentParser()
    ap.add_argument("-T", type=int, default=4)
    ap.add_argument("-N", type=int, default=6)
    ap.add_argument("--QD", type=int, default=12)
    ap.add_argument("--stagger", type=int, default=0)
    ap.add_argument("--PW", type=int, default=1)
    ap.add_argument("--pre", type=int, default=0)
    ap.add_argument("--nowq", type=int, default=0)
    ap.add_argument("--nowo", type=int, default=0)
    ap.add_argument("--touch", type=int, default=0)
    ap.add_argument("--pf", type=int, default=0)
    ap.add_argument("--pfflags", default="nt")
    ap.add_argument("--rot", type=int, default=0)
    ap.add_argument("--noz", type=int, default=0)
    ap.add_argument("--fixfin", type=int, default=0)
    ap.add_argument("--mlpoll", type=int, default=0)
    ap.add_argument("--nozs", type=int, default=0)
    ap.add_argument("--zearly", type=int, default=0)
    ap.add_argument("--single", type=int, default=0)
    ap.add_argument("--dry", type=int, default=0)
    ap.add_argument("--tags", type=int, default=0)
    ap.add_argument("--fastpoll", type=int, default=0)
    ap.add_argument("--touchout", type=int, default=0)
    ap.add_argument("--outflags", default="")
    ap.add_argument("--xdw", type=int, default=0)
    ap.add_argument("--minlds", type=int, default=0)
    ap.add_argument("--kvflags", default="nt")
    ap.add_argument("--wqflags", default="")
    ap.add_argument("--woflags", default="")
    ap.add_argument("--diag", type=int, default=0)
    ap.add_argument("-o", default="/dev/stdout")
    p = ap.parse_args(argv)
    for k in ("kvflags", "wqflags", "woflags", "pfflags", "outflags"):
        s = getattr(p, k).strip().replace("+", " ")
        if s == "none":
            s = ""
        setattr(p, k, " " + s if s else "")
    return p


if __name__ == "__main__":
    p = parse(sys.argv[1:])
    open(p.o, "w").write(gen(p))
```

```python
import sys, argparse, math, struct
from asmlib import Asm
from gen2 import VM, lg, f32hex, descr, CLOG, NAME

HEADER = """; Decode attention of two independent branches (A, B) with fused q / output projections; out = concat(A, B).
; Workgroup (branch, head, split) streams 4096 keys.  Waves 0-3 (helpers): q projection, wo prefetch, output
; workgroup first zeroes its own slots and counts that in d_debug; published words are never zero, so a non-zero word is
; zeroed, high half = arrival tickets; the last 32 arrivals of a branch each reduce 16 output columns.
"""


def gen(p):
    T, N = p.T, p.N
    R = 2 * T
    assert N <= R
    NS = 4
    NIT = 1024 // (NS * T)
    NWQ = 32
    RPG = 32
    NX = 4
    QD = p.QD
    assert QD % 2 == 0
    NWO = 32
    F = 32
    kvf = p.kvflags
    L_QP = 0
    L_OP = 2048
    L_ML = 4096
    L_ZF = 4160
    LDS = max(4352, p.minlds)

    a = Asm()
    a(HEADER.rstrip())
    a("; @launch grid=(256,1,1) block=(512,1,1) lds=%d" % LDS)
    a('.amdgcn_target "amdgcn-amd-amdhsa--gfx950"')
    a(".text")
    a(".globl %s_kernel" % NAME)
    a(".p2align 8")
    a(".type %s_kernel,@function" % NAME)
    a("%s_kernel:" % NAME)

    sXp, sKp, sVp, sWqp, sWop = 16, 18, 20, 22, 24
    sOutP, sDbgP, sWsP = 36, 38, 40
    sK, sV, sWq, sWo, sX, sWs = 44, 48, 52, 56, 60, 64
    sDbg, sOut = 44, 48
    sHead, sSplit, sBr, sWave = 68, 69, 70, 71
    sCur, sCnt, sT0, sT1, sC, sNext = 72, 73, 74, 75, 76, 77
    sP, sQoff = 78, 79
    sTS = 80
    sW4 = 15
    sPlo, sPhi = 12, 13
    sTk = 14
    sTag = 9
    sSpin = 11
    vLane, vOffKV = 1, 2
    nOff = max(1, T // 4)
    v = 2 + nOff
    vQ = (v + 1) // 2 * 2; v = vQ + 4
    vM, vL, vMc, vAl = v, v + 1, v + 2, v + 3; v += 4
    vT0 = v; v += 8
    vAcc = v; v += 8
    vS = v; v += max(T, 8)
    vOpA, vMlA, vYoff, vWoOff, vWqOff, vTk, vDum = range(v, v + 7); v += 7
    vK = (v + 3) // 4 * 4
    vV = vK + 4 * T
    vW = vK
    vWq = vK
    vXr = vK + 64
    vQP = vK + 8 * T
    vB = vQP + 32
    NV = max(vW + 128, vQP + 32, vB + 8 * T if (p.pre or p.late) else 0)
    assert QD * 4 <= 64 and NV <= 256, NV

    def ts(k):
        if p.diag == 6 and k == 0:
            a.i("s_memrealtime s[%d:%d]", sTS, sTS + 1)
        if p.diag == 6 and k == 2:
            a.i("s_memrealtime s[%d:%d]", sTS + 14, sTS + 15)
        if p.diag == 1 and k < 4:
            a.i("s_memrealtime s[%d:%d]", sTS + 2 * k, sTS + 2 * k + 1)
        if p.diag == 5 and k >= 20:
            a.i("s_memtime s[%d:%d]", sTS + 2 * (k - 20), sTS + 2 * (k - 20) + 1)
        if p.diag == 4 and 10 <= k < 20:
            a.i("s_memtime s[%d:%d]", sTS + 2 * (k - 10), sTS + 2 * (k - 10) + 1)

    def srd(base, ptr, offreg, nrec):
        if offreg is None:
            a.i("s_mov_b32 s%d, s%d", base, ptr)
            a.i("s_mov_b32 s%d, s%d", base + 1, ptr + 1)
        else:
            a.i("s_add_u32 s%d, s%d, s%d", base, ptr, offreg)
            a.i("s_addc_u32 s%d, s%d, 0", base + 1, ptr + 1)
        a.i("s_mov_b32 s%d, 0x%x", base + 2, nrec)
        a.i("s_mov_b32 s%d, 0x20000", base + 3)

    def reduce_scatter(base):
        for e in range(4):
            a.i("v_permlane32_swap_b32 v%d, v%d", base + e, base + e + 4)
        for e in range(4):
            a.i("v_add_f32 v%d, v%d, v%d", base + e, base + e, base + e + 4)
        for e in range(2):
            a.i("v_permlane16_swap_b32 v%d, v%d", base + e, base + e + 2)
        for e in range(2):
            a.i("v_add_f32 v%d, v%d, v%d", base + e, base + e, base + e + 2)

    def diag_store(lab):
        if not p.diag:
            return
        ts(3)
        ts(17)
        ts(27)
        a.i("s_mov_b64 exec, 1")
        a.i("s_waitcnt vmcnt(0) lgkmcnt(0)")
        a.i("v_mov_b32 v%d, 0", vT0)
        for k in range(8):
            a.i("v_mov_b32 v%d, s%d", vK + k, sTS + (2 * k if p.diag >= 4 else k))
        a.i("s_mul_i32 s%d, s2, 8", sT1)
        a.i("s_add_u32 s%d, s%d, s%d", sT1, sT1, sWave)
        a.i("s_lshl_b32 s%d, s%d, 5", sT1, sT1)
        a.i("s_add_u32 s%d, s%d, 0x100000", sT1, sT1)
        a.i("buffer_store_dwordx4 v[%d:%d], v%d, s[%d:%d], s%d offen", vK, vK + 3, vT0, sWs, sWs + 3, sT1)
        a.i("buffer_store_dwordx4 v[%d:%d], v%d, s[%d:%d], s%d offen offset:16", vK + 4, vK + 7, vT0, sWs, sWs + 3, sT1)

    WSREC = 0x100000 if not p.diag else 0x200000
    a.i("s_cmp_ge_u32 s2, 256")
    a.i("s_cbranch_scc1 L_end")
    a.i("s_load_dwordx16 s[16:31], s[0:1], 0")
    a.i("s_load_dwordx8 s[32:39], s[0:1], 64")
    a.i("s_load_dwordx2 s[40:41], s[0:1], 96")
    if p.touch:
        a.i("s_getpc_b64 s[8:9]")
        a.label("L_pc")
        a.i("v_and_b32 v%d, 63, v0", vTk)
        a.i("v_lshlrev_b32 v%d, 7, v%d", vTk, vTk)
        a.i("v_lshrrev_b32 v%d, 6, v0", vDum)
        a.i("v_lshl_add_u32 v%d, v%d, 13, v%d", vTk, vDum, vTk)
        a.i("v_cmp_gt_u32 vcc, L_code_end-L_pc, v%d", vTk)
        a.i("s_and_saveexec_b64 s[6:7], vcc")
        a.i("s_cbranch_execz L_notouch")
        a.i("global_load_dword v%d, v%d, s[8:9]", vDum, vTk)
        a.label("L_notouch")
        a.i("s_mov_b64 exec, s[6:7]")
    ts(0)
    ts(20)
    if p.diag == 4:
        for k in range(16):
            a.i("s_mov_b32 s%d, 0", sTS + k)
    a.i("v_and_b32 v%d, 63, v0", vLane)
    a.i("v_lshrrev_b32 v%d, 6, v0", vT0)
    a.i("s_and_b32 s%d, s2, 31", sHead)
    a.i("s_lshr_b32 s%d, s2, 6", sSplit)
    a.i("s_bfe_u32 s%d, s2, 0x10005", sBr)
    a.i("v_readfirstlane_b32 s%d, v%d", sWave, vT0)
    a.i("s_and_b32 s%d, s2, 63", sP)
    a.i("s_lshl_b32 s%d, s%d, 2", sP, sP)
    a.i("s_add_u32 s%d, s%d, s%d", sP, sP, sSplit)
    a.i("s_and_b32 s%d, s%d, 3", sW4, sWave)
    a.i("v_lshrrev_b32 v%d, 4, v%d", vT0, vLane)
    a.i("v_and_b32 v%d, 15, v%d", vT0 + 1, vLane)
    a.i("s_cmp_ge_u32 s%d, 4", sWave)
    a.i("s_cbranch_scc1 L_stream")

    vm = VM(a)
    a.i("s_lshl_b32 s%d, s%d, %d", sT0, sW4, lg(RPG * 4 * 2))
    a.i("v_lshlrev_b32 v%d, %d, v%d", vT0 + 2, lg(RPG * 2), vT0)
    a.i("v_add_u32 v%d, s%d, v%d", vT0 + 2, sT0, vT0 + 2)
    a.i("v_lshlrev_b32 v%d, %d, v%d", vWqOff, lg(RPG * 8192), vT0)
    a.i("v_lshl_add_u32 v%d, v%d, 4, v%d", vWqOff, vT0 + 1, vWqOff)
    a.i("s_lshl_b32 s%d, s%d, %d", sT0, sW4, lg(RPG * 4 * 8192))
    a.i("s_lshl_b32 s%d, s%d, 8", sT1, sHead)
    a.i("s_add_u32 s%d, s%d, s%d", sQoff, sT0, sT1)
    a.i("v_lshlrev_b32 v%d, 3, v%d", vT0 + 3, vT0)
    a.i("v_lshl_add_u32 v%d, v%d, 5, v%d", vYoff, vT0 + 1, vT0 + 3)
    a.i("s_lshl_b32 s%d, s%d, 9", sT0, sW4)
    a.i("s_lshl_b32 s%d, s%d, 11", sT1, sP)
    a.i("s_add_u32 s%d, s%d, s%d", sT0, sT0, sT1)
    a.i("v_add_u32 v%d, s%d, v%d", vYoff, sT0, vYoff)
    a.i("s_waitcnt lgkmcnt(0)")
    ts(21)
    a.i("s_cmp_eq_u32 s%d, 0", sBr)
    a.i("s_cselect_b64 s[16:17], s[16:17], s[26:27]")
    a.i("s_cselect_b64 s[22:23], s[22:23], s[32:33]")
    a.i("s_cselect_b64 s[24:25], s[24:25], s[34:35]")
    if p.tags:
        a.i("s_lshl_b32 s%d, s%d, 7", sT0, sBr)
        a.i("s_load_dword s%d, s[%d:%d], s%d offset:0x90000", sTag, sWsP, sWsP + 1, sT0)
    srd(sX, sXp, None, 1024)
    srd(sWq, sWqp, None, 512 * 8192)

    sQrel = 10
    if p.rot:
        a.i("s_lshl_b32 s%d, s%d, 16", sQrel, sSplit)
        a.i("s_mov_b32 s%d, s%d", sCnt, sQoff)
        a.i("s_add_u32 s%d, s%d, s%d", sQoff, sCnt, sQrel)

    def wqload(j):
        if p.rot:
            s = j % QD
            a.i("buffer_load_dwordx4 v[%d:%d], v%d, s[%d:%d], s%d offen%s", vWq + 4 * s, vWq + 4 * s + 3, vWqOff, sWq, sWq + 3, sQoff, p.wqflags)
            vm.issue("wq%d" % j)
            if j != NWQ - 1:
                a.i("s_add_u32 s%d, s%d, 8192", sQrel, sQrel)
                a.i("s_and_b32 s%d, s%d, 0x3ffff", sQrel, sQrel)
                a.i("s_add_u32 s%d, s%d, s%d", sQoff, sCnt, sQrel)
            return
        if p.nowq:
            vm.issue("wq%d" % j)
            a.i("buffer_load_dwordx4 v[%d:%d], v%d, s[%d:%d], 0 offen", vWq + 4 * (j % QD), vWq + 4 * (j % QD) + 3, vT0 + 2, sX, sX + 3)
            return
        s = j % QD
        a.i("buffer_load_dwordx4 v[%d:%d], v%d, s[%d:%d], s%d offen%s", vWq + 4 * s, vWq + 4 * s + 3, vWqOff, sWq, sWq + 3, sQoff, p.wqflags)
        vm.issue("wq%d" % j)
        if j != NWQ - 1:
            a.i("s_add_u32 s%d, s%d, 8192", sQoff, sQoff)
    if p.xdw:
        a.i("v_lshl_add_u32 v%d, v%d, 2, v%d", vT0 + 2, vT0 + 1, vT0 + 2)
        a.i("buffer_load_dword v%d, v%d, s[%d:%d], 0 offen", vXr, vT0 + 2, sX, sX + 3)
        vm.issue("x%d" % (NX - 1))
    else:
        for j in range(NX):
            if p.rot:
                a.i("s_add_u32 s%d, s%d, %d", sT0, sSplit, j)
                a.i("s_and_b32 s%d, s%d, 3", sT0, sT0)
                a.i("s_lshl_b32 s%d, s%d, 4", sT0, sT0)
                a.i("buffer_load_dwordx4 v[%d:%d], v%d, s[%d:%d], s%d offen", vXr + 4 * j, vXr + 4 * j + 3, vT0 + 2, sX, sX + 3, sT0)
            else:
                a.i("buffer_load_dwordx4 v[%d:%d], v%d, s[%d:%d], 0 offen offset:%d", vXr + 4 * j, vXr + 4 * j + 3, vT0 + 2, sX, sX + 3, 16 * j)
            vm.issue("x%d" % j)
    for j in range(QD):
        wqload(j)
    nq = QD
    srd(sWs, sWsP, None, WSREC)
    a.i("s_lshl_b32 s%d, s%d, %d", sT1, sP, 4 if p.tags else 3)
    a.i("s_add_u32 s%d, s%d, 0x80000", sT1, sT1)
    a.i("v_mov_b32 v%d, s%d", vMlA, sT1)
    a.i("s_lshl_b32 s%d, s%d, 17", sT0, sHead)
    srd(sWo, sWop, sT0, 131072)
    srd(sDbg, sDbgP, None, 256)
    srd(sOut, sOutP, None, 2048)
    a.i("s_mov_b32 s%d, 0x05040100", sPlo)
    a.i("s_mov_b32 s%d, 0x07060302", sPhi)
    a.i("v_lshlrev_b32 v%d, 11, v%d", vWoOff, vT0)
    a.i("v_lshl_add_u32 v%d, v%d, 4, v%d", vWoOff, vT0 + 1, vWoOff)
    a.i("s_lshl_b32 s%d, s%d, 8", sT0, sW4)
    a.i("v_add_u32 v%d, s%d, v%d", vWoOff, sT0, vWoOff)
    vA = vAcc
    for e in range(8):
        a.i("v_mov_b32 v%d, 0", vA + e)
    vm.maybe_wait("x%d" % (NX - 1))
    for m in range(NWQ // 2):
        vm.wait("wq%d" % (2 * m + 1))
        if m == 0:
            ts(22)
        if m == 8:
            ts(23)
        s0 = vWq + 4 * ((2 * m) % QD)
        s1 = vWq + 4 * ((2 * m + 1) % QD)
        xr = vXr + m
        if p.xdw:
            xr = vXr + 1 + (m % 2)
            a.i("v_mov_b32_dpp v%d, v%d row_newbcast:%d row_mask:0xf bank_mask:0xf", xr, vXr, m)
        for d in range(4):
            a.i("v_perm_b32 v%d, v%d, v%d, s%d", vT0 + 2 * (d % 2), s1 + d, s0 + d, sPlo)
            a.i("v_perm_b32 v%d, v%d, v%d, s%d", vT0 + 2 * (d % 2) + 1, s1 + d, s0 + d, sPhi)
            a.i("v_dot2_f32_bf16 v%d, v%d, v%d, v%d", vA + 2 * d, vT0 + 2 * (d % 2), xr, vA + 2 * d)
            a.i("v_dot2_f32_bf16 v%d, v%d, v%d, v%d", vA + 2 * d + 1, vT0 + 2 * (d % 2) + 1, xr, vA + 2 * d + 1)
        for _ in range(2):
            if nq < NWQ:
                wqload(nq); nq += 1
                if nq == NWQ and p.late:
                    a.i("s_barrier")
    ts(24)
    reduce_scatter(vA)
    a.i("v_lshrrev_b32 v%d, 4, v%d", vT0, vLane)
    a.i("v_and_b32 v%d, 15, v%d", vT0 + 1, vLane)
    a.i("v_lshlrev_b32 v%d, 3, v%d", vT0, vT0)
    a.i("v_lshl_add_u32 v%d, v%d, 5, v%d", vT0, vT0 + 1, vT0)
    a.i("s_lshl_b32 s%d, s%d, 9", sT0, sW4)
    a.i("s_add_u32 s%d, s%d, %d", sT0, sT0, L_QP)
    a.i("v_add_u32 v%d, s%d, v%d", vT0, sT0, vT0)
    a.i("ds_write_b64 v%d, v[%d:%d]", vT0, vA, vA + 1)
    if p.zearly:
        a.i("v_mov_b32 v%d, %d", vT0 + 2, L_ZF)
        a.i("v_mov_b32 v%d, 0", vT0 + 3)
        a.i("ds_write_b32 v%d, v%d", vT0 + 2, vT0 + 3)
    a.i("s_waitcnt lgkmcnt(0)")
    ts(25)
    a.i("s_barrier")
    ts(1)
    ts(26)
    a.i("s_lshl_b32 s%d, s%d, 7", sC, sBr)
    if p.tags:
        a.i("s_mul_i32 s%d, s%d, 0x9E3779B1", sTag, sTag)
        a.i("s_add_u32 s%d, s%d, 0x7F4A7C15", sTag, sTag)
    if not p.zearly and not p.tags:
        a.i("s_cmp_lg_u32 s%d, 0", sWave)
        a.i("s_cbranch_scc1 L_noz")
        for e in range(4):
            a.i("v_mov_b32 v%d, 0", vT0 + e)
        a.i("v_lshlrev_b32 v%d, 5, v%d", vT0 + 4, vLane)
        a.i("s_lshl_b32 s%d, s%d, 11", sT1, sP)
        if not p.nozs:
            a.i("buffer_store_dwordx4 v[%d:%d], v%d, s[%d:%d], s%d offen sc1", vT0, vT0 + 3, vT0 + 4, sWs, sWs + 3, sT1)
            a.i("buffer_store_dwordx4 v[%d:%d], v%d, s[%d:%d], s%d offen offset:16 sc1", vT0, vT0 + 3, vT0 + 4, sWs, sWs + 3, sT1)
        a.i("v_mov_b32 v%d, 0", vT0 + 6)
        a.i("v_mov_b32 v%d, 1", vT0 + 7)
        a.i("s_mov_b64 exec, 1")
        if not p.nozs:
            a.i("buffer_store_dwordx2 v[%d:%d], v%d, s[%d:%d], 0 offen sc1", vT0, vT0 + 1, vMlA, sWs, sWs + 3)
        a.i("s_waitcnt vmcnt(0)")
        if not p.noz:
            a.i("buffer_atomic_add v%d, v%d, s[%d:%d], s%d offen sc1", vT0 + 7, vT0 + 6, sDbg, sDbg + 3, sC)
        a.i("s_mov_b64 exec, -1")
        a.label("L_noz")
    a.i("s_mov_b32 s%d, 0", sCur)
    NP = NWO // 2

    def wo_issue(m):
        b = vW + 8 * m
        if p.nowo:
            return
        a.i("buffer_load_dwordx4 v[%d:%d], v%d, s[%d:%d], s%d offen%s", b, b + 3, vWoOff, sWo, sWo + 3, sCur, p.woflags)
        a.i("buffer_load_dwordx4 v[%d:%d], v%d, s[%d:%d], s%d offen offset:1024%s", b + 4, b + 7, vWoOff, sWo, sWo + 3, sCur, p.woflags)
        a.i("s_add_u32 s%d, s%d, 8192", sCur, sCur)
    for m in range(min(p.PW, NP)):
        wo_issue(m)
    for m in range(NP):
        b = vW + 8 * m
        inflight = min(NP, m + p.PW) - (m + 1)
        a.i("s_waitcnt vmcnt(%d)", 2 * inflight)
        for d in range(4):
            a.i("v_perm_b32 v%d, v%d, v%d, s%d", vT0, b + 4 + d, b + d, sPlo)
            a.i("v_perm_b32 v%d, v%d, v%d, s%d", b + 4 + d, b + 4 + d, b + d, sPhi)
            a.i("v_mov_b32 v%d, v%d", b + d, vT0)
        if m + p.PW < NP:
            wo_issue(m + p.PW)
    if p.zearly and not p.noz:
        a.i("s_cmp_lg_u32 s%d, 0", sWave)
        a.i("s_cbranch_scc1 L_noz")
        a.i("v_mov_b32 v%d, %d", vT0 + 2, L_ZF)
        a.label("L_zfw")
        a.i("ds_read_b32 v%d, v%d", vT0 + 3, vT0 + 2)
        a.i("s_waitcnt lgkmcnt(0)")
        a.i("v_readfirstlane_b32 s%d, v%d", sT0, vT0 + 3)
        a.i("s_cmp_eq_u32 s%d, 0", sT0)
        a.i("s_cbranch_scc1 L_zfw")
        a.i("v_mov_b32 v%d, 0", vT0 + 6)
        a.i("v_mov_b32 v%d, 1", vT0 + 7)
        a.i("s_mov_b64 exec, 1")
        a.i("buffer_atomic_add v%d, v%d, s[%d:%d], s%d offen sc1", vT0 + 7, vT0 + 6, sDbg, sDbg + 3, sC)
        a.i("s_mov_b64 exec, -1")
        a.label("L_noz")
    if p.touchout:
        a.i("v_mov_b32 v%d, 0", vT0 + 2)
        a.i("s_lshl_b32 s%d, s%d, 10", sT0, sBr)
        a.i("s_mov_b64 exec, 1")
        a.i("buffer_load_dword v%d, v%d, s[%d:%d], s%d offen", vDum, vT0 + 2, sOut, sOut + 3, sT0)
        a.i("s_mov_b64 exec, -1")
        a.i("s_waitcnt vmcnt(0)")
    a.i("v_lshlrev_b32 v%d, 3, v%d", vOpA, vLane)
    a.i("v_add_u32 v%d, %d, v%d", vOpA, L_OP, vOpA)
    a.i("v_mov_b32 v%d, %d", vT0 + 7, L_ML)
    a.i("v_mov_b32 v%d, 0", vT0 + 6)
    a.i("v_mov_b32 v%d, 0x10000", vTk)
    for e in range(8):
        a.i("v_mov_b32 v%d, 0", vAcc + e)
    ts(2)
    a.i("s_barrier")
    ts(10)
    a.i("s_cmp_lg_u32 s%d, 0", sWave)
    a.i("s_cbranch_scc1 L_notk")
    if not p.fixfin:
        a.i("s_mov_b64 exec, 1")
        a.i("buffer_atomic_add v%d, v%d, s[%d:%d], s%d offen sc0 sc1", vTk, vT0 + 6, sDbg, sDbg + 3, sC)
        a.i("s_mov_b64 exec, -1")
    a.label("L_notk")
    for w in range(4):
        a.i("ds_read_b64 v[%d:%d], v%d offset:%d", vS + 2 * w, vS + 2 * w + 1, vOpA, 512 * w)
    a.i("ds_read_b128 v[%d:%d], v%d", vT0, vT0 + 3, vT0 + 7)
    a.i("ds_read_b128 v[%d:%d], v%d offset:16", vQ, vQ + 3, vT0 + 7)
    a.i("s_waitcnt lgkmcnt(0)")
    mc = [vT0, vT0 + 2, vQ, vQ + 2]
    a.i("v_max3_f32 v%d, v%d, v%d, v%d", vM, mc[0], mc[1], mc[2])
    a.i("v_max_f32 v%d, v%d, v%d", vM, vM, mc[3])
    for w in range(4):
        a.i("v_sub_f32 v%d, v%d, v%d", mc[w], mc[w], vM)
    for w in range(4):
        a.i("v_exp_f32 v%d, v%d", mc[w], mc[w])
    a.i("v_mul_f32 v%d, v%d, v%d", vL, mc[0], mc[0] + 1)
    for w in range(1, 4):
        a.i("v_fmac_f32 v%d, v%d, v%d", vL, mc[w], mc[w] + 1)
    a.i("v_pk_mul_f32 v[%d:%d], v[%d:%d], v[%d:%d] op_sel_hi:[1,0]", vS, vS + 1, vS, vS + 1, mc[0], mc[0] + 1)
    for w in range(1, 4):
        a.i("v_pk_fma_f32 v[%d:%d], v[%d:%d], v[%d:%d], v[%d:%d] op_sel_hi:[1,0,1]", vS, vS + 1, vS + 2 * w, vS + 2 * w + 1, mc[w], mc[w] + 1, vS, vS + 1)
    a.i("v_cvt_pk_bf16_f32 v%d, v%d, v%d", vS, vS, vS + 1)
    ts(11)
    a(".p2align 3")
    for m in range(16):
        t = vT0 + (m % 2)
        a.i("v_mov_b32_dpp v%d, v%d row_newbcast:%d row_mask:0xf bank_mask:0xf", t, vS, m)
        for d in range(4):
            a.i("v_dot2_f32_bf16 v%d, v%d, v%d, v%d", vAcc + 2 * d, vW + 8 * m + d, t, vAcc + 2 * d)
            a.i("v_dot2_f32_bf16 v%d, v%d, v%d, v%d", vAcc + 2 * d + 1, vW + 8 * m + 4 + d, t, vAcc + 2 * d + 1)
    ts(12)
    reduce_scatter(vAcc)
    if p.tags:
        a.i("v_cvt_pk_bf16_f32 v%d, v%d, v%d", vAcc, vAcc, vAcc + 1)
        a.i("v_mov_b32 v%d, s%d", vAcc + 1, sTag)
    else:
        a.i("v_max_u32 v%d, 1, v%d", vAcc, vAcc)
        a.i("v_max_u32 v%d, 1, v%d", vAcc + 1, vAcc + 1)
    a.i("buffer_store_dwordx2 v[%d:%d], v%d, s[%d:%d], 0 offen sc1", vAcc, vAcc + 1, vYoff, sWs, sWs + 3)
    a.i("s_cmp_lg_u32 s%d, 0", sWave)
    a.i("s_cbranch_scc1 L_done")
    if p.tags:
        a.i("v_mov_b32 v%d, v%d", vT0, vM)
        a.i("v_mov_b32 v%d, s%d", vT0 + 1, sTag)
        a.i("v_mov_b32 v%d, v%d", vT0 + 2, vL)
        a.i("v_mov_b32 v%d, s%d", vT0 + 3, sTag)
        a.i("s_mov_b64 exec, 1")
        a.i("buffer_store_dwordx4 v[%d:%d], v%d, s[%d:%d], 0 offen sc1", vT0, vT0 + 3, vMlA, sWs, sWs + 3)
        a.i("s_mov_b64 exec, -1")
        a.i("s_nop 1")
    else:
        a.i("v_max_u32 v%d, 1, v%d", vT0 + 2, vM)
        a.i("v_max_u32 v%d, 1, v%d", vT0 + 3, vL)
        a.i("s_mov_b64 exec, 1")
        a.i("buffer_store_dwordx2 v[%d:%d], v%d, s[%d:%d], 0 offen sc1", vT0 + 2, vT0 + 3, vMlA, sWs, sWs + 3)
        a.i("s_mov_b64 exec, -1")
    ts(13)
    a.i("v_lshrrev_b32 v%d, 2, v%d", vT0, vLane)
    a.i("v_and_b32 v%d, 3, v%d", vT0 + 1, vLane)
    a.i("v_lshlrev_b32 v%d, 11, v%d", vYoff, vT0)
    a.i("v_lshl_add_u32 v%d, v%d, 4, v%d", vYoff, vT0 + 1, vYoff)
    a.i("v_lshlrev_b32 v%d, %d, v%d", vMlA, 4 if p.tags else 3, vT0)
    if p.fixfin:
        a.i("s_cmp_lg_u32 s%d, 3", sSplit)
        a.i("s_cbranch_scc1 L_done")
        a.i("s_mov_b32 s%d, s%d", sNext, sHead)
    else:
        a.i("s_waitcnt vmcnt(2)")
        a.i("v_readfirstlane_b32 s%d, v%d", sTk, vTk)
        a.i("s_lshr_b32 s%d, s%d, 16", sT0, sTk)
        a.i("s_cmp_lt_u32 s%d, %d", sT0, 128 - F)
        a.i("s_cbranch_scc1 L_done")
        a.i("s_sub_u32 s%d, s%d, %d", sNext, sT0, 128 - F)
    if not p.noz and not p.fixfin and not p.tags:
        a.i("s_and_b32 s%d, s%d, 0xffff", sT0, sTk)
        a.i("s_cmp_eq_u32 s%d, 128", sT0)
        a.i("s_cbranch_scc1 L_zok")
        a.i("s_mov_b32 s%d, 0x10000", sSpin)
        a.label("L_zspin")
        a.i("s_sub_u32 s%d, s%d, 1", sSpin, sSpin)
        a.i("s_cmp_eq_u32 s%d, 0", sSpin)
        a.i("s_cbranch_scc1 L_zok")
        a.i("s_mov_b64 exec, 1")
        a.i("buffer_load_dword v%d, v%d, s[%d:%d], s%d offen sc1", vTk, vT0 + 6, sDbg, sDbg + 3, sC)
        a.i("s_waitcnt vmcnt(0)")
        a.i("v_readfirstlane_b32 s%d, v%d", sTk, vTk)
        a.i("s_mov_b64 exec, -1")
        a.i("s_and_b32 s%d, s%d, 0xffff", sT0, sTk)
        a.i("s_cmp_eq_u32 s%d, 128", sT0)
        a.i("s_cbranch_scc0 L_zspin")
    a.label("L_zok")
    ts(14)
    vY = vW
    vMl = vW + 32
    a.i("s_lshl_b32 s%d, s%d, 18", sT0, sBr)
    a.i("s_lshl_b32 s%d, s%d, 6", sT1, sNext)
    a.i("s_add_u32 s%d, s%d, s%d", sQoff, sT0, sT1)
    a.i("s_lshl_b32 s%d, s%d, %d", sT0, sBr, 11 if p.tags else 10)
    a.i("s_add_u32 s%d, s%d, 0x80000", sCnt, sT0)
    if p.mlpoll:
        a.i("v_lshlrev_b32 v%d, 4, v%d", vT0 + 1, vLane)
        a.i("s_mov_b32 s%d, 0x10000", sSpin)
        a.label("L_poll1")
        a.i("buffer_load_dwordx4 v[%d:%d], v%d, s[%d:%d], s%d offen sc1", vMl, vMl + 3, vT0 + 1, sWs, sWs + 3, sCnt)
        a.i("s_waitcnt vmcnt(0)")
        a.i("v_min3_u32 v%d, v%d, v%d, v%d", vT0, vMl, vMl + 1, vMl + 2)
        a.i("v_min_u32 v%d, v%d, v%d", vT0, vT0, vMl + 3)
        a.i("v_cmp_eq_u32 vcc, 0, v%d", vT0)
        a.i("s_sub_u32 s%d, s%d, 1", sSpin, sSpin)
        a.i("s_cbranch_scc1 L_poll1ok")
        a.i("s_cbranch_vccz L_poll1ok")
        a.i("s_sleep %d", p.mlpoll)
        a.i("s_branch L_poll1")
        a.label("L_poll1ok")
    if p.tags:
        vMl = vW + 32
        vLo, vHi = vT0, vT0 + 1
        a.i("s_mov_b32 s%d, 0x10000", sSpin)
        a.label("L_poll")
        a.i("s_mov_b32 s%d, s%d", sCur, sQoff)
        for j in range(8):
            a.i("buffer_load_dwordx4 v[%d:%d], v%d, s[%d:%d], s%d offen offset:%d sc1", vMl + 4 * j, vMl + 4 * j + 3, vMlA, sWs, sWs + 3, sCnt, 256 * j)
        for j in range(8):
            a.i("buffer_load_dwordx4 v[%d:%d], v%d, s[%d:%d], s%d offen sc1", vY + 4 * j, vY + 4 * j + 3, vYoff, sWs, sWs + 3, sCur)
            if j != 7:
                a.i("s_add_u32 s%d, s%d, 32768", sCur, sCur)
        a.i("v_mov_b32 v%d, s%d", vLo, sTag)
        a.i("v_mov_b32 v%d, s%d", vHi, sTag)
        a.i("s_waitcnt vmcnt(8)")
        for j in range(8):
            a.i("v_min3_u32 v%d, v%d, v%d, v%d", vLo, vLo, vMl + 4 * j + 1, vMl + 4 * j + 3)
            a.i("v_max3_u32 v%d, v%d, v%d, v%d", vHi, vHi, vMl + 4 * j + 1, vMl + 4 * j + 3)
        for j in range(8):
            a.i("v_max_f32_dpp v%d, v%d, v%d row_ror:4 row_mask:0xf bank_mask:0xf", vS + j, vMl + 4 * j, vMl + 4 * j)
        for j in range(8):
            a.i("v_max_f32_dpp v%d, v%d, v%d row_ror:8 row_mask:0xf bank_mask:0xf", vS + j, vS + j, vS + j)
        for j in range(8):
            a.i("v_sub_f32 v%d, v%d, v%d", vS + j, vMl + 4 * j, vS + j)
        for j in range(8):
            a.i("v_exp_f32 v%d, v%d", vS + j, vS + j)
        for j in range(8):
            a.i("v_mul_f32 v%d, v%d, v%d", vMl + 4 * j + 2, vMl + 4 * j + 2, vS + j)
        for r in (4, 8):
            for j in range(8):
                a.i("v_add_f32_dpp v%d, v%d, v%d row_ror:%d row_mask:0xf bank_mask:0xf", vMl + 4 * j + 2, vMl + 4 * j + 2, vMl + 4 * j + 2, r)
        for j in range(8):
            a.i("v_rcp_f32 v%d, v%d", vMl + 4 * j + 2, vMl + 4 * j + 2)
        for j in range(8):
            a.i("v_mul_f32 v%d, v%d, v%d", vS + j, vS + j, vMl + 4 * j + 2)
        a.i("s_waitcnt vmcnt(0)")
        for j in range(8):
            a.i("v_min3_u32 v%d, v%d, v%d, v%d", vLo, vLo, vY + 4 * j + 1, vY + 4 * j + 3)
            a.i("v_max3_u32 v%d, v%d, v%d, v%d", vHi, vHi, vY + 4 * j + 1, vY + 4 * j + 3)
        a.i("v_cmp_ne_u32 vcc, v%d, v%d", vLo, vHi)
        a.i("s_sub_u32 s%d, s%d, 1", sSpin, sSpin)
        a.i("s_cbranch_scc1 L_pollok")
        a.i("s_cbranch_vccnz L_poll")
        a.label("L_pollok")
        ts(15)
        a.i("s_cmp_lg_u32 s%d, 0", sNext)
        a.i("s_cbranch_scc1 L_noep")
        a.i("s_lshl_b32 s%d, s%d, 7", sT0, sBr)
        a.i("s_add_u32 s%d, s%d, 0x90000", sT0, sT0)
        a.i("v_mov_b32 v%d, 0", vT0 + 2)
        a.i("v_mov_b32 v%d, s%d", vT0 + 3, sTag)
        a.i("s_mov_b64 exec, 1")
        a.i("buffer_store_dword v%d, v%d, s[%d:%d], s%d offen sc1", vT0 + 3, vT0 + 2, sWs, sWs + 3, sT0)
        a.i("s_mov_b64 exec, -1")
        a.label("L_noep")
        for j in range(8):
            y = vY + 4 * j
            a.i("v_lshlrev_b32 v%d, 16, v%d", vT0 + 4, y)
            a.i("v_and_b32 v%d, 0xffff0000, v%d", vT0 + 5, y)
            a.i("v_lshlrev_b32 v%d, 16, v%d", vT0 + 6, y + 2)
            a.i("v_and_b32 v%d, 0xffff0000, v%d", vT0 + 7, y + 2)
            for e in range(4):
                if j == 0:
                    a.i("v_mul_f32 v%d, v%d, v%d", vAcc + e, vS, vT0 + 4 + e)
                else:
                    a.i("v_fmac_f32 v%d, v%d, v%d", vAcc + e, vS + j, vT0 + 4 + e)
    else:
        a.i("s_mov_b32 s%d, 0x10000", sSpin)
        a.label("L_poll")
        a.i("s_mov_b32 s%d, s%d", sCur, sQoff)
        for j in range(8):
            a.i("buffer_load_dwordx2 v[%d:%d], v%d, s[%d:%d], s%d offen offset:%d sc1", vMl + 2 * j, vMl + 2 * j + 1, vMlA, sWs, sWs + 3, sCnt, 128 * j)
        for j in range(8):
            a.i("buffer_load_dwordx4 v[%d:%d], v%d, s[%d:%d], s%d offen sc1", vY + 4 * j, vY + 4 * j + 3, vYoff, sWs, sWs + 3, sCur)
            if j != 7:
                a.i("s_add_u32 s%d, s%d, 32768", sCur, sCur)
        a.i("s_waitcnt vmcnt(8)")
        a.i("v_min3_u32 v%d, v%d, v%d, v%d", vT0, vMl, vMl + 1, vMl + 2)
        for k in range(3, 15, 2):
            a.i("v_min3_u32 v%d, v%d, v%d, v%d", vT0, vT0, vMl + k, vMl + k + 1)
        a.i("v_min_u32 v%d, v%d, v%d", vT0, vT0, vMl + 15)
        if p.fastpoll:
            a.i("v_cmp_eq_u32 vcc, 0, v%d", vT0)
            a.i("s_sub_u32 s%d, s%d, 1", sSpin, sSpin)
            a.i("s_cbranch_scc1 L_mlok")
            a.i("s_cbranch_vccnz L_poll")
            a.label("L_mlok")
        for j in range(8):
            a.i("v_max_f32_dpp v%d, v%d, v%d row_ror:4 row_mask:0xf bank_mask:0xf", vS + j, vMl + 2 * j, vMl + 2 * j)
        for j in range(8):
            a.i("v_max_f32_dpp v%d, v%d, v%d row_ror:8 row_mask:0xf bank_mask:0xf", vS + j, vS + j, vS + j)
        for j in range(8):
            a.i("v_sub_f32 v%d, v%d, v%d", vS + j, vMl + 2 * j, vS + j)
        for j in range(8):
            a.i("v_exp_f32 v%d, v%d", vS + j, vS + j)
        for j in range(8):
            a.i("v_mul_f32 v%d, v%d, v%d", vMl + 2 * j + 1, vMl + 2 * j + 1, vS + j)
        for j in range(8):
            a.i("v_add_f32_dpp v%d, v%d, v%d row_ror:4 row_mask:0xf bank_mask:0xf", vMl + 2 * j + 1, vMl + 2 * j + 1, vMl + 2 * j + 1)
        for j in range(8):
            a.i("v_add_f32_dpp v%d, v%d, v%d row_ror:8 row_mask:0xf bank_mask:0xf", vMl + 2 * j + 1, vMl + 2 * j + 1, vMl + 2 * j + 1)
        for j in range(8):
            a.i("v_rcp_f32 v%d, v%d", vMl + 2 * j + 1, vMl + 2 * j + 1)
        for j in range(8):
            a.i("v_mul_f32 v%d, v%d, v%d", vS + j, vS + j, vMl + 2 * j + 1)
        a.i("s_waitcnt vmcnt(0)")
        for k in range(0, 32, 2):
            a.i("v_min3_u32 v%d, v%d, v%d, v%d", vT0, vT0, vY + k, vY + k + 1)
        a.i("v_cmp_eq_u32 vcc, 0, v%d", vT0)
        a.i("s_sub_u32 s%d, s%d, 1", sSpin, sSpin)
        a.i("s_cbranch_scc1 L_pollok")
        a.i("s_cbranch_vccnz L_poll")
        a.label("L_pollok")
        ts(15)
        for e in range(4):
            a.i("v_mul_f32 v%d, v%d, v%d", vAcc + e, vS, vY + e)
        for j in range(1, 8):
            for e in range(4):
                a.i("v_fmac_f32 v%d, v%d, v%d", vAcc + e, vS + j, vY + 4 * j + e)
    for r in (4, 8):
        for e in range(4):
            a.i("v_add_f32_dpp v%d, v%d, v%d row_ror:%d row_mask:0xf bank_mask:0xf", vAcc + e, vAcc + e, vAcc + e, r)
    for e in range(2):
        a.i("v_permlane32_swap_b32 v%d, v%d", vAcc + e, vAcc + 2 + e)
    for e in range(2):
        a.i("v_add_f32 v%d, v%d, v%d", vAcc + e, vAcc + e, vAcc + 2 + e)
    a.i("v_permlane16_swap_b32 v%d, v%d", vAcc, vAcc + 1)
    a.i("v_add_f32 v%d, v%d, v%d", vAcc, vAcc, vAcc + 1)
    a.i("v_lshrrev_b32 v%d, 4, v%d", vT0, vLane)
    a.i("v_and_b32 v%d, 3, v%d", vT0 + 1, vLane)
    a.i("v_lshl_add_u32 v%d, v%d, 2, v%d", vT0, vT0 + 1, vT0)
    a.i("v_lshlrev_b32 v%d, 1, v%d", vT0, vT0)
    a.i("v_cvt_pk_bf16_f32 v%d, v%d, v%d", vAcc, vAcc, vAcc)
    a.i("s_lshl_b32 s%d, s%d, 10", sT0, sBr)
    a.i("s_lshl_b32 s%d, s%d, 5", sT1, sNext)
    a.i("s_add_u32 s%d, s%d, s%d", sT0, sT0, sT1)
    a.i("s_mov_b32 exec_lo, 0x000f000f")
    a.i("s_mov_b32 exec_hi, 0x000f000f")
    a.i("buffer_store_short v%d, v%d, s[%d:%d], s%d offen%s", vAcc, vT0, sOut, sOut + 3, sT0, p.outflags)
    if p.diag == 4:
        a.i("s_waitcnt vmcnt(0)")
    ts(16)
    a.label("L_done")
    diag_store("h")
    a.i("s_endpgm")

    a.label("L_stream")
    a.i("s_lshl_b32 s%d, s%d, %d", sT0, sW4, lg(T * 1024))
    stride = NS * T * 1024
    a.i("v_lshlrev_b32 v%d, 4, v%d", vOffKV, vLane)
    a.i("v_add_u32 v%d, s%d, v%d", vOffKV, sT0, vOffKV)
    for j in range(1, nOff):
        a.i("v_add_u32 v%d, %d, v%d", vOffKV + j, 4096 * j, vOffKV)
    a.i("s_lshl_b32 s%d, s%d, 22", sT0, sHead)
    a.i("s_lshl_b32 s%d, s%d, 20", sT1, sSplit)
    a.i("s_add_u32 s%d, s%d, s%d", sCur, sT0, sT1)
    a.i("s_waitcnt lgkmcnt(0)")
    a.i("s_cmp_eq_u32 s%d, 0", sBr)
    a.i("s_cselect_b64 s[18:19], s[18:19], s[28:29]")
    a.i("s_cselect_b64 s[20:21], s[20:21], s[30:31]")
    srd(sK, sKp, sCur, 1 << 20)
    srd(sV, sVp, sCur, 1 << 20)
    if p.zearly:
        srd(sWs, sWsP, None, WSREC)
        a.i("s_cmp_lg_u32 s%d, 4", sWave)
        a.i("s_cbranch_scc1 L_nozs")
        for e in range(4):
            a.i("v_mov_b32 v%d, 0", vT0 + 4 + e)
        a.i("v_lshlrev_b32 v%d, 5, v%d", vT0 + 2, vLane)
        a.i("s_lshl_b32 s%d, s%d, 11", sT1, sP)
        a.i("buffer_store_dwordx4 v[%d:%d], v%d, s[%d:%d], s%d offen sc1", vT0 + 4, vT0 + 7, vT0 + 2, sWs, sWs + 3, sT1)
        a.i("buffer_store_dwordx4 v[%d:%d], v%d, s[%d:%d], s%d offen offset:16 sc1", vT0 + 4, vT0 + 7, vT0 + 2, sWs, sWs + 3, sT1)
        a.i("s_lshl_b32 s%d, s%d, 3", sT1, sP)
        a.i("s_add_u32 s%d, s%d, 0x80000", sT1, sT1)
        a.i("v_mov_b32 v%d, 0", vT0 + 2)
        a.i("s_mov_b64 exec, 1")
        a.i("buffer_store_dwordx2 v[%d:%d], v%d, s[%d:%d], s%d offen sc1", vT0 + 4, vT0 + 5, vT0 + 2, sWs, sWs + 3, sT1)
        a.i("s_mov_b64 exec, -1")
        a.label("L_nozs")

    def kvload(j, soff, base=None):
        which, i = ("K", j) if j < T else ("V", j - T)
        srdb = sK if which == "K" else sV
        reg = (vK if base is None else base) + 4 * j
        a.i("buffer_load_dwordx4 v[%d:%d], v%d, s[%d:%d], %s offen offset:%d%s", reg, reg + 3,
            vOffKV + i // 4, srdb, srdb + 3, soff, (i % 4) * 1024, kvf)
    MASK = (1 << 20) - 1
    if p.stagger:
        a.i("s_mul_i32 s%d, s2, %d", sCur, p.stagger * stride)
        a.i("s_and_b32 s%d, s%d, 0x%x", sCur, sCur, MASK)
    else:
        a.i("s_mov_b32 s%d, 0", sCur)
    a.i("s_add_u32 s%d, s%d, %d", sNext, sCur, stride)
    a.i("s_and_b32 s%d, s%d, 0x%x", sNext, sNext, MASK)
    if p.single and p.late:
        for j in range(R):
            kvload(j, "s%d" % sCur, vB)
        a.i("s_barrier")
        for j in range(N):
            kvload(j, "s%d" % sNext)
    elif p.single:
        for j in range(N):
            kvload(j, "s%d" % sCur)
    elif p.pre:
        seq = [(j, sCur, vB) for j in range(R)] + [(j, sNext, None) for j in range(N)]
        for k, (j, so, base) in enumerate(seq):
            if k >= p.pre:
                a.i("s_waitcnt vmcnt(%d)", p.pre - 1)
            kvload(j, "s%d" % so, base)
    else:
        for j in range(R):
            kvload(j, "s%d" % sCur)
        if p.pf:
            assert T == 4
            a.i("s_lshl_b32 s%d, s%d, 12", sT0, sW4)
            a.i("v_lshlrev_b32 v%d, 6, v%d", vTk, vLane)
            a.i("v_add_u32 v%d, s%d, v%d", vTk, sT0, vTk)
            a.i("s_mov_b32 s%d, s%d", sT1, sNext)
            for k in range(p.pf):
                a.i("buffer_load_dword v%d, v%d, s[%d:%d], s%d offen%s", vDum, vTk, sK, sK + 3, sT1, p.pfflags)
                a.i("buffer_load_dword v%d, v%d, s[%d:%d], s%d offen%s", vDum, vTk, sV, sV + 3, sT1, p.pfflags)
                if k + 1 < p.pf:
                    a.i("s_add_u32 s%d, s%d, %d", sT1, sT1, stride)
                    a.i("s_and_b32 s%d, s%d, 0x%x", sT1, sT1, MASK)
    if p.diag:
        srd(sWs, sWsP, None, WSREC)
    a.i("s_mov_b32 s%d, %s", sC, f32hex(CLOG))
    a.i("s_lshl_b32 s%d, s%d, 9", sT0, sW4)
    a.i("s_add_u32 s%d, s%d, %d", sT0, sT0, L_OP)
    a.i("v_lshlrev_b32 v%d, 3, v%d", vOpA, vLane)
    a.i("v_add_u32 v%d, s%d, v%d", vOpA, sT0, vOpA)
    a.i("s_lshl_b32 s%d, s%d, 3", sT0, sW4)
    a.i("s_add_u32 s%d, s%d, %d", sT0, sT0, L_ML)
    a.i("v_mov_b32 v%d, s%d", vMlA, sT0)
    a.i("v_lshlrev_b32 v%d, 5, v%d", vT0 + 1, vT0 + 1)
    a.i("v_add_u32 v%d, %d, v%d", vQP, L_QP, vT0 + 1)
    if p.single:
        a.i("s_mov_b32 s79, s%d", sNext)
    if p.single and p.dry:
        a.i("s_mov_b32 s10, 1")
        a.i("s_mov_b64 exec, 0")
        a.i("s_branch L_loop")
        a.label("L_dryret")
        a.i("s_mov_b64 exec, -1")
        a.i("s_mov_b32 s10, 0")
    a.i("s_barrier")
    a.i("v_mov_b32 v%d, v%d", vT0 + 1, vQP)
    for w in range(4):
        a.i("ds_read_b128 v[%d:%d], v%d offset:%d", vQP + 8 * w, vQP + 8 * w + 3, vT0 + 1, w * 512)
        a.i("ds_read_b128 v[%d:%d], v%d offset:%d", vQP + 8 * w + 4, vQP + 8 * w + 7, vT0 + 1, w * 512 + 16)
    for e in range(8):
        a.i("v_mov_b32 v%d, 0", vAcc + e)
    a.i("v_mov_b32 v%d, 0xff800000", vMc)
    a.i("v_mov_b32 v%d, 0xff800000", vM)
    a.i("v_mov_b32 v%d, 0", vL)
    a.i("s_mov_b32 s%d, %d", sCnt, (NIT - 1 if p.late else NIT) if p.single else NIT - 2)
    a.i("s_waitcnt lgkmcnt(0)")
    for d in range(4):
        a.i("v_pk_add_f32 v[%d:%d], v[%d:%d], v[%d:%d]", vQP + 2 * d, vQP + 2 * d + 1, vQP + 2 * d, vQP + 2 * d + 1, vQP + 8 + 2 * d, vQP + 9 + 2 * d)
        a.i("v_pk_add_f32 v[%d:%d], v[%d:%d], v[%d:%d]", vQP + 16 + 2 * d, vQP + 17 + 2 * d, vQP + 16 + 2 * d, vQP + 17 + 2 * d, vQP + 24 + 2 * d, vQP + 25 + 2 * d)
    for d in range(4):
        a.i("v_pk_add_f32 v[%d:%d], v[%d:%d], v[%d:%d]", vQP + 2 * d, vQP + 2 * d + 1, vQP + 2 * d, vQP + 2 * d + 1, vQP + 16 + 2 * d, vQP + 17 + 2 * d)
    for d in range(4):
        a.i("v_cvt_pk_bf16_f32 v%d, v%d, v%d", vQ + d, vQP + 2 * d, vQP + 2 * d + 1)
    ts(1)

    def body(kind):
        bK, bV = (vB, vB + 4 * T) if kind == "pre" else (vK, vV)

        def wait(j):
            if kind == "pre":
                if j >= R - N + (N - min(N, p.pre)) or True:
                    n = None
                a.i("s_waitcnt vmcnt(%d)", (R - 1 - j) + N)
                return
            if kind == "first":
                n = (R - 1 - j) + max(0, j - (R - N)) + 2 * p.pf
            elif kind == "mid":
                n = N - 1
            else:
                n = min(R - 1, j + N - 1) - j
            a.i("s_waitcnt vmcnt(%d)", n)

        def issue(j):
            if kind == "pre":
                return
            k = j + N
            if k < R:
                if kind != "first":
                    kvload(k, "s%d" % sCur)
            elif kind != "last":
                kvload(k - R, "s%d" % sNext)
        for i in range(T):
            wait(i)
            k = bK + 4 * i
            a.i("v_dot2_f32_bf16 v%d, v%d, v%d, 0", vS + i, k, vQ)
            for d in range(1, 4):
                a.i("v_dot2_f32_bf16 v%d, v%d, v%d, v%d", vS + i, k + d, vQ + d, vS + i)
            issue(i)
        for r in (8, 4, 2, 1):
            for i in range(T):
                a.i("v_add_f32_dpp v%d, v%d, v%d row_ror:%d row_mask:0xf bank_mask:0xf", vS + i, vS + i, vS + i, r)
        a.i("v_max3_f32 v%d, v%d, v%d, v%d", vM, vM, vS, vS + 1)
        for i in range(2, T, 2):
            a.i("v_max3_f32 v%d, v%d, v%d, v%d", vM, vM, vS + i, vS + i + 1)
        a.i("v_mul_f32 v%d, s%d, v%d", vT0, sC, vM)
        a.i("v_sub_f32 v%d, v%d, v%d", vAl, vMc, vT0)
        a.i("v_mov_b32 v%d, v%d", vMc, vT0)
        a.i("v_exp_f32 v%d, v%d", vAl, vAl)
        for i in range(T):
            a.i("v_fma_f32 v%d, v%d, s%d, -v%d", vS + i, vS + i, sC, vMc)
        for i in range(T):
            a.i("v_exp_f32 v%d, v%d", vS + i, vS + i)
        a.i("v_mul_f32 v%d, v%d, v%d", vL, vL, vAl)
        for d in range(4):
            a.i("v_pk_mul_f32 v[%d:%d], v[%d:%d], v[%d:%d] op_sel:[0,%d] op_sel_hi:[1,%d]", vAcc + 2 * d, vAcc + 2 * d + 1,
                vAcc + 2 * d, vAcc + 2 * d + 1, vAl & ~1, (vAl & ~1) + 1, vAl & 1, vAl & 1)
        for i in range(T):
            a.i("v_add_f32 v%d, v%d, v%d", vL, vL, vS + i)
        for i in range(T):
            wait(T + i)
            vv = bV + 4 * i
            sp = (vS + i) & ~1
            hi = (vS + i) & 1
            for d in range(4):
                t = vT0 + 2 * d
                a.i("v_lshlrev_b32 v%d, 16, v%d", t, vv + d)
                a.i("v_and_b32 v%d, 0xffff0000, v%d", t + 1, vv + d)
            for d in range(4):
                t = vT0 + 2 * d
                a.i("v_pk_fma_f32 v[%d:%d], v[%d:%d], v[%d:%d], v[%d:%d] op_sel:[0,%d,0] op_sel_hi:[1,%d,1]", vAcc + 2 * d, vAcc + 2 * d + 1,
                    t, t + 1, sp, sp + 1, vAcc + 2 * d, vAcc + 2 * d + 1, hi, hi)
            issue(T + i)

    if p.single:
        sNr, sDry = 79, 10
        if p.late:
            body("pre")
            a.i("s_mov_b32 s%d, s%d", sCur, sNext)
            a.i("s_add_u32 s%d, s%d, %d", sNr, sNext, stride)
            a.i("s_and_b32 s%d, s%d, 0x%x", sNr, sNr, MASK)
            a.i("s_mov_b32 s%d, s%d", sNext, sNr)
        a(".p2align 6")
        a.label("L_loop")
        body("mid")
        if p.dry:
            a.i("s_cmp_lg_u32 s%d, 0", sDry)
            a.i("s_cbranch_scc1 L_dryret")
        a.i("s_mov_b32 s%d, s%d", sCur, sNr)
        a.i("s_add_u32 s%d, s%d, %d", sNr, sNr, stride)
        a.i("s_and_b32 s%d, s%d, 0x%x", sNr, sNr, MASK)
        a.i("s_sub_u32 s%d, s%d, 1", sCnt, sCnt)
        a.i("s_cmp_eq_u32 s%d, 1", sCnt)
        a.i("s_cselect_b32 s%d, 0x100000, s%d", sNext, sNr)
        a.i("s_cmp_lg_u32 s%d, 0", sCnt)
        a.i("s_cbranch_scc1 L_loop")
    else:
        body("pre" if p.pre else "first")
        if p.zearly:
            a.i("s_cmp_lg_u32 s%d, 4", sWave)
            a.i("s_cbranch_scc1 L_nozf")
            a.i("v_mov_b32 v%d, %d", vT0, L_ZF)
            a.i("v_mov_b32 v%d, 1", vT0 + 1)
            a.i("ds_write_b32 v%d, v%d", vT0, vT0 + 1)
            a.label("L_nozf")
        a.i("s_mov_b32 s%d, s%d", sCur, sNext)
        a.i("s_add_u32 s%d, s%d, %d", sNext, sNext, stride)
        a.i("s_and_b32 s%d, s%d, 0x%x", sNext, sNext, MASK)
        a(".p2align 6")
        a.label("L_loop")
        body("mid")
        if p.diag == 6:
            for k, it in enumerate((1, 3, 7, 15, 31, 47)):
                a.i("s_cmp_lg_u32 s%d, %d", sCnt, NIT - 1 - it)
                a.i("s_cbranch_scc1 L_ps%d", k)
                a.i("s_memrealtime s[%d:%d]", sTS + 2 + 2 * k, sTS + 3 + 2 * k)
                a.label("L_ps%d" % k)
        a.i("s_mov_b32 s%d, s%d", sCur, sNext)
        a.i("s_add_u32 s%d, s%d, %d", sNext, sNext, stride)
        a.i("s_and_b32 s%d, s%d, 0x%x", sNext, sNext, MASK)
        a.i("s_sub_u32 s%d, s%d, 1", sCnt, sCnt)
        a.i("s_cmp_lg_u32 s%d, 0", sCnt)
        a.i("s_cbranch_scc1 L_loop")
        body("last")
    ts(2)
    ts(10)
    a.i("v_mov_b32 v%d, v%d", vT0, vMc)
    a.i("v_mov_b32 v%d, v%d", vT0 + 1, vMc)
    a.i("v_permlane32_swap_b32 v%d, v%d", vT0, vT0 + 1)
    a.i("v_max_f32 v%d, v%d, v%d", vT0, vT0, vT0 + 1)
    a.i("v_mov_b32 v%d, v%d", vT0 + 1, vT0)
    a.i("v_permlane16_swap_b32 v%d, v%d", vT0, vT0 + 1)
    a.i("v_max_f32 v%d, v%d, v%d", vT0 + 2, vT0, vT0 + 1)
    a.i("v_sub_f32 v%d, v%d, v%d", vAl, vMc, vT0 + 2)
    a.i("v_exp_f32 v%d, v%d", vAl, vAl)
    a.i("v_mul_f32 v%d, v%d, v%d", vL, vL, vAl)
    for d in range(4):
        a.i("v_pk_mul_f32 v[%d:%d], v[%d:%d], v[%d:%d] op_sel:[0,%d] op_sel_hi:[1,%d]", vAcc + 2 * d, vAcc + 2 * d + 1,
            vAcc + 2 * d, vAcc + 2 * d + 1, vAl & ~1, (vAl & ~1) + 1, vAl & 1, vAl & 1)
    a.i("v_mov_b32 v%d, v%d", vT0 + 1, vL)
    a.i("v_permlane32_swap_b32 v%d, v%d", vL, vT0 + 1)
    a.i("v_add_f32 v%d, v%d, v%d", vL, vL, vT0 + 1)
    a.i("v_mov_b32 v%d, v%d", vT0 + 1, vL)
    reduce_scatter(vAcc)
    a.i("v_permlane16_swap_b32 v%d, v%d", vL, vT0 + 1)
    a.i("v_add_f32 v%d, v%d, v%d", vT0 + 3, vL, vT0 + 1)
    a.i("ds_write_b64 v%d, v[%d:%d]", vOpA, vAcc, vAcc + 1)
    a.i("s_mov_b64 exec, 1")
    a.i("ds_write_b64 v%d, v[%d:%d]", vMlA, vT0 + 2, vT0 + 3)
    a.i("s_waitcnt lgkmcnt(0)")
    ts(11)
    a.i("s_barrier")
    diag_store("s")
    a.label("L_end")
    a.i("s_endpgm")
    a.label("L_code_end")

    descr(a, NAME + "_kernel", NV, 96)
    return a.text()


def parse(argv):
    ap = argparse.ArgumentParser()
    ap.add_argument("-T", type=int, default=4)
    ap.add_argument("-N", type=int, default=6)
    ap.add_argument("--QD", type=int, default=12)
    ap.add_argument("--stagger", type=int, default=0)
    ap.add_argument("--PW", type=int, default=1)
    ap.add_argument("--pre", type=int, default=0)
    ap.add_argument("--nowq", type=int, default=0)
    ap.add_argument("--nowo", type=int, default=0)
    ap.add_argument("--touch", type=int, default=0)
    ap.add_argument("--pf", type=int, default=0)
    ap.add_argument("--pfflags", default="nt")
    ap.add_argument("--rot", type=int, default=0)
    ap.add_argument("--noz", type=int, default=0)
    ap.add_argument("--fixfin", type=int, default=0)
    ap.add_argument("--mlpoll", type=int, default=0)
    ap.add_argument("--nozs", type=int, default=0)
    ap.add_argument("--zearly", type=int, default=0)
    ap.add_argument("--single", type=int, default=0)
    ap.add_argument("--dry", type=int, default=0)
    ap.add_argument("--tags", type=int, default=0)
    ap.add_argument("--fastpoll", type=int, default=0)
    ap.add_argument("--touchout", type=int, default=0)
    ap.add_argument("--outflags", default="")
    ap.add_argument("--xdw", type=int, default=0)
    ap.add_argument("--late", type=int, default=0)
    ap.add_argument("--minlds", type=int, default=0)
    ap.add_argument("--kvflags", default="nt")
    ap.add_argument("--wqflags", default="")
    ap.add_argument("--woflags", default="")
    ap.add_argument("--diag", type=int, default=0)
    ap.add_argument("-o", default="/dev/stdout")
    p = ap.parse_args(argv)
    for k in ("kvflags", "wqflags", "woflags", "pfflags", "outflags"):
        s = getattr(p, k).strip().replace("+", " ")
        if s == "none":
            s = ""
        setattr(p, k, " " + s if s else "")
    return p


if __name__ == "__main__":
    p = parse(sys.argv[1:])
    open(p.o, "w").write(gen(p))
```

```python
import sys, argparse, math, struct
from asmlib import Asm
from gen2 import VM, lg, f32hex, descr, CLOG, NAME

HEADER = """; Decode attention of two independent branches (A, B) with fused q / output projections; out = concat(A, B).
; Workgroup (branch, head, split) streams 4096 keys.  Waves 0-3 (helpers): q projection, wo prefetch, output
; workgroup first zeroes its own slots and counts that in d_debug; published words are never zero, so a non-zero word is
; zeroed, high half = arrival tickets; the last 32 arrivals of a branch each reduce 16 output columns.
"""


def gen(p):
    T, N = p.T, p.N
    R = 2 * T
    assert N <= R
    NS = 4
    NIT = 1024 // (NS * T)
    NWQ = 32
    RPG = 32
    NX = 4
    QD = p.QD
    assert QD % 2 == 0
    NWO = 32
    F = 32
    kvf = p.kvflags
    L_QP = 0
    L_OP = 2048
    L_ML = 4096
    L_ZF = 4160
    LDS = max(4352, p.minlds)

    a = Asm()
    a(HEADER.rstrip())
    a("; @launch grid=(256,1,1) block=(512,1,1) lds=%d" % LDS)
    a('.amdgcn_target "amdgcn-amd-amdhsa--gfx950"')
    a(".text")
    a(".globl %s_kernel" % NAME)
    a(".p2align 8")
    a(".type %s_kernel,@function" % NAME)
    a("%s_kernel:" % NAME)

    sXp, sKp, sVp, sWqp, sWop = 16, 18, 20, 22, 24
    sOutP, sDbgP, sWsP = 36, 38, 40
    sK, sV, sWq, sWo, sX, sWs = 44, 48, 52, 56, 60, 64
    sDbg, sOut = 44, 48
    sHead, sSplit, sBr, sWave = 68, 69, 70, 71
    sCur, sCnt, sT0, sT1, sC, sNext = 72, 73, 74, 75, 76, 77
    sP, sQoff = 78, 79
    sTS = 80
    sW4 = 15
    sPlo, sPhi = 12, 13
    sTk = 14
    sTag = 9
    sSpin = 11
    vLane, vOffKV = 1, 2
    nOff = max(1, T // 4)
    v = 2 + nOff
    vQ = (v + 1) // 2 * 2; v = vQ + 4
    vM, vL, vMc, vAl = v, v + 1, v + 2, v + 3; v += 4
    vT0 = v; v += 8
    vAcc = v; v += 8
    vS = v; v += max(T, 8)
    vOpA, vMlA, vYoff, vWoOff, vWqOff, vTk, vDum = range(v, v + 7); v += 7
    vK = (v + 3) // 4 * 4
    vV = vK + 4 * T
    vW = vK
    vWq = vK
    vXr = vK + 64
    vQP = vK + 8 * T
    vB = vQP + 32
    NV = max(vW + 128, vQP + 32, vB + 8 * T if (p.pre or p.late) else 0)
    assert QD * 4 <= 64 and NV <= 256, NV

    def ts(k):
        if p.diag == 7 and k in (0, 1, 10):
            r = {0: 80, 1: 82, 10: 84}[k]
            a.i("s_memrealtime s[%d:%d]", r, r + 1)
        if p.diag == 6 and k == 0:
            a.i("s_memrealtime s[%d:%d]", sTS, sTS + 1)
        if p.diag == 6 and k == 2:
            a.i("s_memrealtime s[%d:%d]", sTS + 14, sTS + 15)
        if p.diag == 1 and k < 4:
            a.i("s_memrealtime s[%d:%d]", sTS + 2 * k, sTS + 2 * k + 1)
        if p.diag == 5 and k >= 20:
            a.i("s_memtime s[%d:%d]", sTS + 2 * (k - 20), sTS + 2 * (k - 20) + 1)
        if p.diag == 4 and 10 <= k < 20:
            a.i("s_memtime s[%d:%d]", sTS + 2 * (k - 10), sTS + 2 * (k - 10) + 1)

    def srd(base, ptr, offreg, nrec):
        if offreg is None:
            a.i("s_mov_b32 s%d, s%d", base, ptr)
            a.i("s_mov_b32 s%d, s%d", base + 1, ptr + 1)
        else:
            a.i("s_add_u32 s%d, s%d, s%d", base, ptr, offreg)
            a.i("s_addc_u32 s%d, s%d, 0", base + 1, ptr + 1)
        a.i("s_mov_b32 s%d, 0x%x", base + 2, nrec)
        a.i("s_mov_b32 s%d, 0x20000", base + 3)

    def reduce_scatter(base):
        for e in range(4):
            a.i("v_permlane32_swap_b32 v%d, v%d", base + e, base + e + 4)
        for e in range(4):
            a.i("v_add_f32 v%d, v%d, v%d", base + e, base + e, base + e + 4)
        for e in range(2):
            a.i("v_permlane16_swap_b32 v%d, v%d", base + e, base + e + 2)
        for e in range(2):
            a.i("v_add_f32 v%d, v%d, v%d", base + e, base + e, base + e + 2)

    def diag_store(lab):
        if not p.diag or p.diag == 7:
            return
        ts(3)
        ts(17)
        ts(27)
        a.i("s_mov_b64 exec, 1")
        a.i("s_waitcnt vmcnt(0) lgkmcnt(0)")
        a.i("v_mov_b32 v%d, 0", vT0)
        for k in range(8):
            a.i("v_mov_b32 v%d, s%d", vK + k, sTS + (2 * k if p.diag >= 4 else k))
        a.i("s_mul_i32 s%d, s2, 8", sT1)
        a.i("s_add_u32 s%d, s%d, s%d", sT1, sT1, sWave)
        a.i("s_lshl_b32 s%d, s%d, 5", sT1, sT1)
        a.i("s_add_u32 s%d, s%d, 0x100000", sT1, sT1)
        a.i("buffer_store_dwordx4 v[%d:%d], v%d, s[%d:%d], s%d offen", vK, vK + 3, vT0, sWs, sWs + 3, sT1)
        a.i("buffer_store_dwordx4 v[%d:%d], v%d, s[%d:%d], s%d offen offset:16", vK + 4, vK + 7, vT0, sWs, sWs + 3, sT1)

    WSREC = 0x100000 if p.diag in (0, 7) else 0x200000
    a.i("s_cmp_ge_u32 s2, 256")
    a.i("s_cbranch_scc1 L_end")
    a.i("s_load_dwordx16 s[16:31], s[0:1], 0")
    a.i("s_load_dwordx8 s[32:39], s[0:1], 64")
    a.i("s_load_dwordx2 s[40:41], s[0:1], 96")
    if p.touch:
        a.i("s_getpc_b64 s[8:9]")
        a.label("L_pc")
        a.i("v_and_b32 v%d, 63, v0", vTk)
        a.i("v_lshlrev_b32 v%d, 7, v%d", vTk, vTk)
        a.i("v_lshrrev_b32 v%d, 6, v0", vDum)
        a.i("v_lshl_add_u32 v%d, v%d, 13, v%d", vTk, vDum, vTk)
        a.i("v_cmp_gt_u32 vcc, L_code_end-L_pc, v%d", vTk)
        a.i("s_and_saveexec_b64 s[6:7], vcc")
        a.i("s_cbranch_execz L_notouch")
        a.i("global_load_dword v%d, v%d, s[8:9]", vDum, vTk)
        a.label("L_notouch")
        a.i("s_mov_b64 exec, s[6:7]")
    ts(0)
    ts(20)
    if p.diag == 4:
        for k in range(16):
            a.i("s_mov_b32 s%d, 0", sTS + k)
    a.i("v_and_b32 v%d, 63, v0", vLane)
    a.i("v_lshrrev_b32 v%d, 6, v0", vT0)
    a.i("s_and_b32 s%d, s2, 31", sHead)
    a.i("s_lshr_b32 s%d, s2, 6", sSplit)
    a.i("s_bfe_u32 s%d, s2, 0x10005", sBr)
    a.i("v_readfirstlane_b32 s%d, v%d", sWave, vT0)
    a.i("s_and_b32 s%d, s2, 63", sP)
    a.i("s_lshl_b32 s%d, s%d, 2", sP, sP)
    a.i("s_add_u32 s%d, s%d, s%d", sP, sP, sSplit)
    a.i("s_and_b32 s%d, s%d, 3", sW4, sWave)
    a.i("v_lshrrev_b32 v%d, 4, v%d", vT0, vLane)
    a.i("v_and_b32 v%d, 15, v%d", vT0 + 1, vLane)
    a.i("s_cmp_ge_u32 s%d, 4", sWave)
    a.i("s_cbranch_scc1 L_stream")

    vm = VM(a)
    a.i("s_lshl_b32 s%d, s%d, %d", sT0, sW4, lg(RPG * 4 * 2))
    a.i("v_lshlrev_b32 v%d, %d, v%d", vT0 + 2, lg(RPG * 2), vT0)
    a.i("v_add_u32 v%d, s%d, v%d", vT0 + 2, sT0, vT0 + 2)
    a.i("v_lshlrev_b32 v%d, %d, v%d", vWqOff, lg(RPG * 8192), vT0)
    a.i("v_lshl_add_u32 v%d, v%d, 4, v%d", vWqOff, vT0 + 1, vWqOff)
    a.i("s_lshl_b32 s%d, s%d, %d", sT0, sW4, lg(RPG * 4 * 8192))
    a.i("s_lshl_b32 s%d, s%d, 8", sT1, sHead)
    a.i("s_add_u32 s%d, s%d, s%d", sQoff, sT0, sT1)
    a.i("v_lshlrev_b32 v%d, 3, v%d", vT0 + 3, vT0)
    a.i("v_lshl_add_u32 v%d, v%d, 5, v%d", vYoff, vT0 + 1, vT0 + 3)
    a.i("s_lshl_b32 s%d, s%d, 9", sT0, sW4)
    a.i("s_lshl_b32 s%d, s%d, 11", sT1, sP)
    a.i("s_add_u32 s%d, s%d, s%d", sT0, sT0, sT1)
    a.i("v_add_u32 v%d, s%d, v%d", vYoff, sT0, vYoff)
    a.i("s_waitcnt lgkmcnt(0)")
    ts(21)
    a.i("s_cmp_eq_u32 s%d, 0", sBr)
    a.i("s_cselect_b64 s[16:17], s[16:17], s[26:27]")
    a.i("s_cselect_b64 s[22:23], s[22:23], s[32:33]")
    a.i("s_cselect_b64 s[24:25], s[24:25], s[34:35]")
    if p.tags:
        a.i("s_lshl_b32 s%d, s%d, 7", sT0, sBr)
        a.i("s_load_dword s%d, s[%d:%d], s%d offset:0x90000", sTag, sWsP, sWsP + 1, sT0)
    srd(sX, sXp, None, 1024)
    srd(sWq, sWqp, None, 512 * 8192)

    sQrel = 10
    if p.rot:
        a.i("s_lshl_b32 s%d, s%d, 16", sQrel, sSplit)
        a.i("s_mov_b32 s%d, s%d", sCnt, sQoff)
        a.i("s_add_u32 s%d, s%d, s%d", sQoff, sCnt, sQrel)

    def wqload(j):
        if p.rot:
            s = j % QD
            a.i("buffer_load_dwordx4 v[%d:%d], v%d, s[%d:%d], s%d offen%s", vWq + 4 * s, vWq + 4 * s + 3, vWqOff, sWq, sWq + 3, sQoff, p.wqflags)
            vm.issue("wq%d" % j)
            if j != NWQ - 1:
                a.i("s_add_u32 s%d, s%d, 8192", sQrel, sQrel)
                a.i("s_and_b32 s%d, s%d, 0x3ffff", sQrel, sQrel)
                a.i("s_add_u32 s%d, s%d, s%d", sQoff, sCnt, sQrel)
            return
        if p.nowq:
            vm.issue("wq%d" % j)
            a.i("buffer_load_dwordx4 v[%d:%d], v%d, s[%d:%d], 0 offen", vWq + 4 * (j % QD), vWq + 4 * (j % QD) + 3, vT0 + 2, sX, sX + 3)
            return
        s = j % QD
        a.i("buffer_load_dwordx4 v[%d:%d], v%d, s[%d:%d], s%d offen%s", vWq + 4 * s, vWq + 4 * s + 3, vWqOff, sWq, sWq + 3, sQoff, p.wqflags)
        vm.issue("wq%d" % j)
        if j != NWQ - 1:
            a.i("s_add_u32 s%d, s%d, 8192", sQoff, sQoff)
    if p.xdw:
        a.i("v_lshl_add_u32 v%d, v%d, 2, v%d", vT0 + 2, vT0 + 1, vT0 + 2)
        a.i("buffer_load_dword v%d, v%d, s[%d:%d], 0 offen", vXr, vT0 + 2, sX, sX + 3)
        vm.issue("x%d" % (NX - 1))
    else:
        for j in range(NX):
            if p.rot:
                a.i("s_add_u32 s%d, s%d, %d", sT0, sSplit, j)
                a.i("s_and_b32 s%d, s%d, 3", sT0, sT0)
                a.i("s_lshl_b32 s%d, s%d, 4", sT0, sT0)
                a.i("buffer_load_dwordx4 v[%d:%d], v%d, s[%d:%d], s%d offen", vXr + 4 * j, vXr + 4 * j + 3, vT0 + 2, sX, sX + 3, sT0)
            else:
                a.i("buffer_load_dwordx4 v[%d:%d], v%d, s[%d:%d], 0 offen offset:%d", vXr + 4 * j, vXr + 4 * j + 3, vT0 + 2, sX, sX + 3, 16 * j)
            vm.issue("x%d" % j)
    for j in range(QD):
        wqload(j)
    nq = QD
    srd(sWs, sWsP, None, WSREC)
    a.i("s_lshl_b32 s%d, s%d, %d", sT1, sP, 4 if p.tags else 3)
    a.i("s_add_u32 s%d, s%d, 0x80000", sT1, sT1)
    a.i("v_mov_b32 v%d, s%d", vMlA, sT1)
    a.i("s_lshl_b32 s%d, s%d, 17", sT0, sHead)
    srd(sWo, sWop, sT0, 131072)
    srd(sDbg, sDbgP, None, 256)
    srd(sOut, sOutP, None, 2048)
    a.i("s_mov_b32 s%d, 0x05040100", sPlo)
    a.i("s_mov_b32 s%d, 0x07060302", sPhi)
    a.i("v_lshlrev_b32 v%d, 11, v%d", vWoOff, vT0)
    a.i("v_lshl_add_u32 v%d, v%d, 4, v%d", vWoOff, vT0 + 1, vWoOff)
    a.i("s_lshl_b32 s%d, s%d, 8", sT0, sW4)
    a.i("v_add_u32 v%d, s%d, v%d", vWoOff, sT0, vWoOff)
    vA = vAcc
    for e in range(8):
        a.i("v_mov_b32 v%d, 0", vA + e)
    vm.maybe_wait("x%d" % (NX - 1))
    for m in range(NWQ // 2):
        vm.wait("wq%d" % (2 * m + 1))
        if m == 0:
            ts(22)
        if m == 8:
            ts(23)
        s0 = vWq + 4 * ((2 * m) % QD)
        s1 = vWq + 4 * ((2 * m + 1) % QD)
        xr = vXr + m
        if p.xdw:
            xr = vXr + 1 + (m % 2)
            a.i("v_mov_b32_dpp v%d, v%d row_newbcast:%d row_mask:0xf bank_mask:0xf", xr, vXr, m)
        for d in range(4):
            a.i("v_perm_b32 v%d, v%d, v%d, s%d", vT0 + 2 * (d % 2), s1 + d, s0 + d, sPlo)
            a.i("v_perm_b32 v%d, v%d, v%d, s%d", vT0 + 2 * (d % 2) + 1, s1 + d, s0 + d, sPhi)
            a.i("v_dot2_f32_bf16 v%d, v%d, v%d, v%d", vA + 2 * d, vT0 + 2 * (d % 2), xr, vA + 2 * d)
            a.i("v_dot2_f32_bf16 v%d, v%d, v%d, v%d", vA + 2 * d + 1, vT0 + 2 * (d % 2) + 1, xr, vA + 2 * d + 1)
        for _ in range(2):
            if nq < NWQ:
                wqload(nq); nq += 1
                if nq == NWQ and p.late:
                    a.i("s_barrier")
    ts(24)
    reduce_scatter(vA)
    a.i("v_lshrrev_b32 v%d, 4, v%d", vT0, vLane)
    a.i("v_and_b32 v%d, 15, v%d", vT0 + 1, vLane)
    a.i("v_lshlrev_b32 v%d, 3, v%d", vT0, vT0)
    a.i("v_lshl_add_u32 v%d, v%d, 5, v%d", vT0, vT0 + 1, vT0)
    a.i("s_lshl_b32 s%d, s%d, 9", sT0, sW4)
    a.i("s_add_u32 s%d, s%d, %d", sT0, sT0, L_QP)
    a.i("v_add_u32 v%d, s%d, v%d", vT0, sT0, vT0)
    a.i("ds_write_b64 v%d, v[%d:%d]", vT0, vA, vA + 1)
    if p.zearly:
        a.i("v_mov_b32 v%d, %d", vT0 + 2, L_ZF)
        a.i("v_mov_b32 v%d, 0", vT0 + 3)
        a.i("ds_write_b32 v%d, v%d", vT0 + 2, vT0 + 3)
    a.i("s_waitcnt lgkmcnt(0)")
    ts(25)
    a.i("s_barrier")
    ts(1)
    ts(26)
    a.i("s_lshl_b32 s%d, s%d, 7", sC, sBr)
    if p.tags:
        a.i("s_mul_i32 s%d, s%d, 0x9E3779B1", sTag, sTag)
        a.i("s_add_u32 s%d, s%d, 0x7F4A7C15", sTag, sTag)
    if not p.zearly and not p.tags:
        a.i("s_cmp_lg_u32 s%d, 0", sWave)
        a.i("s_cbranch_scc1 L_noz")
        for e in range(4):
            a.i("v_mov_b32 v%d, 0", vT0 + e)
        a.i("v_lshlrev_b32 v%d, 5, v%d", vT0 + 4, vLane)
        a.i("s_lshl_b32 s%d, s%d, 11", sT1, sP)
        if not p.nozs:
            a.i("buffer_store_dwordx4 v[%d:%d], v%d, s[%d:%d], s%d offen sc1", vT0, vT0 + 3, vT0 + 4, sWs, sWs + 3, sT1)
            a.i("buffer_store_dwordx4 v[%d:%d], v%d, s[%d:%d], s%d offen offset:16 sc1", vT0, vT0 + 3, vT0 + 4, sWs, sWs + 3, sT1)
        a.i("v_mov_b32 v%d, 0", vT0 + 6)
        a.i("v_mov_b32 v%d, 1", vT0 + 7)
        a.i("s_mov_b64 exec, 1")
        if not p.nozs:
            a.i("buffer_store_dwordx2 v[%d:%d], v%d, s[%d:%d], 0 offen sc1", vT0, vT0 + 1, vMlA, sWs, sWs + 3)
        a.i("s_waitcnt vmcnt(0)")
        if not p.noz:
            a.i("buffer_atomic_add v%d, v%d, s[%d:%d], s%d offen sc1", vT0 + 7, vT0 + 6, sDbg, sDbg + 3, sC)
        a.i("s_mov_b64 exec, -1")
        a.label("L_noz")
    a.i("s_mov_b32 s%d, 0", sCur)
    NP = NWO // 2

    def wo_issue(m):
        b = vW + 8 * m
        if p.nowo:
            return
        a.i("buffer_load_dwordx4 v[%d:%d], v%d, s[%d:%d], s%d offen%s", b, b + 3, vWoOff, sWo, sWo + 3, sCur, p.woflags)
        a.i("buffer_load_dwordx4 v[%d:%d], v%d, s[%d:%d], s%d offen offset:1024%s", b + 4, b + 7, vWoOff, sWo, sWo + 3, sCur, p.woflags)
        a.i("s_add_u32 s%d, s%d, 8192", sCur, sCur)
    for m in range(min(p.PW, NP)):
        wo_issue(m)
    for m in range(NP):
        b = vW + 8 * m
        inflight = min(NP, m + p.PW) - (m + 1)
        a.i("s_waitcnt vmcnt(%d)", 2 * inflight)
        for d in range(4):
            a.i("v_perm_b32 v%d, v%d, v%d, s%d", vT0, b + 4 + d, b + d, sPlo)
            a.i("v_perm_b32 v%d, v%d, v%d, s%d", b + 4 + d, b + 4 + d, b + d, sPhi)
            a.i("v_mov_b32 v%d, v%d", b + d, vT0)
        if m + p.PW < NP:
            wo_issue(m + p.PW)
    if p.zearly and not p.noz:
        a.i("s_cmp_lg_u32 s%d, 0", sWave)
        a.i("s_cbranch_scc1 L_noz")
        a.i("v_mov_b32 v%d, %d", vT0 + 2, L_ZF)
        a.label("L_zfw")
        a.i("ds_read_b32 v%d, v%d", vT0 + 3, vT0 + 2)
        a.i("s_waitcnt lgkmcnt(0)")
        a.i("v_readfirstlane_b32 s%d, v%d", sT0, vT0 + 3)
        a.i("s_cmp_eq_u32 s%d, 0", sT0)
        a.i("s_cbranch_scc1 L_zfw")
        a.i("v_mov_b32 v%d, 0", vT0 + 6)
        a.i("v_mov_b32 v%d, 1", vT0 + 7)
        a.i("s_mov_b64 exec, 1")
        a.i("buffer_atomic_add v%d, v%d, s[%d:%d], s%d offen sc1", vT0 + 7, vT0 + 6, sDbg, sDbg + 3, sC)
        a.i("s_mov_b64 exec, -1")
        a.label("L_noz")
    if p.touchout:
        a.i("v_mov_b32 v%d, 0", vT0 + 2)
        a.i("s_lshl_b32 s%d, s%d, 10", sT0, sBr)
        a.i("s_mov_b64 exec, 1")
        a.i("buffer_load_dword v%d, v%d, s[%d:%d], s%d offen", vDum, vT0 + 2, sOut, sOut + 3, sT0)
        a.i("s_mov_b64 exec, -1")
        a.i("s_waitcnt vmcnt(0)")
    a.i("v_lshlrev_b32 v%d, 3, v%d", vOpA, vLane)
    a.i("v_add_u32 v%d, %d, v%d", vOpA, L_OP, vOpA)
    a.i("v_mov_b32 v%d, %d", vT0 + 7, L_ML)
    a.i("v_mov_b32 v%d, 0", vT0 + 6)
    a.i("v_mov_b32 v%d, 0x10000", vTk)
    for e in range(8):
        a.i("v_mov_b32 v%d, 0", vAcc + e)
    ts(2)
    a.i("s_barrier")
    ts(10)
    a.i("s_cmp_lg_u32 s%d, 0", sWave)
    a.i("s_cbranch_scc1 L_notk")
    if not p.fixfin:
        a.i("s_mov_b64 exec, 1")
        a.i("buffer_atomic_add v%d, v%d, s[%d:%d], s%d offen sc0 sc1", vTk, vT0 + 6, sDbg, sDbg + 3, sC)
        a.i("s_mov_b64 exec, -1")
    a.label("L_notk")
    for w in range(4):
        a.i("ds_read_b64 v[%d:%d], v%d offset:%d", vS + 2 * w, vS + 2 * w + 1, vOpA, 512 * w)
    a.i("ds_read_b128 v[%d:%d], v%d", vT0, vT0 + 3, vT0 + 7)
    a.i("ds_read_b128 v[%d:%d], v%d offset:16", vQ, vQ + 3, vT0 + 7)
    a.i("s_waitcnt lgkmcnt(0)")
    mc = [vT0, vT0 + 2, vQ, vQ + 2]
    a.i("v_max3_f32 v%d, v%d, v%d, v%d", vM, mc[0], mc[1], mc[2])
    a.i("v_max_f32 v%d, v%d, v%d", vM, vM, mc[3])
    for w in range(4):
        a.i("v_sub_f32 v%d, v%d, v%d", mc[w], mc[w], vM)
    for w in range(4):
        a.i("v_exp_f32 v%d, v%d", mc[w], mc[w])
    a.i("v_mul_f32 v%d, v%d, v%d", vL, mc[0], mc[0] + 1)
    for w in range(1, 4):
        a.i("v_fmac_f32 v%d, v%d, v%d", vL, mc[w], mc[w] + 1)
    a.i("v_pk_mul_f32 v[%d:%d], v[%d:%d], v[%d:%d] op_sel_hi:[1,0]", vS, vS + 1, vS, vS + 1, mc[0], mc[0] + 1)
    for w in range(1, 4):
        a.i("v_pk_fma_f32 v[%d:%d], v[%d:%d], v[%d:%d], v[%d:%d] op_sel_hi:[1,0,1]", vS, vS + 1, vS + 2 * w, vS + 2 * w + 1, mc[w], mc[w] + 1, vS, vS + 1)
    a.i("v_cvt_pk_bf16_f32 v%d, v%d, v%d", vS, vS, vS + 1)
    ts(11)
    a(".p2align 3")
    for m in range(16):
        t = vT0 + (m % 2)
        a.i("v_mov_b32_dpp v%d, v%d row_newbcast:%d row_mask:0xf bank_mask:0xf", t, vS, m)
        for d in range(4):
            a.i("v_dot2_f32_bf16 v%d, v%d, v%d, v%d", vAcc + 2 * d, vW + 8 * m + d, t, vAcc + 2 * d)
            a.i("v_dot2_f32_bf16 v%d, v%d, v%d, v%d", vAcc + 2 * d + 1, vW + 8 * m + 4 + d, t, vAcc + 2 * d + 1)
    ts(12)
    reduce_scatter(vAcc)
    if p.tags:
        a.i("v_cvt_pk_bf16_f32 v%d, v%d, v%d", vAcc, vAcc, vAcc + 1)
        a.i("v_mov_b32 v%d, s%d", vAcc + 1, sTag)
    else:
        a.i("v_max_u32 v%d, 1, v%d", vAcc, vAcc)
        a.i("v_max_u32 v%d, 1, v%d", vAcc + 1, vAcc + 1)
    a.i("buffer_store_dwordx2 v[%d:%d], v%d, s[%d:%d], 0 offen sc1", vAcc, vAcc + 1, vYoff, sWs, sWs + 3)
    a.i("s_cmp_lg_u32 s%d, 0", sWave)
    a.i("s_cbranch_scc1 L_done")
    if p.tags:
        a.i("v_mov_b32 v%d, v%d", vT0, vM)
        a.i("v_mov_b32 v%d, s%d", vT0 + 1, sTag)
        a.i("v_mov_b32 v%d, v%d", vT0 + 2, vL)
        a.i("v_mov_b32 v%d, s%d", vT0 + 3, sTag)
        a.i("s_mov_b64 exec, 1")
        a.i("buffer_store_dwordx4 v[%d:%d], v%d, s[%d:%d], 0 offen sc1", vT0, vT0 + 3, vMlA, sWs, sWs + 3)
        a.i("s_mov_b64 exec, -1")
        a.i("s_nop 1")
    else:
        a.i("v_max_u32 v%d, 1, v%d", vT0 + 2, vM)
        a.i("v_max_u32 v%d, 1, v%d", vT0 + 3, vL)
        a.i("s_mov_b64 exec, 1")
        a.i("buffer_store_dwordx2 v[%d:%d], v%d, s[%d:%d], 0 offen sc1", vT0 + 2, vT0 + 3, vMlA, sWs, sWs + 3)
        a.i("s_mov_b64 exec, -1")
    ts(13)
    a.i("v_lshrrev_b32 v%d, 2, v%d", vT0, vLane)
    a.i("v_and_b32 v%d, 3, v%d", vT0 + 1, vLane)
    a.i("v_lshlrev_b32 v%d, 11, v%d", vYoff, vT0)
    a.i("v_lshl_add_u32 v%d, v%d, 4, v%d", vYoff, vT0 + 1, vYoff)
    a.i("v_lshlrev_b32 v%d, %d, v%d", vMlA, 4 if p.tags else 3, vT0)
    if p.fixfin:
        a.i("s_cmp_lg_u32 s%d, 3", sSplit)
        a.i("s_cbranch_scc1 L_done")
        a.i("s_mov_b32 s%d, s%d", sNext, sHead)
    else:
        a.i("s_waitcnt vmcnt(2)")
        a.i("v_readfirstlane_b32 s%d, v%d", sTk, vTk)
        a.i("s_lshr_b32 s%d, s%d, 16", sT0, sTk)
        a.i("s_cmp_lt_u32 s%d, %d", sT0, 128 - F)
        a.i("s_cbranch_scc1 L_done")
        a.i("s_sub_u32 s%d, s%d, %d", sNext, sT0, 128 - F)
    if not p.noz and not p.fixfin and not p.tags:
        a.i("s_and_b32 s%d, s%d, 0xffff", sT0, sTk)
        a.i("s_cmp_eq_u32 s%d, 128", sT0)
        a.i("s_cbranch_scc1 L_zok")
        a.i("s_mov_b32 s%d, 0x10000", sSpin)
        a.label("L_zspin")
        a.i("s_sub_u32 s%d, s%d, 1", sSpin, sSpin)
        a.i("s_cmp_eq_u32 s%d, 0", sSpin)
        a.i("s_cbranch_scc1 L_zok")
        a.i("s_mov_b64 exec, 1")
        a.i("buffer_load_dword v%d, v%d, s[%d:%d], s%d offen sc1", vTk, vT0 + 6, sDbg, sDbg + 3, sC)
        a.i("s_waitcnt vmcnt(0)")
        a.i("v_readfirstlane_b32 s%d, v%d", sTk, vTk)
        a.i("s_mov_b64 exec, -1")
        a.i("s_and_b32 s%d, s%d, 0xffff", sT0, sTk)
        a.i("s_cmp_eq_u32 s%d, 128", sT0)
        a.i("s_cbranch_scc0 L_zspin")
    a.label("L_zok")
    ts(14)
    vY = vW
    vMl = vW + 32
    a.i("s_lshl_b32 s%d, s%d, 18", sT0, sBr)
    a.i("s_lshl_b32 s%d, s%d, 6", sT1, sNext)
    a.i("s_add_u32 s%d, s%d, s%d", sQoff, sT0, sT1)
    a.i("s_lshl_b32 s%d, s%d, %d", sT0, sBr, 11 if p.tags else 10)
    a.i("s_add_u32 s%d, s%d, 0x80000", sCnt, sT0)
    if p.mlpoll:
        a.i("v_lshlrev_b32 v%d, 4, v%d", vT0 + 1, vLane)
        a.i("s_mov_b32 s%d, 0x10000", sSpin)
        a.label("L_poll1")
        a.i("buffer_load_dwordx4 v[%d:%d], v%d, s[%d:%d], s%d offen sc1", vMl, vMl + 3, vT0 + 1, sWs, sWs + 3, sCnt)
        a.i("s_waitcnt vmcnt(0)")
        a.i("v_min3_u32 v%d, v%d, v%d, v%d", vT0, vMl, vMl + 1, vMl + 2)
        a.i("v_min_u32 v%d, v%d, v%d", vT0, vT0, vMl + 3)
        a.i("v_cmp_eq_u32 vcc, 0, v%d", vT0)
        a.i("s_sub_u32 s%d, s%d, 1", sSpin, sSpin)
        a.i("s_cbranch_scc1 L_poll1ok")
        a.i("s_cbranch_vccz L_poll1ok")
        a.i("s_sleep %d", p.mlpoll)
        a.i("s_branch L_poll1")
        a.label("L_poll1ok")
    if p.tags:
        vMl = vW + 32
        vLo, vHi = vT0, vT0 + 1
        a.i("s_mov_b32 s%d, 0x10000", sSpin)
        a.label("L_poll")
        a.i("s_mov_b32 s%d, s%d", sCur, sQoff)
        for j in range(8):
            a.i("buffer_load_dwordx4 v[%d:%d], v%d, s[%d:%d], s%d offen offset:%d sc1", vMl + 4 * j, vMl + 4 * j + 3, vMlA, sWs, sWs + 3, sCnt, 256 * j)
        for j in range(8):
            a.i("buffer_load_dwordx4 v[%d:%d], v%d, s[%d:%d], s%d offen sc1", vY + 4 * j, vY + 4 * j + 3, vYoff, sWs, sWs + 3, sCur)
            if j != 7:
                a.i("s_add_u32 s%d, s%d, 32768", sCur, sCur)
        a.i("v_mov_b32 v%d, s%d", vLo, sTag)
        a.i("v_mov_b32 v%d, s%d", vHi, sTag)
        a.i("s_waitcnt vmcnt(8)")
        for j in range(8):
            a.i("v_min3_u32 v%d, v%d, v%d, v%d", vLo, vLo, vMl + 4 * j + 1, vMl + 4 * j + 3)
            a.i("v_max3_u32 v%d, v%d, v%d, v%d", vHi, vHi, vMl + 4 * j + 1, vMl + 4 * j + 3)
        for j in range(8):
            a.i("v_max_f32_dpp v%d, v%d, v%d row_ror:4 row_mask:0xf bank_mask:0xf", vS + j, vMl + 4 * j, vMl + 4 * j)
        for j in range(8):
            a.i("v_max_f32_dpp v%d, v%d, v%d row_ror:8 row_mask:0xf bank_mask:0xf", vS + j, vS + j, vS + j)
        for j in range(8):
            a.i("v_sub_f32 v%d, v%d, v%d", vS + j, vMl + 4 * j, vS + j)
        for j in range(8):
            a.i("v_exp_f32 v%d, v%d", vS + j, vS + j)
        for j in range(8):
            a.i("v_mul_f32 v%d, v%d, v%d", vMl + 4 * j + 2, vMl + 4 * j + 2, vS + j)
        for r in (4, 8):
            for j in range(8):
                a.i("v_add_f32_dpp v%d, v%d, v%d row_ror:%d row_mask:0xf bank_mask:0xf", vMl + 4 * j + 2, vMl + 4 * j + 2, vMl + 4 * j + 2, r)
        for j in range(8):
            a.i("v_rcp_f32 v%d, v%d", vMl + 4 * j + 2, vMl + 4 * j + 2)
        for j in range(8):
            a.i("v_mul_f32 v%d, v%d, v%d", vS + j, vS + j, vMl + 4 * j + 2)
        a.i("s_waitcnt vmcnt(0)")
        for j in range(8):
            a.i("v_min3_u32 v%d, v%d, v%d, v%d", vLo, vLo, vY + 4 * j + 1, vY + 4 * j + 3)
            a.i("v_max3_u32 v%d, v%d, v%d, v%d", vHi, vHi, vY + 4 * j + 1, vY + 4 * j + 3)
        a.i("v_cmp_ne_u32 vcc, v%d, v%d", vLo, vHi)
        a.i("s_sub_u32 s%d, s%d, 1", sSpin, sSpin)
        a.i("s_cbranch_scc1 L_pollok")
        a.i("s_cbranch_vccnz L_poll")
        a.label("L_pollok")
        ts(15)
        a.i("s_cmp_lg_u32 s%d, 0", sNext)
        a.i("s_cbranch_scc1 L_noep")
        a.i("s_lshl_b32 s%d, s%d, 7", sT0, sBr)
        a.i("s_add_u32 s%d, s%d, 0x90000", sT0, sT0)
        a.i("v_mov_b32 v%d, 0", vT0 + 2)
        a.i("v_mov_b32 v%d, s%d", vT0 + 3, sTag)
        a.i("s_mov_b64 exec, 1")
        a.i("buffer_store_dword v%d, v%d, s[%d:%d], s%d offen sc1", vT0 + 3, vT0 + 2, sWs, sWs + 3, sT0)
        a.i("s_mov_b64 exec, -1")
        a.label("L_noep")
        for j in range(8):
            y = vY + 4 * j
            a.i("v_lshlrev_b32 v%d, 16, v%d", vT0 + 4, y)
            a.i("v_and_b32 v%d, 0xffff0000, v%d", vT0 + 5, y)
            a.i("v_lshlrev_b32 v%d, 16, v%d", vT0 + 6, y + 2)
            a.i("v_and_b32 v%d, 0xffff0000, v%d", vT0 + 7, y + 2)
            for e in range(4):
                if j == 0:
                    a.i("v_mul_f32 v%d, v%d, v%d", vAcc + e, vS, vT0 + 4 + e)
                else:
                    a.i("v_fmac_f32 v%d, v%d, v%d", vAcc + e, vS + j, vT0 + 4 + e)
    else:
        a.i("s_mov_b32 s%d, 0x10000", sSpin)
        a.label("L_poll")
        a.i("s_mov_b32 s%d, s%d", sCur, sQoff)
        for j in range(8):
            a.i("buffer_load_dwordx2 v[%d:%d], v%d, s[%d:%d], s%d offen offset:%d sc1", vMl + 2 * j, vMl + 2 * j + 1, vMlA, sWs, sWs + 3, sCnt, 128 * j)
        for j in range(8):
            a.i("buffer_load_dwordx4 v[%d:%d], v%d, s[%d:%d], s%d offen sc1", vY + 4 * j, vY + 4 * j + 3, vYoff, sWs, sWs + 3, sCur)
            if j != 7:
                a.i("s_add_u32 s%d, s%d, 32768", sCur, sCur)
        a.i("s_waitcnt vmcnt(8)")
        a.i("v_min3_u32 v%d, v%d, v%d, v%d", vT0, vMl, vMl + 1, vMl + 2)
        for k in range(3, 15, 2):
            a.i("v_min3_u32 v%d, v%d, v%d, v%d", vT0, vT0, vMl + k, vMl + k + 1)
        a.i("v_min_u32 v%d, v%d, v%d", vT0, vT0, vMl + 15)
        if p.fastpoll:
            a.i("v_cmp_eq_u32 vcc, 0, v%d", vT0)
            a.i("s_sub_u32 s%d, s%d, 1", sSpin, sSpin)
            a.i("s_cbranch_scc1 L_mlok")
            a.i("s_cbranch_vccnz L_poll")
            a.label("L_mlok")
        for j in range(8):
            a.i("v_max_f32_dpp v%d, v%d, v%d row_ror:4 row_mask:0xf bank_mask:0xf", vS + j, vMl + 2 * j, vMl + 2 * j)
        for j in range(8):
            a.i("v_max_f32_dpp v%d, v%d, v%d row_ror:8 row_mask:0xf bank_mask:0xf", vS + j, vS + j, vS + j)
        for j in range(8):
            a.i("v_sub_f32 v%d, v%d, v%d", vS + j, vMl + 2 * j, vS + j)
        for j in range(8):
            a.i("v_exp_f32 v%d, v%d", vS + j, vS + j)
        for j in range(8):
            a.i("v_mul_f32 v%d, v%d, v%d", vMl + 2 * j + 1, vMl + 2 * j + 1, vS + j)
        for j in range(8):
            a.i("v_add_f32_dpp v%d, v%d, v%d row_ror:4 row_mask:0xf bank_mask:0xf", vMl + 2 * j + 1, vMl + 2 * j + 1, vMl + 2 * j + 1)
        for j in range(8):
            a.i("v_add_f32_dpp v%d, v%d, v%d row_ror:8 row_mask:0xf bank_mask:0xf", vMl + 2 * j + 1, vMl + 2 * j + 1, vMl + 2 * j + 1)
        for j in range(8):
            a.i("v_rcp_f32 v%d, v%d", vMl + 2 * j + 1, vMl + 2 * j + 1)
        for j in range(8):
            a.i("v_mul_f32 v%d, v%d, v%d", vS + j, vS + j, vMl + 2 * j + 1)
        a.i("s_waitcnt vmcnt(0)")
        for k in range(0, 32, 2):
            a.i("v_min3_u32 v%d, v%d, v%d, v%d", vT0, vT0, vY + k, vY + k + 1)
        a.i("v_cmp_eq_u32 vcc, 0, v%d", vT0)
        a.i("s_sub_u32 s%d, s%d, 1", sSpin, sSpin)
        a.i("s_cbranch_scc1 L_pollok")
        a.i("s_cbranch_vccnz L_poll")
        a.label("L_pollok")
        ts(15)
        for e in range(4):
            a.i("v_mul_f32 v%d, v%d, v%d", vAcc + e, vS, vY + e)
        for j in range(1, 8):
            for e in range(4):
                a.i("v_fmac_f32 v%d, v%d, v%d", vAcc + e, vS + j, vY + 4 * j + e)
    for r in (4, 8):
        for e in range(4):
            a.i("v_add_f32_dpp v%d, v%d, v%d row_ror:%d row_mask:0xf bank_mask:0xf", vAcc + e, vAcc + e, vAcc + e, r)
    for e in range(2):
        a.i("v_permlane32_swap_b32 v%d, v%d", vAcc + e, vAcc + 2 + e)
    for e in range(2):
        a.i("v_add_f32 v%d, v%d, v%d", vAcc + e, vAcc + e, vAcc + 2 + e)
    a.i("v_permlane16_swap_b32 v%d, v%d", vAcc, vAcc + 1)
    a.i("v_add_f32 v%d, v%d, v%d", vAcc, vAcc, vAcc + 1)
    a.i("v_lshrrev_b32 v%d, 4, v%d", vT0, vLane)
    a.i("v_and_b32 v%d, 3, v%d", vT0 + 1, vLane)
    a.i("v_lshl_add_u32 v%d, v%d, 2, v%d", vT0, vT0 + 1, vT0)
    a.i("v_lshlrev_b32 v%d, 1, v%d", vT0, vT0)
    a.i("v_cvt_pk_bf16_f32 v%d, v%d, v%d", vAcc, vAcc, vAcc)
    a.i("s_lshl_b32 s%d, s%d, 10", sT0, sBr)
    a.i("s_lshl_b32 s%d, s%d, 5", sT1, sNext)
    a.i("s_add_u32 s%d, s%d, s%d", sT0, sT0, sT1)
    a.i("s_mov_b32 exec_lo, 0x000f000f")
    a.i("s_mov_b32 exec_hi, 0x000f000f")
    a.i("buffer_store_short v%d, v%d, s[%d:%d], s%d offen%s", vAcc, vT0, sOut, sOut + 3, sT0, p.outflags)
    if p.diag == 4:
        a.i("s_waitcnt vmcnt(0)")
    ts(16)
    if p.diag == 7:
        a.i("s_memrealtime s[86:87]")
        a.i("s_waitcnt lgkmcnt(0)")
        a.i("s_sub_u32 s82, s82, s80")
        a.i("s_sub_u32 s84, s84, s80")
        a.i("s_sub_u32 s86, s86, s80")
        a.i("v_mov_b32 v%d, s82", vT0)
        a.i("v_mov_b32 v%d, s84", vT0 + 1)
        a.i("v_mov_b32 v%d, s86", vT0 + 2)
        a.i("v_mov_b32 v%d, s%d", vT0 + 3, sNext)
        a.i("v_mov_b32 v%d, 0", vT0 + 4)
        a.i("s_cmp_lg_u32 s%d, 31", sNext)
        a.i("s_cbranch_scc1 L_done")
        a.i("s_lshl_b32 s%d, s%d, 4", sT0, sBr)
        a.i("s_add_u32 s%d, s%d, 16", sT0, sT0)
        a.i("s_mov_b64 exec, 1")
        a.i("buffer_store_dwordx4 v[%d:%d], v%d, s[%d:%d], s%d offen", vT0, vT0 + 3, vT0 + 4, sDbg, sDbg + 3, sT0)
    a.label("L_done")
    diag_store("h")
    a.i("s_endpgm")

    a.label("L_stream")
    a.i("s_lshl_b32 s%d, s%d, %d", sT0, sW4, lg(T * 1024))
    stride = NS * T * 1024
    a.i("v_lshlrev_b32 v%d, 4, v%d", vOffKV, vLane)
    a.i("v_add_u32 v%d, s%d, v%d", vOffKV, sT0, vOffKV)
    for j in range(1, nOff):
        a.i("v_add_u32 v%d, %d, v%d", vOffKV + j, 4096 * j, vOffKV)
    a.i("s_lshl_b32 s%d, s%d, 22", sT0, sHead)
    a.i("s_lshl_b32 s%d, s%d, 20", sT1, sSplit)
    a.i("s_add_u32 s%d, s%d, s%d", sCur, sT0, sT1)
    a.i("s_waitcnt lgkmcnt(0)")
    a.i("s_cmp_eq_u32 s%d, 0", sBr)
    a.i("s_cselect_b64 s[18:19], s[18:19], s[28:29]")
    a.i("s_cselect_b64 s[20:21], s[20:21], s[30:31]")
    srd(sK, sKp, sCur, 1 << 20)
    srd(sV, sVp, sCur, 1 << 20)
    if p.zearly:
        srd(sWs, sWsP, None, WSREC)
        a.i("s_cmp_lg_u32 s%d, 4", sWave)
        a.i("s_cbranch_scc1 L_nozs")
        for e in range(4):
            a.i("v_mov_b32 v%d, 0", vT0 + 4 + e)
        a.i("v_lshlrev_b32 v%d, 5, v%d", vT0 + 2, vLane)
        a.i("s_lshl_b32 s%d, s%d, 11", sT1, sP)
        a.i("buffer_store_dwordx4 v[%d:%d], v%d, s[%d:%d], s%d offen sc1", vT0 + 4, vT0 + 7, vT0 + 2, sWs, sWs + 3, sT1)
        a.i("buffer_store_dwordx4 v[%d:%d], v%d, s[%d:%d], s%d offen offset:16 sc1", vT0 + 4, vT0 + 7, vT0 + 2, sWs, sWs + 3, sT1)
        a.i("s_lshl_b32 s%d, s%d, 3", sT1, sP)
        a.i("s_add_u32 s%d, s%d, 0x80000", sT1, sT1)
        a.i("v_mov_b32 v%d, 0", vT0 + 2)
        a.i("s_mov_b64 exec, 1")
        a.i("buffer_store_dwordx2 v[%d:%d], v%d, s[%d:%d], s%d offen sc1", vT0 + 4, vT0 + 5, vT0 + 2, sWs, sWs + 3, sT1)
        a.i("s_mov_b64 exec, -1")
        a.label("L_nozs")

    def kvload(j, soff, base=None):
        which, i = ("K", j) if j < T else ("V", j - T)
        srdb = sK if which == "K" else sV
        reg = (vK if base is None else base) + 4 * j
        a.i("buffer_load_dwordx4 v[%d:%d], v%d, s[%d:%d], %s offen offset:%d%s", reg, reg + 3,
            vOffKV + i // 4, srdb, srdb + 3, soff, (i % 4) * 1024, kvf)
    MASK = (1 << 20) - 1
    if p.stagger:
        a.i("s_mul_i32 s%d, s2, %d", sCur, p.stagger * stride)
        a.i("s_and_b32 s%d, s%d, 0x%x", sCur, sCur, MASK)
    else:
        a.i("s_mov_b32 s%d, 0", sCur)
    a.i("s_add_u32 s%d, s%d, %d", sNext, sCur, stride)
    a.i("s_and_b32 s%d, s%d, 0x%x", sNext, sNext, MASK)
    if p.single and p.late:
        for j in range(R):
            kvload(j, "s%d" % sCur, vB)
        a.i("s_barrier")
        for j in range(N):
            kvload(j, "s%d" % sNext)
    elif p.single:
        for j in range(N):
            kvload(j, "s%d" % sCur)
    elif p.pre:
        seq = [(j, sCur, vB) for j in range(R)] + [(j, sNext, None) for j in range(N)]
        for k, (j, so, base) in enumerate(seq):
            if k >= p.pre:
                a.i("s_waitcnt vmcnt(%d)", p.pre - 1)
            kvload(j, "s%d" % so, base)
    else:
        for j in range(R):
            kvload(j, "s%d" % sCur)
        if p.pf:
            assert T == 4
            a.i("s_lshl_b32 s%d, s%d, 12", sT0, sW4)
            a.i("v_lshlrev_b32 v%d, 6, v%d", vTk, vLane)
            a.i("v_add_u32 v%d, s%d, v%d", vTk, sT0, vTk)
            a.i("s_mov_b32 s%d, s%d", sT1, sNext)
            for k in range(p.pf):
                a.i("buffer_load_dword v%d, v%d, s[%d:%d], s%d offen%s", vDum, vTk, sK, sK + 3, sT1, p.pfflags)
                a.i("buffer_load_dword v%d, v%d, s[%d:%d], s%d offen%s", vDum, vTk, sV, sV + 3, sT1, p.pfflags)
                if k + 1 < p.pf:
                    a.i("s_add_u32 s%d, s%d, %d", sT1, sT1, stride)
                    a.i("s_and_b32 s%d, s%d, 0x%x", sT1, sT1, MASK)
    if p.diag:
        srd(sWs, sWsP, None, WSREC)
    a.i("s_mov_b32 s%d, %s", sC, f32hex(CLOG))
    a.i("s_lshl_b32 s%d, s%d, 9", sT0, sW4)
    a.i("s_add_u32 s%d, s%d, %d", sT0, sT0, L_OP)
    a.i("v_lshlrev_b32 v%d, 3, v%d", vOpA, vLane)
    a.i("v_add_u32 v%d, s%d, v%d", vOpA, sT0, vOpA)
    a.i("s_lshl_b32 s%d, s%d, 3", sT0, sW4)
    a.i("s_add_u32 s%d, s%d, %d", sT0, sT0, L_ML)
    a.i("v_mov_b32 v%d, s%d", vMlA, sT0)
    a.i("v_lshlrev_b32 v%d, 5, v%d", vT0 + 1, vT0 + 1)
    a.i("v_add_u32 v%d, %d, v%d", vQP, L_QP, vT0 + 1)
    if p.single:
        a.i("s_mov_b32 s79, s%d", sNext)
    if p.single and p.dry:
        a.i("s_mov_b32 s10, 1")
        a.i("s_mov_b64 exec, 0")
        a.i("s_branch L_loop")
        a.label("L_dryret")
        a.i("s_mov_b64 exec, -1")
        a.i("s_mov_b32 s10, 0")
    a.i("s_barrier")
    a.i("v_mov_b32 v%d, v%d", vT0 + 1, vQP)
    for w in range(4):
        a.i("ds_read_b128 v[%d:%d], v%d offset:%d", vQP + 8 * w, vQP + 8 * w + 3, vT0 + 1, w * 512)
        a.i("ds_read_b128 v[%d:%d], v%d offset:%d", vQP + 8 * w + 4, vQP + 8 * w + 7, vT0 + 1, w * 512 + 16)
    for e in range(8):
        a.i("v_mov_b32 v%d, 0", vAcc + e)
    a.i("v_mov_b32 v%d, 0xff800000", vMc)
    a.i("v_mov_b32 v%d, 0xff800000", vM)
    a.i("v_mov_b32 v%d, 0", vL)
    a.i("s_mov_b32 s%d, %d", sCnt, (NIT - 1 if p.late else NIT) if p.single else NIT - 2)
    a.i("s_waitcnt lgkmcnt(0)")
    for d in range(4):
        a.i("v_pk_add_f32 v[%d:%d], v[%d:%d], v[%d:%d]", vQP + 2 * d, vQP + 2 * d + 1, vQP + 2 * d, vQP + 2 * d + 1, vQP + 8 + 2 * d, vQP + 9 + 2 * d)
        a.i("v_pk_add_f32 v[%d:%d], v[%d:%d], v[%d:%d]", vQP + 16 + 2 * d, vQP + 17 + 2 * d, vQP + 16 + 2 * d, vQP + 17 + 2 * d, vQP + 24 + 2 * d, vQP + 25 + 2 * d)
    for d in range(4):
        a.i("v_pk_add_f32 v[%d:%d], v[%d:%d], v[%d:%d]", vQP + 2 * d, vQP + 2 * d + 1, vQP + 2 * d, vQP + 2 * d + 1, vQP + 16 + 2 * d, vQP + 17 + 2 * d)
    for d in range(4):
        a.i("v_cvt_pk_bf16_f32 v%d, v%d, v%d", vQ + d, vQP + 2 * d, vQP + 2 * d + 1)
    ts(1)

    def body(kind):
        bK, bV = (vB, vB + 4 * T) if kind == "pre" else (vK, vV)

        def wait(j):
            if kind == "pre":
                if j >= R - N + (N - min(N, p.pre)) or True:
                    n = None
                a.i("s_waitcnt vmcnt(%d)", (R - 1 - j) + N)
                return
            if kind == "first":
                n = (R - 1 - j) + max(0, j - (R - N)) + 2 * p.pf
            elif kind == "mid":
                n = N - 1
            else:
                n = min(R - 1, j + N - 1) - j
            a.i("s_waitcnt vmcnt(%d)", n)

        def issue(j):
            if kind == "pre":
                return
            k = j + N
            if k < R:
                if kind != "first":
                    kvload(k, "s%d" % sCur)
            elif kind != "last":
                kvload(k - R, "s%d" % sNext)
        for i in range(T):
            wait(i)
            k = bK + 4 * i
            a.i("v_dot2_f32_bf16 v%d, v%d, v%d, 0", vS + i, k, vQ)
            for d in range(1, 4):
                a.i("v_dot2_f32_bf16 v%d, v%d, v%d, v%d", vS + i, k + d, vQ + d, vS + i)
            issue(i)
        for r in (8, 4, 2, 1):
            for i in range(T):
                a.i("v_add_f32_dpp v%d, v%d, v%d row_ror:%d row_mask:0xf bank_mask:0xf", vS + i, vS + i, vS + i, r)
        a.i("v_max3_f32 v%d, v%d, v%d, v%d", vM, vM, vS, vS + 1)
        for i in range(2, T, 2):
            a.i("v_max3_f32 v%d, v%d, v%d, v%d", vM, vM, vS + i, vS + i + 1)
        a.i("v_mul_f32 v%d, s%d, v%d", vT0, sC, vM)
        a.i("v_sub_f32 v%d, v%d, v%d", vAl, vMc, vT0)
        a.i("v_mov_b32 v%d, v%d", vMc, vT0)
        a.i("v_exp_f32 v%d, v%d", vAl, vAl)
        for i in range(T):
            a.i("v_fma_f32 v%d, v%d, s%d, -v%d", vS + i, vS + i, sC, vMc)
        for i in range(T):
            a.i("v_exp_f32 v%d, v%d", vS + i, vS + i)
        a.i("v_mul_f32 v%d, v%d, v%d", vL, vL, vAl)
        for d in range(4):
            a.i("v_pk_mul_f32 v[%d:%d], v[%d:%d], v[%d:%d] op_sel:[0,%d] op_sel_hi:[1,%d]", vAcc + 2 * d, vAcc + 2 * d + 1,
                vAcc + 2 * d, vAcc + 2 * d + 1, vAl & ~1, (vAl & ~1) + 1, vAl & 1, vAl & 1)
        for i in range(T):
            a.i("v_add_f32 v%d, v%d, v%d", vL, vL, vS + i)
        for i in range(T):
            wait(T + i)
            vv = bV + 4 * i
            sp = (vS + i) & ~1
            hi = (vS + i) & 1
            for d in range(4):
                t = vT0 + 2 * d
                a.i("v_lshlrev_b32 v%d, 16, v%d", t, vv + d)
                a.i("v_and_b32 v%d, 0xffff0000, v%d", t + 1, vv + d)
            for d in range(4):
                t = vT0 + 2 * d
                a.i("v_pk_fma_f32 v[%d:%d], v[%d:%d], v[%d:%d], v[%d:%d] op_sel:[0,%d,0] op_sel_hi:[1,%d,1]", vAcc + 2 * d, vAcc + 2 * d + 1,
                    t, t + 1, sp, sp + 1, vAcc + 2 * d, vAcc + 2 * d + 1, hi, hi)
            issue(T + i)

    if p.single:
        sNr, sDry = 79, 10
        if p.late:
            body("pre")
            a.i("s_mov_b32 s%d, s%d", sCur, sNext)
            a.i("s_add_u32 s%d, s%d, %d", sNr, sNext, stride)
            a.i("s_and_b32 s%d, s%d, 0x%x", sNr, sNr, MASK)
            a.i("s_mov_b32 s%d, s%d", sNext, sNr)
        a(".p2align 6")
        a.label("L_loop")
        body("mid")
        if p.dry:
            a.i("s_cmp_lg_u32 s%d, 0", sDry)
            a.i("s_cbranch_scc1 L_dryret")
        a.i("s_mov_b32 s%d, s%d", sCur, sNr)
        a.i("s_add_u32 s%d, s%d, %d", sNr, sNr, stride)
        a.i("s_and_b32 s%d, s%d, 0x%x", sNr, sNr, MASK)
        a.i("s_sub_u32 s%d, s%d, 1", sCnt, sCnt)
        a.i("s_cmp_eq_u32 s%d, 1", sCnt)
        a.i("s_cselect_b32 s%d, 0x100000, s%d", sNext, sNr)
        a.i("s_cmp_lg_u32 s%d, 0", sCnt)
        a.i("s_cbranch_scc1 L_loop")
    else:
        body("pre" if p.pre else "first")
        if p.zearly:
            a.i("s_cmp_lg_u32 s%d, 4", sWave)
            a.i("s_cbranch_scc1 L_nozf")
            a.i("v_mov_b32 v%d, %d", vT0, L_ZF)
            a.i("v_mov_b32 v%d, 1", vT0 + 1)
            a.i("ds_write_b32 v%d, v%d", vT0, vT0 + 1)
            a.label("L_nozf")
        a.i("s_mov_b32 s%d, s%d", sCur, sNext)
        a.i("s_add_u32 s%d, s%d, %d", sNext, sNext, stride)
        a.i("s_and_b32 s%d, s%d, 0x%x", sNext, sNext, MASK)
        a(".p2align 6")
        a.label("L_loop")
        body("mid")
        if p.diag == 6:
            for k, it in enumerate((1, 3, 7, 15, 31, 47)):
                a.i("s_cmp_lg_u32 s%d, %d", sCnt, NIT - 1 - it)
                a.i("s_cbranch_scc1 L_ps%d", k)
                a.i("s_memrealtime s[%d:%d]", sTS + 2 + 2 * k, sTS + 3 + 2 * k)
                a.label("L_ps%d" % k)
        a.i("s_mov_b32 s%d, s%d", sCur, sNext)
        a.i("s_add_u32 s%d, s%d, %d", sNext, sNext, stride)
        a.i("s_and_b32 s%d, s%d, 0x%x", sNext, sNext, MASK)
        a.i("s_sub_u32 s%d, s%d, 1", sCnt, sCnt)
        a.i("s_cmp_lg_u32 s%d, 0", sCnt)
        a.i("s_cbranch_scc1 L_loop")
        body("last")
    ts(2)
    ts(10)
    a.i("v_mov_b32 v%d, v%d", vT0, vMc)
    a.i("v_mov_b32 v%d, v%d", vT0 + 1, vMc)
    a.i("v_permlane32_swap_b32 v%d, v%d", vT0, vT0 + 1)
    a.i("v_max_f32 v%d, v%d, v%d", vT0, vT0, vT0 + 1)
    a.i("v_mov_b32 v%d, v%d", vT0 + 1, vT0)
    a.i("v_permlane16_swap_b32 v%d, v%d", vT0, vT0 + 1)
    a.i("v_max_f32 v%d, v%d, v%d", vT0 + 2, vT0, vT0 + 1)
    a.i("v_sub_f32 v%d, v%d, v%d", vAl, vMc, vT0 + 2)
    a.i("v_exp_f32 v%d, v%d", vAl, vAl)
    a.i("v_mul_f32 v%d, v%d, v%d", vL, vL, vAl)
    for d in range(4):
        a.i("v_pk_mul_f32 v[%d:%d], v[%d:%d], v[%d:%d] op_sel:[0,%d] op_sel_hi:[1,%d]", vAcc + 2 * d, vAcc + 2 * d + 1,
            vAcc + 2 * d, vAcc + 2 * d + 1, vAl & ~1, (vAl & ~1) + 1, vAl & 1, vAl & 1)
    a.i("v_mov_b32 v%d, v%d", vT0 + 1, vL)
    a.i("v_permlane32_swap_b32 v%d, v%d", vL, vT0 + 1)
    a.i("v_add_f32 v%d, v%d, v%d", vL, vL, vT0 + 1)
    a.i("v_mov_b32 v%d, v%d", vT0 + 1, vL)
    reduce_scatter(vAcc)
    a.i("v_permlane16_swap_b32 v%d, v%d", vL, vT0 + 1)
    a.i("v_add_f32 v%d, v%d, v%d", vT0 + 3, vL, vT0 + 1)
    a.i("ds_write_b64 v%d, v[%d:%d]", vOpA, vAcc, vAcc + 1)
    a.i("s_mov_b64 exec, 1")
    a.i("ds_write_b64 v%d, v[%d:%d]", vMlA, vT0 + 2, vT0 + 3)
    a.i("s_waitcnt lgkmcnt(0)")
    ts(11)
    a.i("s_barrier")
    diag_store("s")
    a.label("L_end")
    a.i("s_endpgm")
    a.label("L_code_end")

    descr(a, NAME + "_kernel", NV, 96)
    return a.text()


def parse(argv):
    ap = argparse.ArgumentParser()
    ap.add_argument("-T", type=int, default=4)
    ap.add_argument("-N", type=int, default=6)
    ap.add_argument("--QD", type=int, default=12)
    ap.add_argument("--stagger", type=int, default=0)
    ap.add_argument("--PW", type=int, default=1)
    ap.add_argument("--pre", type=int, default=0)
    ap.add_argument("--nowq", type=int, default=0)
    ap.add_argument("--nowo", type=int, default=0)
    ap.add_argument("--touch", type=int, default=0)
    ap.add_argument("--pf", type=int, default=0)
    ap.add_argument("--pfflags", default="nt")
    ap.add_argument("--rot", type=int, default=0)
    ap.add_argument("--noz", type=int, default=0)
    ap.add_argument("--fixfin", type=int, default=0)
    ap.add_argument("--mlpoll", type=int, default=0)
    ap.add_argument("--nozs", type=int, default=0)
    ap.add_argument("--zearly", type=int, default=0)
    ap.add_argument("--single", type=int, default=0)
    ap.add_argument("--dry", type=int, default=0)
    ap.add_argument("--tags", type=int, default=0)
    ap.add_argument("--fastpoll", type=int, default=0)
    ap.add_argument("--touchout", type=int, default=0)
    ap.add_argument("--outflags", default="")
    ap.add_argument("--xdw", type=int, default=0)
    ap.add_argument("--late", type=int, default=0)
    ap.add_argument("--minlds", type=int, default=0)
    ap.add_argument("--kvflags", default="nt")
    ap.add_argument("--wqflags", default="")
    ap.add_argument("--woflags", default="")
    ap.add_argument("--diag", type=int, default=0)
    ap.add_argument("-o", default="/dev/stdout")
    p = ap.parse_args(argv)
    for k in ("kvflags", "wqflags", "woflags", "pfflags", "outflags"):
        s = getattr(p, k).strip().replace("+", " ")
        if s == "none":
            s = ""
        setattr(p, k, " " + s if s else "")
    return p


if __name__ == "__main__":
    p = parse(sys.argv[1:])
    open(p.o, "w").write(gen(p))
```

```python
import sys, argparse, math, struct
from asmlib import Asm
from gen2 import VM, lg, f32hex, descr, CLOG, NAME

HEADER = """; Decode attention of two independent branches (A, B) with fused q / output projections; out = concat(A, B).
; Workgroup (branch, head, split) streams 4096 keys.  Waves 0-3 (helpers): q projection, wo prefetch, output
; workgroup first zeroes its own slots and counts that in d_debug; published words are never zero, so a non-zero word is
; zeroed, high half = arrival tickets; the last 32 arrivals of a branch each reduce 16 output columns.
"""


def gen(p):
    T, N = p.T, p.N
    R = 2 * T
    assert N <= R
    NS = 4
    NIT = 1024 // (NS * T)
    NWQ = 32
    RPG = 32
    NX = 4
    QD = p.QD
    assert QD % 2 == 0
    NWO = 32
    F = 32
    kvf = p.kvflags
    L_QP = 0
    L_OP = 2048
    L_ML = 4096
    L_ZF = 4160
    LDS = max(4352, p.minlds)

    a = Asm()
    a(HEADER.rstrip())
    a("; @launch grid=(256,1,1) block=(512,1,1) lds=%d" % LDS)
    a('.amdgcn_target "amdgcn-amd-amdhsa--gfx950"')
    a(".text")
    a(".globl %s_kernel" % NAME)
    a(".p2align 8")
    a(".type %s_kernel,@function" % NAME)
    a("%s_kernel:" % NAME)

    sXp, sKp, sVp, sWqp, sWop = 16, 18, 20, 22, 24
    sOutP, sDbgP, sWsP = 36, 38, 40
    sK, sV, sWq, sWo, sX, sWs = 44, 48, 52, 56, 60, 64
    sDbg, sOut = 44, 48
    sHead, sSplit, sBr, sWave = 68, 69, 70, 71
    sCur, sCnt, sT0, sT1, sC, sNext = 72, 73, 74, 75, 76, 77
    sP, sQoff = 78, 79
    sTS = 80
    sW4 = 15
    sPlo, sPhi = 12, 13
    sTk = 14
    sTag = 9
    sSpin = 11
    vLane, vOffKV = 1, 2
    nOff = max(1, T // 4)
    v = 2 + nOff
    vQ = (v + 1) // 2 * 2; v = vQ + 4
    vM, vL, vMc, vAl = v, v + 1, v + 2, v + 3; v += 4
    vT0 = v; v += 8
    vAcc = v; v += 8
    vS = v; v += max(T, 8)
    vOpA, vMlA, vYoff, vWoOff, vWqOff, vTk, vDum = range(v, v + 7); v += 7
    vK = (v + 3) // 4 * 4
    vV = vK + 4 * T
    vW = vK
    vWq = vK
    vXr = vK + 64
    vQP = vK + 8 * T
    vB = vQP + 32
    NV = max(vW + 128, vQP + 32, vB + 8 * T if (p.pre or p.late) else 0)
    assert QD * 4 <= 64 and NV <= 256, NV

    def ts(k):
        if p.diag == 7 and k in (0, 1, 10):
            r = {0: 80, 1: 82, 10: 84}[k]
            a.i("s_memrealtime s[%d:%d]", r, r + 1)
        if p.diag == 6 and k == 0:
            a.i("s_memrealtime s[%d:%d]", sTS, sTS + 1)
        if p.diag == 6 and k == 2:
            a.i("s_memrealtime s[%d:%d]", sTS + 14, sTS + 15)
        if p.diag == 1 and k < 4:
            a.i("s_memrealtime s[%d:%d]", sTS + 2 * k, sTS + 2 * k + 1)
        if p.diag == 5 and k >= 20:
            a.i("s_memtime s[%d:%d]", sTS + 2 * (k - 20), sTS + 2 * (k - 20) + 1)
        if p.diag == 4 and 10 <= k < 20:
            a.i("s_memtime s[%d:%d]", sTS + 2 * (k - 10), sTS + 2 * (k - 10) + 1)

    def srd(base, ptr, offreg, nrec):
        if offreg is None:
            a.i("s_mov_b32 s%d, s%d", base, ptr)
            a.i("s_mov_b32 s%d, s%d", base + 1, ptr + 1)
        else:
            a.i("s_add_u32 s%d, s%d, s%d", base, ptr, offreg)
            a.i("s_addc_u32 s%d, s%d, 0", base + 1, ptr + 1)
        a.i("s_mov_b32 s%d, 0x%x", base + 2, nrec)
        a.i("s_mov_b32 s%d, 0x20000", base + 3)

    def reduce_scatter(base):
        for e in range(4):
            a.i("v_permlane32_swap_b32 v%d, v%d", base + e, base + e + 4)
        for e in range(4):
            a.i("v_add_f32 v%d, v%d, v%d", base + e, base + e, base + e + 4)
        for e in range(2):
            a.i("v_permlane16_swap_b32 v%d, v%d", base + e, base + e + 2)
        for e in range(2):
            a.i("v_add_f32 v%d, v%d, v%d", base + e, base + e, base + e + 2)

    def diag_store(lab):
        if not p.diag or p.diag == 7:
            return
        ts(3)
        ts(17)
        ts(27)
        a.i("s_mov_b64 exec, 1")
        a.i("s_waitcnt vmcnt(0) lgkmcnt(0)")
        a.i("v_mov_b32 v%d, 0", vT0)
        for k in range(8):
            a.i("v_mov_b32 v%d, s%d", vK + k, sTS + (2 * k if p.diag >= 4 else k))
        a.i("s_mul_i32 s%d, s2, 8", sT1)
        a.i("s_add_u32 s%d, s%d, s%d", sT1, sT1, sWave)
        a.i("s_lshl_b32 s%d, s%d, 5", sT1, sT1)
        a.i("s_add_u32 s%d, s%d, 0x100000", sT1, sT1)
        a.i("buffer_store_dwordx4 v[%d:%d], v%d, s[%d:%d], s%d offen", vK, vK + 3, vT0, sWs, sWs + 3, sT1)
        a.i("buffer_store_dwordx4 v[%d:%d], v%d, s[%d:%d], s%d offen offset:16", vK + 4, vK + 7, vT0, sWs, sWs + 3, sT1)

    WSREC = 0x100000 if p.diag in (0, 7) else 0x200000
    a.i("s_cmp_ge_u32 s2, 256")
    a.i("s_cbranch_scc1 L_end")
    a.i("s_load_dwordx16 s[16:31], s[0:1], 0")
    a.i("s_load_dwordx8 s[32:39], s[0:1], 64")
    a.i("s_load_dwordx2 s[40:41], s[0:1], 96")
    if p.touch:
        a.i("s_getpc_b64 s[8:9]")
        a.label("L_pc")
        a.i("v_and_b32 v%d, 63, v0", vTk)
        a.i("v_lshlrev_b32 v%d, 7, v%d", vTk, vTk)
        a.i("v_lshrrev_b32 v%d, 6, v0", vDum)
        a.i("v_lshl_add_u32 v%d, v%d, 13, v%d", vTk, vDum, vTk)
        a.i("v_cmp_gt_u32 vcc, L_code_end-L_pc, v%d", vTk)
        a.i("s_and_saveexec_b64 s[6:7], vcc")
        a.i("s_cbranch_execz L_notouch")
        a.i("global_load_dword v%d, v%d, s[8:9]", vDum, vTk)
        a.label("L_notouch")
        a.i("s_mov_b64 exec, s[6:7]")
    ts(0)
    ts(20)
    if p.diag == 4:
        for k in range(16):
            a.i("s_mov_b32 s%d, 0", sTS + k)
    a.i("v_and_b32 v%d, 63, v0", vLane)
    a.i("v_lshrrev_b32 v%d, 6, v0", vT0)
    a.i("s_and_b32 s%d, s2, 31", sHead)
    a.i("s_lshr_b32 s%d, s2, 6", sSplit)
    a.i("s_bfe_u32 s%d, s2, 0x10005", sBr)
    a.i("v_readfirstlane_b32 s%d, v%d", sWave, vT0)
    a.i("s_and_b32 s%d, s2, 63", sP)
    a.i("s_lshl_b32 s%d, s%d, 2", sP, sP)
    a.i("s_add_u32 s%d, s%d, s%d", sP, sP, sSplit)
    a.i("s_and_b32 s%d, s%d, 3", sW4, sWave)
    a.i("v_lshrrev_b32 v%d, 4, v%d", vT0, vLane)
    a.i("v_and_b32 v%d, 15, v%d", vT0 + 1, vLane)
    a.i("s_cmp_ge_u32 s%d, 4", sWave)
    a.i("s_cbranch_scc1 L_stream")

    vm = VM(a)
    a.i("s_lshl_b32 s%d, s%d, %d", sT0, sW4, lg(RPG * 4 * 2))
    a.i("v_lshlrev_b32 v%d, %d, v%d", vT0 + 2, lg(RPG * 2), vT0)
    a.i("v_add_u32 v%d, s%d, v%d", vT0 + 2, sT0, vT0 + 2)
    a.i("v_lshlrev_b32 v%d, %d, v%d", vWqOff, lg(RPG * 8192), vT0)
    a.i("v_lshl_add_u32 v%d, v%d, 4, v%d", vWqOff, vT0 + 1, vWqOff)
    a.i("s_lshl_b32 s%d, s%d, %d", sT0, sW4, lg(RPG * 4 * 8192))
    a.i("s_lshl_b32 s%d, s%d, 8", sT1, sHead)
    a.i("s_add_u32 s%d, s%d, s%d", sQoff, sT0, sT1)
    a.i("v_lshlrev_b32 v%d, 3, v%d", vT0 + 3, vT0)
    a.i("v_lshl_add_u32 v%d, v%d, 5, v%d", vYoff, vT0 + 1, vT0 + 3)
    a.i("s_lshl_b32 s%d, s%d, 9", sT0, sW4)
    a.i("s_lshl_b32 s%d, s%d, 11", sT1, sP)
    a.i("s_add_u32 s%d, s%d, s%d", sT0, sT0, sT1)
    a.i("v_add_u32 v%d, s%d, v%d", vYoff, sT0, vYoff)
    a.i("s_waitcnt lgkmcnt(0)")
    ts(21)
    a.i("s_cmp_eq_u32 s%d, 0", sBr)
    a.i("s_cselect_b64 s[16:17], s[16:17], s[26:27]")
    a.i("s_cselect_b64 s[22:23], s[22:23], s[32:33]")
    a.i("s_cselect_b64 s[24:25], s[24:25], s[34:35]")
    if p.tags:
        a.i("s_lshl_b32 s%d, s%d, 7", sT0, sBr)
        a.i("s_load_dword s%d, s[%d:%d], s%d offset:0x90000", sTag, sWsP, sWsP + 1, sT0)
    srd(sX, sXp, None, 1024)
    srd(sWq, sWqp, None, 512 * 8192)

    sQrel = 10
    if p.rot:
        a.i("s_lshl_b32 s%d, s%d, 16", sQrel, sSplit)
        a.i("s_mov_b32 s%d, s%d", sCnt, sQoff)
        a.i("s_add_u32 s%d, s%d, s%d", sQoff, sCnt, sQrel)

    def wqload(j):
        if p.rot:
            s = j % QD
            a.i("buffer_load_dwordx4 v[%d:%d], v%d, s[%d:%d], s%d offen%s", vWq + 4 * s, vWq + 4 * s + 3, vWqOff, sWq, sWq + 3, sQoff, p.wqflags)
            vm.issue("wq%d" % j)
            if j != NWQ - 1:
                a.i("s_add_u32 s%d, s%d, 8192", sQrel, sQrel)
                a.i("s_and_b32 s%d, s%d, 0x3ffff", sQrel, sQrel)
                a.i("s_add_u32 s%d, s%d, s%d", sQoff, sCnt, sQrel)
            return
        if p.nowq:
            vm.issue("wq%d" % j)
            a.i("buffer_load_dwordx4 v[%d:%d], v%d, s[%d:%d], 0 offen", vWq + 4 * (j % QD), vWq + 4 * (j % QD) + 3, vT0 + 2, sX, sX + 3)
            return
        s = j % QD
        a.i("buffer_load_dwordx4 v[%d:%d], v%d, s[%d:%d], s%d offen%s", vWq + 4 * s, vWq + 4 * s + 3, vWqOff, sWq, sWq + 3, sQoff, p.wqflags)
        vm.issue("wq%d" % j)
        if j != NWQ - 1:
            a.i("s_add_u32 s%d, s%d, 8192", sQoff, sQoff)
    if p.xdw:
        a.i("v_lshl_add_u32 v%d, v%d, 2, v%d", vT0 + 2, vT0 + 1, vT0 + 2)
        a.i("buffer_load_dword v%d, v%d, s[%d:%d], 0 offen", vXr, vT0 + 2, sX, sX + 3)
        vm.issue("x%d" % (NX - 1))
    else:
        for j in range(NX):
            if p.rot:
                a.i("s_add_u32 s%d, s%d, %d", sT0, sSplit, j)
                a.i("s_and_b32 s%d, s%d, 3", sT0, sT0)
                a.i("s_lshl_b32 s%d, s%d, 4", sT0, sT0)
                a.i("buffer_load_dwordx4 v[%d:%d], v%d, s[%d:%d], s%d offen", vXr + 4 * j, vXr + 4 * j + 3, vT0 + 2, sX, sX + 3, sT0)
            else:
                a.i("buffer_load_dwordx4 v[%d:%d], v%d, s[%d:%d], 0 offen offset:%d", vXr + 4 * j, vXr + 4 * j + 3, vT0 + 2, sX, sX + 3, 16 * j)
            vm.issue("x%d" % j)
    for j in range(QD):
        wqload(j)
    nq = QD
    srd(sWs, sWsP, None, WSREC)
    a.i("s_lshl_b32 s%d, s%d, %d", sT1, sP, 4 if p.tags else 3)
    a.i("s_add_u32 s%d, s%d, 0x80000", sT1, sT1)
    a.i("v_mov_b32 v%d, s%d", vMlA, sT1)
    a.i("s_lshl_b32 s%d, s%d, 17", sT0, sHead)
    srd(sWo, sWop, sT0, 131072)
    srd(sDbg, sDbgP, None, 256)
    srd(sOut, sOutP, None, 2048)
    a.i("s_mov_b32 s%d, 0x05040100", sPlo)
    a.i("s_mov_b32 s%d, 0x07060302", sPhi)
    a.i("v_lshlrev_b32 v%d, 11, v%d", vWoOff, vT0)
    a.i("v_lshl_add_u32 v%d, v%d, 4, v%d", vWoOff, vT0 + 1, vWoOff)
    a.i("s_lshl_b32 s%d, s%d, 8", sT0, sW4)
    a.i("v_add_u32 v%d, s%d, v%d", vWoOff, sT0, vWoOff)
    vA = vAcc
    for e in range(8):
        a.i("v_mov_b32 v%d, 0", vA + e)
    vm.maybe_wait("x%d" % (NX - 1))
    for m in range(NWQ // 2):
        vm.wait("wq%d" % (2 * m + 1))
        if m == 0:
            ts(22)
        if m == 8:
            ts(23)
        s0 = vWq + 4 * ((2 * m) % QD)
        s1 = vWq + 4 * ((2 * m + 1) % QD)
        xr = vXr + m
        if p.xdw:
            xr = vXr + 1 + (m % 2)
            a.i("v_mov_b32_dpp v%d, v%d row_newbcast:%d row_mask:0xf bank_mask:0xf", xr, vXr, m)
        for d in range(4):
            a.i("v_perm_b32 v%d, v%d, v%d, s%d", vT0 + 2 * (d % 2), s1 + d, s0 + d, sPlo)
            a.i("v_perm_b32 v%d, v%d, v%d, s%d", vT0 + 2 * (d % 2) + 1, s1 + d, s0 + d, sPhi)
            a.i("v_dot2_f32_bf16 v%d, v%d, v%d, v%d", vA + 2 * d, vT0 + 2 * (d % 2), xr, vA + 2 * d)
            a.i("v_dot2_f32_bf16 v%d, v%d, v%d, v%d", vA + 2 * d + 1, vT0 + 2 * (d % 2) + 1, xr, vA + 2 * d + 1)
        for _ in range(2):
            if nq < NWQ:
                wqload(nq); nq += 1
                if nq == NWQ and p.late:
                    a.i("s_barrier")
    ts(24)
    reduce_scatter(vA)
    a.i("v_lshrrev_b32 v%d, 4, v%d", vT0, vLane)
    a.i("v_and_b32 v%d, 15, v%d", vT0 + 1, vLane)
    a.i("v_lshlrev_b32 v%d, 3, v%d", vT0, vT0)
    a.i("v_lshl_add_u32 v%d, v%d, 5, v%d", vT0, vT0 + 1, vT0)
    a.i("s_lshl_b32 s%d, s%d, 9", sT0, sW4)
    a.i("s_add_u32 s%d, s%d, %d", sT0, sT0, L_QP)
    a.i("v_add_u32 v%d, s%d, v%d", vT0, sT0, vT0)
    a.i("ds_write_b64 v%d, v[%d:%d]", vT0, vA, vA + 1)
    if p.zearly:
        a.i("v_mov_b32 v%d, %d", vT0 + 2, L_ZF)
        a.i("v_mov_b32 v%d, 0", vT0 + 3)
        a.i("ds_write_b32 v%d, v%d", vT0 + 2, vT0 + 3)
    a.i("s_waitcnt lgkmcnt(0)")
    ts(25)
    a.i("s_barrier")
    ts(1)
    ts(26)
    a.i("s_lshl_b32 s%d, s%d, 7", sC, sBr)
    if p.tags:
        a.i("s_mul_i32 s%d, s%d, 0x9E3779B1", sTag, sTag)
        a.i("s_add_u32 s%d, s%d, 0x7F4A7C15", sTag, sTag)
    if not p.zearly and not p.tags:
        a.i("s_cmp_lg_u32 s%d, 0", sWave)
        a.i("s_cbranch_scc1 L_noz")
        for e in range(4):
            a.i("v_mov_b32 v%d, 0", vT0 + e)
        a.i("v_lshlrev_b32 v%d, 5, v%d", vT0 + 4, vLane)
        a.i("s_lshl_b32 s%d, s%d, 11", sT1, sP)
        if not p.nozs:
            a.i("buffer_store_dwordx4 v[%d:%d], v%d, s[%d:%d], s%d offen sc1", vT0, vT0 + 3, vT0 + 4, sWs, sWs + 3, sT1)
            a.i("buffer_store_dwordx4 v[%d:%d], v%d, s[%d:%d], s%d offen offset:16 sc1", vT0, vT0 + 3, vT0 + 4, sWs, sWs + 3, sT1)
        a.i("v_mov_b32 v%d, 0", vT0 + 6)
        a.i("v_mov_b32 v%d, 1", vT0 + 7)
        a.i("s_mov_b64 exec, 1")
        if not p.nozs:
            a.i("buffer_store_dwordx2 v[%d:%d], v%d, s[%d:%d], 0 offen sc1", vT0, vT0 + 1, vMlA, sWs, sWs + 3)
        a.i("s_waitcnt vmcnt(0)")
        if not p.noz:
            a.i("buffer_atomic_add v%d, v%d, s[%d:%d], s%d offen sc1", vT0 + 7, vT0 + 6, sDbg, sDbg + 3, sC)
        a.i("s_mov_b64 exec, -1")
        a.label("L_noz")
    a("; ---- wo prefetch: 128 rows x 128 columns per helper, rows interleaved in pairs for v_dot2")
    a.i("s_mov_b32 s%d, 0", sCur)
    NP = NWO // 2

    def wo_issue(m):
        b = vW + 8 * m
        if p.nowo:
            return
        a.i("buffer_load_dwordx4 v[%d:%d], v%d, s[%d:%d], s%d offen%s", b, b + 3, vWoOff, sWo, sWo + 3, sCur, p.woflags)
        a.i("buffer_load_dwordx4 v[%d:%d], v%d, s[%d:%d], s%d offen offset:1024%s", b + 4, b + 7, vWoOff, sWo, sWo + 3, sCur, p.woflags)
        a.i("s_add_u32 s%d, s%d, 8192", sCur, sCur)
    for m in range(min(p.PW, NP)):
        wo_issue(m)
    for m in range(NP):
        b = vW + 8 * m
        inflight = min(NP, m + p.PW) - (m + 1)
        a.i("s_waitcnt vmcnt(%d)", 2 * inflight)
        for d in range(4):
            a.i("v_perm_b32 v%d, v%d, v%d, s%d", vT0, b + 4 + d, b + d, sPlo)
            a.i("v_perm_b32 v%d, v%d, v%d, s%d", b + 4 + d, b + 4 + d, b + d, sPhi)
            a.i("v_mov_b32 v%d, v%d", b + d, vT0)
        if m + p.PW < NP:
            wo_issue(m + p.PW)
    if p.zearly and not p.noz:
        a.i("s_cmp_lg_u32 s%d, 0", sWave)
        a.i("s_cbranch_scc1 L_noz")
        a.i("v_mov_b32 v%d, %d", vT0 + 2, L_ZF)
        a.label("L_zfw")
        a.i("ds_read_b32 v%d, v%d", vT0 + 3, vT0 + 2)
        a.i("s_waitcnt lgkmcnt(0)")
        a.i("v_readfirstlane_b32 s%d, v%d", sT0, vT0 + 3)
        a.i("s_cmp_eq_u32 s%d, 0", sT0)
        a.i("s_cbranch_scc1 L_zfw")
        a.i("v_mov_b32 v%d, 0", vT0 + 6)
        a.i("v_mov_b32 v%d, 1", vT0 + 7)
        a.i("s_mov_b64 exec, 1")
        a.i("buffer_atomic_add v%d, v%d, s[%d:%d], s%d offen sc1", vT0 + 7, vT0 + 6, sDbg, sDbg + 3, sC)
        a.i("s_mov_b64 exec, -1")
        a.label("L_noz")
    if p.touchout:
        a.i("v_mov_b32 v%d, 0", vT0 + 2)
        a.i("s_lshl_b32 s%d, s%d, 10", sT0, sBr)
        a.i("s_mov_b64 exec, 1")
        a.i("buffer_load_dword v%d, v%d, s[%d:%d], s%d offen", vDum, vT0 + 2, sOut, sOut + 3, sT0)
        a.i("s_mov_b64 exec, -1")
        a.i("s_waitcnt vmcnt(0)")
    a.i("v_lshlrev_b32 v%d, 3, v%d", vOpA, vLane)
    a.i("v_add_u32 v%d, %d, v%d", vOpA, L_OP, vOpA)
    a.i("v_mov_b32 v%d, %d", vT0 + 7, L_ML)
    a.i("v_mov_b32 v%d, 0", vT0 + 6)
    a.i("v_mov_b32 v%d, 0x10000", vTk)
    for e in range(8):
        a.i("v_mov_b32 v%d, 0", vAcc + e)
    ts(2)
    a.i("s_barrier")
    ts(10)
    a.i("s_cmp_lg_u32 s%d, 0", sWave)
    a.i("s_cbranch_scc1 L_notk")
    if not p.fixfin:
        a.i("s_mov_b64 exec, 1")
        a.i("buffer_atomic_add v%d, v%d, s[%d:%d], s%d offen sc0 sc1", vTk, vT0 + 6, sDbg, sDbg + 3, sC)
        a.i("s_mov_b64 exec, -1")
    a.label("L_notk")
    for w in range(4):
        a.i("ds_read_b64 v[%d:%d], v%d offset:%d", vS + 2 * w, vS + 2 * w + 1, vOpA, 512 * w)
    a.i("ds_read_b128 v[%d:%d], v%d", vT0, vT0 + 3, vT0 + 7)
    a.i("ds_read_b128 v[%d:%d], v%d offset:16", vQ, vQ + 3, vT0 + 7)
    a.i("s_waitcnt lgkmcnt(0)")
    mc = [vT0, vT0 + 2, vQ, vQ + 2]
    a.i("v_max3_f32 v%d, v%d, v%d, v%d", vM, mc[0], mc[1], mc[2])
    a.i("v_max_f32 v%d, v%d, v%d", vM, vM, mc[3])
    for w in range(4):
        a.i("v_sub_f32 v%d, v%d, v%d", mc[w], mc[w], vM)
    for w in range(4):
        a.i("v_exp_f32 v%d, v%d", mc[w], mc[w])
    a.i("v_mul_f32 v%d, v%d, v%d", vL, mc[0], mc[0] + 1)
    for w in range(1, 4):
        a.i("v_fmac_f32 v%d, v%d, v%d", vL, mc[w], mc[w] + 1)
    a.i("v_pk_mul_f32 v[%d:%d], v[%d:%d], v[%d:%d] op_sel_hi:[1,0]", vS, vS + 1, vS, vS + 1, mc[0], mc[0] + 1)
    for w in range(1, 4):
        a.i("v_pk_fma_f32 v[%d:%d], v[%d:%d], v[%d:%d], v[%d:%d] op_sel_hi:[1,0,1]", vS, vS + 1, vS + 2 * w, vS + 2 * w + 1, mc[w], mc[w] + 1, vS, vS + 1)
    a.i("v_cvt_pk_bf16_f32 v%d, v%d, v%d", vS, vS, vS + 1)
    ts(11)
    a(".p2align 3")
    for m in range(16):
        t = vT0 + (m % 2)
        a.i("v_mov_b32_dpp v%d, v%d row_newbcast:%d row_mask:0xf bank_mask:0xf", t, vS, m)
        for d in range(4):
            a.i("v_dot2_f32_bf16 v%d, v%d, v%d, v%d", vAcc + 2 * d, vW + 8 * m + d, t, vAcc + 2 * d)
            a.i("v_dot2_f32_bf16 v%d, v%d, v%d, v%d", vAcc + 2 * d + 1, vW + 8 * m + 4 + d, t, vAcc + 2 * d + 1)
    ts(12)
    reduce_scatter(vAcc)
    if p.tags:
        a.i("v_cvt_pk_bf16_f32 v%d, v%d, v%d", vAcc, vAcc, vAcc + 1)
        a.i("v_mov_b32 v%d, s%d", vAcc + 1, sTag)
    else:
        a.i("v_max_u32 v%d, 1, v%d", vAcc, vAcc)
        a.i("v_max_u32 v%d, 1, v%d", vAcc + 1, vAcc + 1)
    a.i("buffer_store_dwordx2 v[%d:%d], v%d, s[%d:%d], 0 offen sc1", vAcc, vAcc + 1, vYoff, sWs, sWs + 3)
    a.i("s_cmp_lg_u32 s%d, 0", sWave)
    a.i("s_cbranch_scc1 L_done")
    if p.tags:
        a.i("v_mov_b32 v%d, v%d", vT0, vM)
        a.i("v_mov_b32 v%d, s%d", vT0 + 1, sTag)
        a.i("v_mov_b32 v%d, v%d", vT0 + 2, vL)
        a.i("v_mov_b32 v%d, s%d", vT0 + 3, sTag)
        a.i("s_mov_b64 exec, 1")
        a.i("buffer_store_dwordx4 v[%d:%d], v%d, s[%d:%d], 0 offen sc1", vT0, vT0 + 3, vMlA, sWs, sWs + 3)
        a.i("s_mov_b64 exec, -1")
        a.i("s_nop 1")
    else:
        a.i("v_max_u32 v%d, 1, v%d", vT0 + 2, vM)
        a.i("v_max_u32 v%d, 1, v%d", vT0 + 3, vL)
        a.i("s_mov_b64 exec, 1")
        a.i("buffer_store_dwordx2 v[%d:%d], v%d, s[%d:%d], 0 offen sc1", vT0 + 2, vT0 + 3, vMlA, sWs, sWs + 3)
        a.i("s_mov_b64 exec, -1")
    ts(13)
    a("; ---- the last 32 arrivals of a branch reduce 16 output columns each over all 128 partial projections")
    a.i("v_lshrrev_b32 v%d, 2, v%d", vT0, vLane)
    a.i("v_and_b32 v%d, 3, v%d", vT0 + 1, vLane)
    a.i("v_lshlrev_b32 v%d, 11, v%d", vYoff, vT0)
    a.i("v_lshl_add_u32 v%d, v%d, 4, v%d", vYoff, vT0 + 1, vYoff)
    a.i("v_lshlrev_b32 v%d, %d, v%d", vMlA, 4 if p.tags else 3, vT0)
    if p.fixfin:
        a.i("s_cmp_lg_u32 s%d, 3", sSplit)
        a.i("s_cbranch_scc1 L_done")
        a.i("s_mov_b32 s%d, s%d", sNext, sHead)
    else:
        a.i("s_waitcnt vmcnt(2)")
        a.i("v_readfirstlane_b32 s%d, v%d", sTk, vTk)
        a.i("s_lshr_b32 s%d, s%d, 16", sT0, sTk)
        a.i("s_cmp_lt_u32 s%d, %d", sT0, 128 - F)
        a.i("s_cbranch_scc1 L_done")
        a.i("s_sub_u32 s%d, s%d, %d", sNext, sT0, 128 - F)
    if not p.noz and not p.fixfin and not p.tags:
        a.i("s_and_b32 s%d, s%d, 0xffff", sT0, sTk)
        a.i("s_cmp_eq_u32 s%d, 128", sT0)
        a.i("s_cbranch_scc1 L_zok")
        a.i("s_mov_b32 s%d, 0x10000", sSpin)
        a.label("L_zspin")
        a.i("s_sub_u32 s%d, s%d, 1", sSpin, sSpin)
        a.i("s_cmp_eq_u32 s%d, 0", sSpin)
        a.i("s_cbranch_scc1 L_zok")
        a.i("s_mov_b64 exec, 1")
        a.i("buffer_load_dword v%d, v%d, s[%d:%d], s%d offen sc1", vTk, vT0 + 6, sDbg, sDbg + 3, sC)
        a.i("s_waitcnt vmcnt(0)")
        a.i("v_readfirstlane_b32 s%d, v%d", sTk, vTk)
        a.i("s_mov_b64 exec, -1")
        a.i("s_and_b32 s%d, s%d, 0xffff", sT0, sTk)
        a.i("s_cmp_eq_u32 s%d, 128", sT0)
        a.i("s_cbranch_scc0 L_zspin")
    a.label("L_zok")
    ts(14)
    vY = vW
    vMl = vW + 32
    a.i("s_lshl_b32 s%d, s%d, 18", sT0, sBr)
    a.i("s_lshl_b32 s%d, s%d, 6", sT1, sNext)
    a.i("s_add_u32 s%d, s%d, s%d", sQoff, sT0, sT1)
    a.i("s_lshl_b32 s%d, s%d, %d", sT0, sBr, 11 if p.tags else 10)
    a.i("s_add_u32 s%d, s%d, 0x80000", sCnt, sT0)
    if p.mlpoll:
        a.i("v_lshlrev_b32 v%d, 4, v%d", vT0 + 1, vLane)
        a.i("s_mov_b32 s%d, 0x10000", sSpin)
        a.label("L_poll1")
        a.i("buffer_load_dwordx4 v[%d:%d], v%d, s[%d:%d], s%d offen sc1", vMl, vMl + 3, vT0 + 1, sWs, sWs + 3, sCnt)
        a.i("s_waitcnt vmcnt(0)")
        a.i("v_min3_u32 v%d, v%d, v%d, v%d", vT0, vMl, vMl + 1, vMl + 2)
        a.i("v_min_u32 v%d, v%d, v%d", vT0, vT0, vMl + 3)
        a.i("v_cmp_eq_u32 vcc, 0, v%d", vT0)
        a.i("s_sub_u32 s%d, s%d, 1", sSpin, sSpin)
        a.i("s_cbranch_scc1 L_poll1ok")
        a.i("s_cbranch_vccz L_poll1ok")
        a.i("s_sleep %d", p.mlpoll)
        a.i("s_branch L_poll1")
        a.label("L_poll1ok")
    if p.tags:
        vMl = vW + 32
        vLo, vHi = vT0, vT0 + 1
        a.i("s_mov_b32 s%d, 0x10000", sSpin)
        a.label("L_poll")
        a.i("s_mov_b32 s%d, s%d", sCur, sQoff)
        for j in range(8):
            a.i("buffer_load_dwordx4 v[%d:%d], v%d, s[%d:%d], s%d offen offset:%d sc1", vMl + 4 * j, vMl + 4 * j + 3, vMlA, sWs, sWs + 3, sCnt, 256 * j)
        for j in range(8):
            a.i("buffer_load_dwordx4 v[%d:%d], v%d, s[%d:%d], s%d offen sc1", vY + 4 * j, vY + 4 * j + 3, vYoff, sWs, sWs + 3, sCur)
            if j != 7:
                a.i("s_add_u32 s%d, s%d, 32768", sCur, sCur)
        a.i("v_mov_b32 v%d, s%d", vLo, sTag)
        a.i("v_mov_b32 v%d, s%d", vHi, sTag)
        a.i("s_waitcnt vmcnt(8)")
        for j in range(8):
            a.i("v_min3_u32 v%d, v%d, v%d, v%d", vLo, vLo, vMl + 4 * j + 1, vMl + 4 * j + 3)
            a.i("v_max3_u32 v%d, v%d, v%d, v%d", vHi, vHi, vMl + 4 * j + 1, vMl + 4 * j + 3)
        for j in range(8):
            a.i("v_max_f32_dpp v%d, v%d, v%d row_ror:4 row_mask:0xf bank_mask:0xf", vS + j, vMl + 4 * j, vMl + 4 * j)
        for j in range(8):
            a.i("v_max_f32_dpp v%d, v%d, v%d row_ror:8 row_mask:0xf bank_mask:0xf", vS + j, vS + j, vS + j)
        for j in range(8):
            a.i("v_sub_f32 v%d, v%d, v%d", vS + j, vMl + 4 * j, vS + j)
        for j in range(8):
            a.i("v_exp_f32 v%d, v%d", vS + j, vS + j)
        for j in range(8):
            a.i("v_mul_f32 v%d, v%d, v%d", vMl + 4 * j + 2, vMl + 4 * j + 2, vS + j)
        for r in (4, 8):
            for j in range(8):
                a.i("v_add_f32_dpp v%d, v%d, v%d row_ror:%d row_mask:0xf bank_mask:0xf", vMl + 4 * j + 2, vMl + 4 * j + 2, vMl + 4 * j + 2, r)
        for j in range(8):
            a.i("v_rcp_f32 v%d, v%d", vMl + 4 * j + 2, vMl + 4 * j + 2)
        for j in range(8):
            a.i("v_mul_f32 v%d, v%d, v%d", vS + j, vS + j, vMl + 4 * j + 2)
        a.i("s_waitcnt vmcnt(0)")
        for j in range(8):
            a.i("v_min3_u32 v%d, v%d, v%d, v%d", vLo, vLo, vY + 4 * j + 1, vY + 4 * j + 3)
            a.i("v_max3_u32 v%d, v%d, v%d, v%d", vHi, vHi, vY + 4 * j + 1, vY + 4 * j + 3)
        a.i("v_cmp_ne_u32 vcc, v%d, v%d", vLo, vHi)
        a.i("s_sub_u32 s%d, s%d, 1", sSpin, sSpin)
        a.i("s_cbranch_scc1 L_pollok")
        a.i("s_cbranch_vccnz L_poll")
        a.label("L_pollok")
        ts(15)
        a.i("s_cmp_lg_u32 s%d, 0", sNext)
        a.i("s_cbranch_scc1 L_noep")
        a.i("s_lshl_b32 s%d, s%d, 7", sT0, sBr)
        a.i("s_add_u32 s%d, s%d, 0x90000", sT0, sT0)
        a.i("v_mov_b32 v%d, 0", vT0 + 2)
        a.i("v_mov_b32 v%d, s%d", vT0 + 3, sTag)
        a.i("s_mov_b64 exec, 1")
        a.i("buffer_store_dword v%d, v%d, s[%d:%d], s%d offen sc1", vT0 + 3, vT0 + 2, sWs, sWs + 3, sT0)
        a.i("s_mov_b64 exec, -1")
        a.label("L_noep")
        for j in range(8):
            y = vY + 4 * j
            a.i("v_lshlrev_b32 v%d, 16, v%d", vT0 + 4, y)
            a.i("v_and_b32 v%d, 0xffff0000, v%d", vT0 + 5, y)
            a.i("v_lshlrev_b32 v%d, 16, v%d", vT0 + 6, y + 2)
            a.i("v_and_b32 v%d, 0xffff0000, v%d", vT0 + 7, y + 2)
            for e in range(4):
                if j == 0:
                    a.i("v_mul_f32 v%d, v%d, v%d", vAcc + e, vS, vT0 + 4 + e)
                else:
                    a.i("v_fmac_f32 v%d, v%d, v%d", vAcc + e, vS + j, vT0 + 4 + e)
    else:
        a.i("s_mov_b32 s%d, 0x10000", sSpin)
        a.label("L_poll")
        a.i("s_mov_b32 s%d, s%d", sCur, sQoff)
        for j in range(8):
            a.i("buffer_load_dwordx2 v[%d:%d], v%d, s[%d:%d], s%d offen offset:%d sc1", vMl + 2 * j, vMl + 2 * j + 1, vMlA, sWs, sWs + 3, sCnt, 128 * j)
        for j in range(8):
            a.i("buffer_load_dwordx4 v[%d:%d], v%d, s[%d:%d], s%d offen sc1", vY + 4 * j, vY + 4 * j + 3, vYoff, sWs, sWs + 3, sCur)
            if j != 7:
                a.i("s_add_u32 s%d, s%d, 32768", sCur, sCur)
        a.i("s_waitcnt vmcnt(8)")
        a.i("v_min3_u32 v%d, v%d, v%d, v%d", vT0, vMl, vMl + 1, vMl + 2)
        for k in range(3, 15, 2):
            a.i("v_min3_u32 v%d, v%d, v%d, v%d", vT0, vT0, vMl + k, vMl + k + 1)
        a.i("v_min_u32 v%d, v%d, v%d", vT0, vT0, vMl + 15)
        if p.fastpoll:
            a.i("v_cmp_eq_u32 vcc, 0, v%d", vT0)
            a.i("s_sub_u32 s%d, s%d, 1", sSpin, sSpin)
            a.i("s_cbranch_scc1 L_mlok")
            a.i("s_cbranch_vccnz L_poll")
            a.label("L_mlok")
        for j in range(8):
            a.i("v_max_f32_dpp v%d, v%d, v%d row_ror:4 row_mask:0xf bank_mask:0xf", vS + j, vMl + 2 * j, vMl + 2 * j)
        for j in range(8):
            a.i("v_max_f32_dpp v%d, v%d, v%d row_ror:8 row_mask:0xf bank_mask:0xf", vS + j, vS + j, vS + j)
        for j in range(8):
            a.i("v_sub_f32 v%d, v%d, v%d", vS + j, vMl + 2 * j, vS + j)
        for j in range(8):
            a.i("v_exp_f32 v%d, v%d", vS + j, vS + j)
        for j in range(8):
            a.i("v_mul_f32 v%d, v%d, v%d", vMl + 2 * j + 1, vMl + 2 * j + 1, vS + j)
        for j in range(8):
            a.i("v_add_f32_dpp v%d, v%d, v%d row_ror:4 row_mask:0xf bank_mask:0xf", vMl + 2 * j + 1, vMl + 2 * j + 1, vMl + 2 * j + 1)
        for j in range(8):
            a.i("v_add_f32_dpp v%d, v%d, v%d row_ror:8 row_mask:0xf bank_mask:0xf", vMl + 2 * j + 1, vMl + 2 * j + 1, vMl + 2 * j + 1)
        for j in range(8):
            a.i("v_rcp_f32 v%d, v%d", vMl + 2 * j + 1, vMl + 2 * j + 1)
        for j in range(8):
            a.i("v_mul_f32 v%d, v%d, v%d", vS + j, vS + j, vMl + 2 * j + 1)
        a.i("s_waitcnt vmcnt(0)")
        for k in range(0, 32, 2):
            a.i("v_min3_u32 v%d, v%d, v%d, v%d", vT0, vT0, vY + k, vY + k + 1)
        a.i("v_cmp_eq_u32 vcc, 0, v%d", vT0)
        a.i("s_sub_u32 s%d, s%d, 1", sSpin, sSpin)
        a.i("s_cbranch_scc1 L_pollok")
        a.i("s_cbranch_vccnz L_poll")
        a.label("L_pollok")
        ts(15)
        for e in range(4):
            a.i("v_mul_f32 v%d, v%d, v%d", vAcc + e, vS, vY + e)
        for j in range(1, 8):
            for e in range(4):
                a.i("v_fmac_f32 v%d, v%d, v%d", vAcc + e, vS + j, vY + 4 * j + e)
    for r in (4, 8):
        for e in range(4):
            a.i("v_add_f32_dpp v%d, v%d, v%d row_ror:%d row_mask:0xf bank_mask:0xf", vAcc + e, vAcc + e, vAcc + e, r)
    for e in range(2):
        a.i("v_permlane32_swap_b32 v%d, v%d", vAcc + e, vAcc + 2 + e)
    for e in range(2):
        a.i("v_add_f32 v%d, v%d, v%d", vAcc + e, vAcc + e, vAcc + 2 + e)
    a.i("v_permlane16_swap_b32 v%d, v%d", vAcc, vAcc + 1)
    a.i("v_add_f32 v%d, v%d, v%d", vAcc, vAcc, vAcc + 1)
    a.i("v_lshrrev_b32 v%d, 4, v%d", vT0, vLane)
    a.i("v_and_b32 v%d, 3, v%d", vT0 + 1, vLane)
    a.i("v_lshl_add_u32 v%d, v%d, 2, v%d", vT0, vT0 + 1, vT0)
    a.i("v_lshlrev_b32 v%d, 1, v%d", vT0, vT0)
    a.i("v_cvt_pk_bf16_f32 v%d, v%d, v%d", vAcc, vAcc, vAcc)
    a.i("s_lshl_b32 s%d, s%d, 10", sT0, sBr)
    a.i("s_lshl_b32 s%d, s%d, 5", sT1, sNext)
    a.i("s_add_u32 s%d, s%d, s%d", sT0, sT0, sT1)
    a.i("s_mov_b32 exec_lo, 0x000f000f")
    a.i("s_mov_b32 exec_hi, 0x000f000f")
    a.i("buffer_store_short v%d, v%d, s[%d:%d], s%d offen%s", vAcc, vT0, sOut, sOut + 3, sT0, p.outflags)
    if p.diag == 4:
        a.i("s_waitcnt vmcnt(0)")
    ts(16)
    if p.diag == 7:
        a.i("s_memrealtime s[86:87]")
        a.i("s_waitcnt lgkmcnt(0)")
        a.i("s_sub_u32 s82, s82, s80")
        a.i("s_sub_u32 s84, s84, s80")
        a.i("s_sub_u32 s86, s86, s80")
        a.i("v_mov_b32 v%d, s82", vT0)
        a.i("v_mov_b32 v%d, s84", vT0 + 1)
        a.i("v_mov_b32 v%d, s86", vT0 + 2)
        a.i("v_mov_b32 v%d, s%d", vT0 + 3, sNext)
        a.i("v_mov_b32 v%d, 0", vT0 + 4)
        a.i("s_cmp_lg_u32 s%d, 31", sNext)
        a.i("s_cbranch_scc1 L_done")
        a.i("s_lshl_b32 s%d, s%d, 4", sT0, sBr)
        a.i("s_add_u32 s%d, s%d, 16", sT0, sT0)
        a.i("s_mov_b64 exec, 1")
        a.i("buffer_store_dwordx4 v[%d:%d], v%d, s[%d:%d], s%d offen", vT0, vT0 + 3, vT0 + 4, sDbg, sDbg + 3, sT0)
    a.label("L_done")
    diag_store("h")
    a.i("s_endpgm")

    a.label("L_stream")
    a.i("s_lshl_b32 s%d, s%d, %d", sT0, sW4, lg(T * 1024))
    stride = NS * T * 1024
    a.i("v_lshlrev_b32 v%d, 4, v%d", vOffKV, vLane)
    a.i("v_add_u32 v%d, s%d, v%d", vOffKV, sT0, vOffKV)
    for j in range(1, nOff):
        a.i("v_add_u32 v%d, %d, v%d", vOffKV + j, 4096 * j, vOffKV)
    a.i("s_lshl_b32 s%d, s%d, 22", sT0, sHead)
    a.i("s_lshl_b32 s%d, s%d, 20", sT1, sSplit)
    a.i("s_add_u32 s%d, s%d, s%d", sCur, sT0, sT1)
    a.i("s_waitcnt lgkmcnt(0)")
    a.i("s_cmp_eq_u32 s%d, 0", sBr)
    a.i("s_cselect_b64 s[18:19], s[18:19], s[28:29]")
    a.i("s_cselect_b64 s[20:21], s[20:21], s[30:31]")
    srd(sK, sKp, sCur, 1 << 20)
    srd(sV, sVp, sCur, 1 << 20)
    if p.zearly:
        srd(sWs, sWsP, None, WSREC)
        a.i("s_cmp_lg_u32 s%d, 4", sWave)
        a.i("s_cbranch_scc1 L_nozs")
        for e in range(4):
            a.i("v_mov_b32 v%d, 0", vT0 + 4 + e)
        a.i("v_lshlrev_b32 v%d, 5, v%d", vT0 + 2, vLane)
        a.i("s_lshl_b32 s%d, s%d, 11", sT1, sP)
        a.i("buffer_store_dwordx4 v[%d:%d], v%d, s[%d:%d], s%d offen sc1", vT0 + 4, vT0 + 7, vT0 + 2, sWs, sWs + 3, sT1)
        a.i("buffer_store_dwordx4 v[%d:%d], v%d, s[%d:%d], s%d offen offset:16 sc1", vT0 + 4, vT0 + 7, vT0 + 2, sWs, sWs + 3, sT1)
        a.i("s_lshl_b32 s%d, s%d, 3", sT1, sP)
        a.i("s_add_u32 s%d, s%d, 0x80000", sT1, sT1)
        a.i("v_mov_b32 v%d, 0", vT0 + 2)
        a.i("s_mov_b64 exec, 1")
        a.i("buffer_store_dwordx2 v[%d:%d], v%d, s[%d:%d], s%d offen sc1", vT0 + 4, vT0 + 5, vT0 + 2, sWs, sWs + 3, sT1)
        a.i("s_mov_b64 exec, -1")
        a.label("L_nozs")

    def kvload(j, soff, base=None):
        which, i = ("K", j) if j < T else ("V", j - T)
        srdb = sK if which == "K" else sV
        reg = (vK if base is None else base) + 4 * j
        a.i("buffer_load_dwordx4 v[%d:%d], v%d, s[%d:%d], %s offen offset:%d%s", reg, reg + 3,
            vOffKV + i // 4, srdb, srdb + 3, soff, (i % 4) * 1024, kvf)
    MASK = (1 << 20) - 1
    if p.stagger:
        a.i("s_mul_i32 s%d, s2, %d", sCur, p.stagger * stride)
        a.i("s_and_b32 s%d, s%d, 0x%x", sCur, sCur, MASK)
    else:
        a.i("s_mov_b32 s%d, 0", sCur)
    a.i("s_add_u32 s%d, s%d, %d", sNext, sCur, stride)
    a.i("s_and_b32 s%d, s%d, 0x%x", sNext, sNext, MASK)
    if p.single and p.late:
        for j in range(R):
            kvload(j, "s%d" % sCur, vB)
        a.i("s_barrier")
        for j in range(N):
            kvload(j, "s%d" % sNext)
    elif p.single:
        for j in range(N):
            kvload(j, "s%d" % sCur)
    elif p.pre:
        seq = [(j, sCur, vB) for j in range(R)] + [(j, sNext, None) for j in range(N)]
        for k, (j, so, base) in enumerate(seq):
            if k >= p.pre:
                a.i("s_waitcnt vmcnt(%d)", p.pre - 1)
            kvload(j, "s%d" % so, base)
    else:
        for j in range(R):
            kvload(j, "s%d" % sCur)
        if p.pf:
            assert T == 4
            a.i("s_lshl_b32 s%d, s%d, 12", sT0, sW4)
            a.i("v_lshlrev_b32 v%d, 6, v%d", vTk, vLane)
            a.i("v_add_u32 v%d, s%d, v%d", vTk, sT0, vTk)
            a.i("s_mov_b32 s%d, s%d", sT1, sNext)
            for k in range(p.pf):
                a.i("buffer_load_dword v%d, v%d, s[%d:%d], s%d offen%s", vDum, vTk, sK, sK + 3, sT1, p.pfflags)
                a.i("buffer_load_dword v%d, v%d, s[%d:%d], s%d offen%s", vDum, vTk, sV, sV + 3, sT1, p.pfflags)
                if k + 1 < p.pf:
                    a.i("s_add_u32 s%d, s%d, %d", sT1, sT1, stride)
                    a.i("s_and_b32 s%d, s%d, 0x%x", sT1, sT1, MASK)
    if p.diag:
        srd(sWs, sWsP, None, WSREC)
    a.i("s_mov_b32 s%d, %s", sC, f32hex(CLOG))
    a.i("s_lshl_b32 s%d, s%d, 9", sT0, sW4)
    a.i("s_add_u32 s%d, s%d, %d", sT0, sT0, L_OP)
    a.i("v_lshlrev_b32 v%d, 3, v%d", vOpA, vLane)
    a.i("v_add_u32 v%d, s%d, v%d", vOpA, sT0, vOpA)
    a.i("s_lshl_b32 s%d, s%d, 3", sT0, sW4)
    a.i("s_add_u32 s%d, s%d, %d", sT0, sT0, L_ML)
    a.i("v_mov_b32 v%d, s%d", vMlA, sT0)
    a.i("v_lshlrev_b32 v%d, 5, v%d", vT0 + 1, vT0 + 1)
    a.i("v_add_u32 v%d, %d, v%d", vQP, L_QP, vT0 + 1)
    if p.single:
        a.i("s_mov_b32 s79, s%d", sNext)
    if p.single and p.dry:
        a.i("s_mov_b32 s10, 1")
        a.i("s_mov_b64 exec, 0")
        a.i("s_branch L_loop")
        a.label("L_dryret")
        a.i("s_mov_b64 exec, -1")
        a.i("s_mov_b32 s10, 0")
    a.i("s_barrier")
    a.i("v_mov_b32 v%d, v%d", vT0 + 1, vQP)
    for w in range(4):
        a.i("ds_read_b128 v[%d:%d], v%d offset:%d", vQP + 8 * w, vQP + 8 * w + 3, vT0 + 1, w * 512)
        a.i("ds_read_b128 v[%d:%d], v%d offset:%d", vQP + 8 * w + 4, vQP + 8 * w + 7, vT0 + 1, w * 512 + 16)
    for e in range(8):
        a.i("v_mov_b32 v%d, 0", vAcc + e)
    a.i("v_mov_b32 v%d, 0xff800000", vMc)
    a.i("v_mov_b32 v%d, 0xff800000", vM)
    a.i("v_mov_b32 v%d, 0", vL)
    a.i("s_mov_b32 s%d, %d", sCnt, (NIT - 1 if p.late else NIT) if p.single else NIT - 2)
    a.i("s_waitcnt lgkmcnt(0)")
    for d in range(4):
        a.i("v_pk_add_f32 v[%d:%d], v[%d:%d], v[%d:%d]", vQP + 2 * d, vQP + 2 * d + 1, vQP + 2 * d, vQP + 2 * d + 1, vQP + 8 + 2 * d, vQP + 9 + 2 * d)
        a.i("v_pk_add_f32 v[%d:%d], v[%d:%d], v[%d:%d]", vQP + 16 + 2 * d, vQP + 17 + 2 * d, vQP + 16 + 2 * d, vQP + 17 + 2 * d, vQP + 24 + 2 * d, vQP + 25 + 2 * d)
    for d in range(4):
        a.i("v_pk_add_f32 v[%d:%d], v[%d:%d], v[%d:%d]", vQP + 2 * d, vQP + 2 * d + 1, vQP + 2 * d, vQP + 2 * d + 1, vQP + 16 + 2 * d, vQP + 17 + 2 * d)
    for d in range(4):
        a.i("v_cvt_pk_bf16_f32 v%d, v%d, v%d", vQ + d, vQP + 2 * d, vQP + 2 * d + 1)
    ts(1)

    def body(kind):
        bK, bV = (vB, vB + 4 * T) if kind == "pre" else (vK, vV)

        def wait(j):
            if kind == "pre":
                if j >= R - N + (N - min(N, p.pre)) or True:
                    n = None
                a.i("s_waitcnt vmcnt(%d)", (R - 1 - j) + N)
                return
            if kind == "first":
                n = (R - 1 - j) + max(0, j - (R - N)) + 2 * p.pf
            elif kind == "mid":
                n = N - 1
            else:
                n = min(R - 1, j + N - 1) - j
            a.i("s_waitcnt vmcnt(%d)", n)

        def issue(j):
            if kind == "pre":
                return
            k = j + N
            if k < R:
                if kind != "first":
                    kvload(k, "s%d" % sCur)
            elif kind != "last":
                kvload(k - R, "s%d" % sNext)
        for i in range(T):
            wait(i)
            k = bK + 4 * i
            a.i("v_dot2_f32_bf16 v%d, v%d, v%d, 0", vS + i, k, vQ)
            for d in range(1, 4):
                a.i("v_dot2_f32_bf16 v%d, v%d, v%d, v%d", vS + i, k + d, vQ + d, vS + i)
            issue(i)
        for r in (8, 4, 2, 1):
            for i in range(T):
                a.i("v_add_f32_dpp v%d, v%d, v%d row_ror:%d row_mask:0xf bank_mask:0xf", vS + i, vS + i, vS + i, r)
        a.i("v_max3_f32 v%d, v%d, v%d, v%d", vM, vM, vS, vS + 1)
        for i in range(2, T, 2):
            a.i("v_max3_f32 v%d, v%d, v%d, v%d", vM, vM, vS + i, vS + i + 1)
        a.i("v_mul_f32 v%d, s%d, v%d", vT0, sC, vM)
        a.i("v_sub_f32 v%d, v%d, v%d", vAl, vMc, vT0)
        a.i("v_mov_b32 v%d, v%d", vMc, vT0)
        a.i("v_exp_f32 v%d, v%d", vAl, vAl)
        for i in range(T):
            a.i("v_fma_f32 v%d, v%d, s%d, -v%d", vS + i, vS + i, sC, vMc)
        for i in range(T):
            a.i("v_exp_f32 v%d, v%d", vS + i, vS + i)
        a.i("v_mul_f32 v%d, v%d, v%d", vL, vL, vAl)
        for d in range(4):
            a.i("v_pk_mul_f32 v[%d:%d], v[%d:%d], v[%d:%d] op_sel:[0,%d] op_sel_hi:[1,%d]", vAcc + 2 * d, vAcc + 2 * d + 1,
                vAcc + 2 * d, vAcc + 2 * d + 1, vAl & ~1, (vAl & ~1) + 1, vAl & 1, vAl & 1)
        for i in range(T):
            a.i("v_add_f32 v%d, v%d, v%d", vL, vL, vS + i)
        for i in range(T):
            wait(T + i)
            vv = bV + 4 * i
            sp = (vS + i) & ~1
            hi = (vS + i) & 1
            for d in range(4):
                t = vT0 + 2 * d
                a.i("v_lshlrev_b32 v%d, 16, v%d", t, vv + d)
                a.i("v_and_b32 v%d, 0xffff0000, v%d", t + 1, vv + d)
            for d in range(4):
                t = vT0 + 2 * d
                a.i("v_pk_fma_f32 v[%d:%d], v[%d:%d], v[%d:%d], v[%d:%d] op_sel:[0,%d,0] op_sel_hi:[1,%d,1]", vAcc + 2 * d, vAcc + 2 * d + 1,
                    t, t + 1, sp, sp + 1, vAcc + 2 * d, vAcc + 2 * d + 1, hi, hi)
            issue(T + i)

    if p.single:
        sNr, sDry = 79, 10
        if p.late:
            a("; ---- tile 0 from the start-up buffer")
            body("pre")
            a.i("s_mov_b32 s%d, s%d", sCur, sNext)
            a.i("s_add_u32 s%d, s%d, %d", sNr, sNext, stride)
            a.i("s_and_b32 s%d, s%d, 0x%x", sNr, sNr, MASK)
            a.i("s_mov_b32 s%d, s%d", sNext, sNr)
        a("; ---- main loop: QK (v_dot2 + row reduction), online softmax, PV; %d loads stay in flight per wave" % N)
        a(".p2align 6")
        a.label("L_loop")
        body("mid")
        if p.dry:
            a.i("s_cmp_lg_u32 s%d, 0", sDry)
            a.i("s_cbranch_scc1 L_dryret")
        a.i("s_mov_b32 s%d, s%d", sCur, sNr)
        a.i("s_add_u32 s%d, s%d, %d", sNr, sNr, stride)
        a.i("s_and_b32 s%d, s%d, 0x%x", sNr, sNr, MASK)
        a.i("s_sub_u32 s%d, s%d, 1", sCnt, sCnt)
        a.i("s_cmp_eq_u32 s%d, 1", sCnt)
        a.i("s_cselect_b32 s%d, 0x100000, s%d", sNext, sNr)
        a.i("s_cmp_lg_u32 s%d, 0", sCnt)
        a.i("s_cbranch_scc1 L_loop")
    else:
        body("pre" if p.pre else "first")
        if p.zearly:
            a.i("s_cmp_lg_u32 s%d, 4", sWave)
            a.i("s_cbranch_scc1 L_nozf")
            a.i("v_mov_b32 v%d, %d", vT0, L_ZF)
            a.i("v_mov_b32 v%d, 1", vT0 + 1)
            a.i("ds_write_b32 v%d, v%d", vT0, vT0 + 1)
            a.label("L_nozf")
        a.i("s_mov_b32 s%d, s%d", sCur, sNext)
        a.i("s_add_u32 s%d, s%d, %d", sNext, sNext, stride)
        a.i("s_and_b32 s%d, s%d, 0x%x", sNext, sNext, MASK)
        a(".p2align 6")
        a.label("L_loop")
        body("mid")
        if p.diag == 6:
            for k, it in enumerate((1, 3, 7, 15, 31, 47)):
                a.i("s_cmp_lg_u32 s%d, %d", sCnt, NIT - 1 - it)
                a.i("s_cbranch_scc1 L_ps%d", k)
                a.i("s_memrealtime s[%d:%d]", sTS + 2 + 2 * k, sTS + 3 + 2 * k)
                a.label("L_ps%d" % k)
        a.i("s_mov_b32 s%d, s%d", sCur, sNext)
        a.i("s_add_u32 s%d, s%d, %d", sNext, sNext, stride)
        a.i("s_and_b32 s%d, s%d, 0x%x", sNext, sNext, MASK)
        a.i("s_sub_u32 s%d, s%d, 1", sCnt, sCnt)
        a.i("s_cmp_lg_u32 s%d, 0", sCnt)
        a.i("s_cbranch_scc1 L_loop")
        body("last")
    ts(2)
    ts(10)
    a.i("v_mov_b32 v%d, v%d", vT0, vMc)
    a.i("v_mov_b32 v%d, v%d", vT0 + 1, vMc)
    a.i("v_permlane32_swap_b32 v%d, v%d", vT0, vT0 + 1)
    a.i("v_max_f32 v%d, v%d, v%d", vT0, vT0, vT0 + 1)
    a.i("v_mov_b32 v%d, v%d", vT0 + 1, vT0)
    a.i("v_permlane16_swap_b32 v%d, v%d", vT0, vT0 + 1)
    a.i("v_max_f32 v%d, v%d, v%d", vT0 + 2, vT0, vT0 + 1)
    a.i("v_sub_f32 v%d, v%d, v%d", vAl, vMc, vT0 + 2)
    a.i("v_exp_f32 v%d, v%d", vAl, vAl)
    a.i("v_mul_f32 v%d, v%d, v%d", vL, vL, vAl)
    for d in range(4):
        a.i("v_pk_mul_f32 v[%d:%d], v[%d:%d], v[%d:%d] op_sel:[0,%d] op_sel_hi:[1,%d]", vAcc + 2 * d, vAcc + 2 * d + 1,
            vAcc + 2 * d, vAcc + 2 * d + 1, vAl & ~1, (vAl & ~1) + 1, vAl & 1, vAl & 1)
    a.i("v_mov_b32 v%d, v%d", vT0 + 1, vL)
    a.i("v_permlane32_swap_b32 v%d, v%d", vL, vT0 + 1)
    a.i("v_add_f32 v%d, v%d, v%d", vL, vL, vT0 + 1)
    a.i("v_mov_b32 v%d, v%d", vT0 + 1, vL)
    reduce_scatter(vAcc)
    a.i("v_permlane16_swap_b32 v%d, v%d", vL, vT0 + 1)
    a.i("v_add_f32 v%d, v%d, v%d", vT0 + 3, vL, vT0 + 1)
    a.i("ds_write_b64 v%d, v[%d:%d]", vOpA, vAcc, vAcc + 1)
    a.i("s_mov_b64 exec, 1")
    a.i("ds_write_b64 v%d, v[%d:%d]", vMlA, vT0 + 2, vT0 + 3)
    a.i("s_waitcnt lgkmcnt(0)")
    ts(11)
    a.i("s_barrier")
    diag_store("s")
    a.label("L_end")
    a.i("s_endpgm")
    a.label("L_code_end")

    descr(a, NAME + "_kernel", NV, 96)
    return a.text()


def parse(argv):
    ap = argparse.ArgumentParser()
    ap.add_argument("-T", type=int, default=4)
    ap.add_argument("-N", type=int, default=6)
    ap.add_argument("--QD", type=int, default=12)
    ap.add_argument("--stagger", type=int, default=0)
    ap.add_argument("--PW", type=int, default=1)
    ap.add_argument("--pre", type=int, default=0)
    ap.add_argument("--nowq", type=int, default=0)
    ap.add_argument("--nowo", type=int, default=0)
    ap.add_argument("--touch", type=int, default=0)
    ap.add_argument("--pf", type=int, default=0)
    ap.add_argument("--pfflags", default="nt")
    ap.add_argument("--rot", type=int, default=0)
    ap.add_argument("--noz", type=int, default=0)
    ap.add_argument("--fixfin", type=int, default=0)
    ap.add_argument("--mlpoll", type=int, default=0)
    ap.add_argument("--nozs", type=int, default=0)
    ap.add_argument("--zearly", type=int, default=0)
    ap.add_argument("--single", type=int, default=0)
    ap.add_argument("--dry", type=int, default=0)
    ap.add_argument("--tags", type=int, default=0)
    ap.add_argument("--fastpoll", type=int, default=0)
    ap.add_argument("--touchout", type=int, default=0)
    ap.add_argument("--outflags", default="")
    ap.add_argument("--xdw", type=int, default=0)
    ap.add_argument("--late", type=int, default=0)
    ap.add_argument("--minlds", type=int, default=0)
    ap.add_argument("--kvflags", default="nt")
    ap.add_argument("--wqflags", default="")
    ap.add_argument("--woflags", default="")
    ap.add_argument("--diag", type=int, default=0)
    ap.add_argument("-o", default="/dev/stdout")
    p = ap.parse_args(argv)
    for k in ("kvflags", "wqflags", "woflags", "pfflags", "outflags"):
        s = getattr(p, k).strip().replace("+", " ")
        if s == "none":
            s = ""
        setattr(p, k, " " + s if s else "")
    return p


if __name__ == "__main__":
    p = parse(sys.argv[1:])
    open(p.o, "w").write(gen(p))
```

```python
import sys, argparse, math, struct
from asmlib import Asm
from gen2 import VM, lg, f32hex, descr, CLOG, NAME

HEADER = """; Decode attention of two independent branches (A, B) with fused q / output projections; out = concat(A, B).
; Workgroup (branch, head, split) streams 4096 keys.  Waves 0-3 (helpers): q projection, wo prefetch, output
; workgroup first zeroes its own slots and counts that in d_debug; published words are never zero, so a non-zero word is
; zeroed, high half = arrival tickets; the last 32 arrivals of a branch each reduce 16 output columns.
"""


def gen(p):
    T, N = p.T, p.N
    R = 2 * T
    assert N <= R
    NS = 4
    NIT = 1024 // (NS * T)
    NWQ = 32
    RPG = 32
    NX = 4
    QD = p.QD
    assert QD % 2 == 0
    NWO = 32
    F = 32
    kvf = p.kvflags
    L_QP = 0
    L_OP = 2048
    L_ML = 4096
    L_ZF = 4160
    LDS = max(4352, p.minlds)

    a = Asm()
    a(HEADER.rstrip())
    a("; @launch grid=(256,1,1) block=(512,1,1) lds=%d" % LDS)
    a('.amdgcn_target "amdgcn-amd-amdhsa--gfx950"')
    a(".text")
    a(".globl %s_kernel" % NAME)
    a(".p2align 8")
    a(".type %s_kernel,@function" % NAME)
    a("%s_kernel:" % NAME)

    sXp, sKp, sVp, sWqp, sWop = 16, 18, 20, 22, 24
    sOutP, sDbgP, sWsP = 36, 38, 40
    sK, sV, sWq, sWo, sX, sWs = 44, 48, 52, 56, 60, 64
    sDbg, sOut = 44, 48
    sHead, sSplit, sBr, sWave = 68, 69, 70, 71
    sCur, sCnt, sT0, sT1, sC, sNext = 72, 73, 74, 75, 76, 77
    sP, sQoff = 78, 79
    sTS = 80
    sW4 = 15
    sPlo, sPhi = 12, 13
    sTk = 14
    sTag = 9
    sSpin = 11
    vLane, vOffKV = 1, 2
    nOff = max(1, T // 4)
    v = 2 + nOff
    vQ = (v + 1) // 2 * 2; v = vQ + 4
    vM, vL, vMc, vAl = v, v + 1, v + 2, v + 3; v += 4
    vT0 = v; v += 8
    vAcc = v; v += 8
    vS = v; v += max(T, 8)
    vOpA, vMlA, vYoff, vWoOff, vWqOff, vTk, vDum = range(v, v + 7); v += 7
    vK = (v + 3) // 4 * 4
    vV = vK + 4 * T
    vW = vK
    vWq = vK
    vXr = vK + (64 if p.QD <= 16 else 128)
    vQP = vK + 8 * T
    vB = vQP + 32
    NV = max(vW + 128, vQP + 32, vB + 8 * T if (p.pre or p.late) else 0, vXr + 16 if not p.xdw else vXr + 3)
    assert QD * 4 <= 128 and NV <= 256, NV

    def ts(k):
        if p.diag == 7 and k in (0, 1, 10):
            r = {0: 80, 1: 82, 10: 84}[k]
            a.i("s_memrealtime s[%d:%d]", r, r + 1)
        if p.diag == 6 and k == 0:
            a.i("s_memrealtime s[%d:%d]", sTS, sTS + 1)
        if p.diag == 6 and k == 2:
            a.i("s_memrealtime s[%d:%d]", sTS + 14, sTS + 15)
        if p.diag == 1 and k < 4:
            a.i("s_memrealtime s[%d:%d]", sTS + 2 * k, sTS + 2 * k + 1)
        if p.diag == 5 and k >= 20:
            a.i("s_memtime s[%d:%d]", sTS + 2 * (k - 20), sTS + 2 * (k - 20) + 1)
        if p.diag == 4 and 10 <= k < 20:
            a.i("s_memtime s[%d:%d]", sTS + 2 * (k - 10), sTS + 2 * (k - 10) + 1)

    def srd(base, ptr, offreg, nrec):
        if offreg is None:
            a.i("s_mov_b32 s%d, s%d", base, ptr)
            a.i("s_mov_b32 s%d, s%d", base + 1, ptr + 1)
        else:
            a.i("s_add_u32 s%d, s%d, s%d", base, ptr, offreg)
            a.i("s_addc_u32 s%d, s%d, 0", base + 1, ptr + 1)
        a.i("s_mov_b32 s%d, 0x%x", base + 2, nrec)
        a.i("s_mov_b32 s%d, 0x20000", base + 3)

    def reduce_scatter(base):
        for e in range(4):
            a.i("v_permlane32_swap_b32 v%d, v%d", base + e, base + e + 4)
        for e in range(4):
            a.i("v_add_f32 v%d, v%d, v%d", base + e, base + e, base + e + 4)
        for e in range(2):
            a.i("v_permlane16_swap_b32 v%d, v%d", base + e, base + e + 2)
        for e in range(2):
            a.i("v_add_f32 v%d, v%d, v%d", base + e, base + e, base + e + 2)

    def diag_store(lab):
        if not p.diag or p.diag == 7:
            return
        ts(3)
        ts(17)
        ts(27)
        a.i("s_mov_b64 exec, 1")
        a.i("s_waitcnt vmcnt(0) lgkmcnt(0)")
        a.i("v_mov_b32 v%d, 0", vT0)
        for k in range(8):
            a.i("v_mov_b32 v%d, s%d", vK + k, sTS + (2 * k if p.diag >= 4 else k))
        a.i("s_mul_i32 s%d, s2, 8", sT1)
        a.i("s_add_u32 s%d, s%d, s%d", sT1, sT1, sWave)
        a.i("s_lshl_b32 s%d, s%d, 5", sT1, sT1)
        a.i("s_add_u32 s%d, s%d, 0x100000", sT1, sT1)
        a.i("buffer_store_dwordx4 v[%d:%d], v%d, s[%d:%d], s%d offen", vK, vK + 3, vT0, sWs, sWs + 3, sT1)
        a.i("buffer_store_dwordx4 v[%d:%d], v%d, s[%d:%d], s%d offen offset:16", vK + 4, vK + 7, vT0, sWs, sWs + 3, sT1)

    WSREC = 0x100000 if p.diag in (0, 7) else 0x200000
    a.i("s_cmp_ge_u32 s2, 256")
    a.i("s_cbranch_scc1 L_end")
    a.i("s_load_dwordx16 s[16:31], s[0:1], 0")
    a.i("s_load_dwordx8 s[32:39], s[0:1], 64")
    a.i("s_load_dwordx2 s[40:41], s[0:1], 96")
    if p.touch:
        a.i("s_getpc_b64 s[8:9]")
        a.label("L_pc")
        a.i("v_and_b32 v%d, 63, v0", vTk)
        a.i("v_lshlrev_b32 v%d, 7, v%d", vTk, vTk)
        a.i("v_lshrrev_b32 v%d, 6, v0", vDum)
        a.i("v_lshl_add_u32 v%d, v%d, 13, v%d", vTk, vDum, vTk)
        a.i("v_cmp_gt_u32 vcc, L_code_end-L_pc, v%d", vTk)
        a.i("s_and_saveexec_b64 s[6:7], vcc")
        a.i("s_cbranch_execz L_notouch")
        a.i("global_load_dword v%d, v%d, s[8:9]", vDum, vTk)
        a.label("L_notouch")
        a.i("s_mov_b64 exec, s[6:7]")
    ts(0)
    ts(20)
    if p.diag == 4:
        for k in range(16):
            a.i("s_mov_b32 s%d, 0", sTS + k)
    a.i("v_and_b32 v%d, 63, v0", vLane)
    a.i("v_lshrrev_b32 v%d, 6, v0", vT0)
    a.i("s_and_b32 s%d, s2, 31", sHead)
    a.i("s_lshr_b32 s%d, s2, 6", sSplit)
    a.i("s_bfe_u32 s%d, s2, 0x10005", sBr)
    a.i("v_readfirstlane_b32 s%d, v%d", sWave, vT0)
    a.i("s_and_b32 s%d, s2, 63", sP)
    a.i("s_lshl_b32 s%d, s%d, 2", sP, sP)
    a.i("s_add_u32 s%d, s%d, s%d", sP, sP, sSplit)
    a.i("s_and_b32 s%d, s%d, 3", sW4, sWave)
    a.i("v_lshrrev_b32 v%d, 4, v%d", vT0, vLane)
    a.i("v_and_b32 v%d, 15, v%d", vT0 + 1, vLane)
    a.i("s_cmp_ge_u32 s%d, 4", sWave)
    a.i("s_cbranch_scc1 L_stream")

    vm = VM(a)
    a.i("s_lshl_b32 s%d, s%d, %d", sT0, sW4, lg(RPG * 4 * 2))
    a.i("v_lshlrev_b32 v%d, %d, v%d", vT0 + 2, lg(RPG * 2), vT0)
    a.i("v_add_u32 v%d, s%d, v%d", vT0 + 2, sT0, vT0 + 2)
    a.i("v_lshlrev_b32 v%d, %d, v%d", vWqOff, lg(RPG * 8192), vT0)
    a.i("v_lshl_add_u32 v%d, v%d, 4, v%d", vWqOff, vT0 + 1, vWqOff)
    a.i("s_lshl_b32 s%d, s%d, %d", sT0, sW4, lg(RPG * 4 * 8192))
    a.i("s_lshl_b32 s%d, s%d, 8", sT1, sHead)
    a.i("s_add_u32 s%d, s%d, s%d", sQoff, sT0, sT1)
    a.i("v_lshlrev_b32 v%d, 3, v%d", vT0 + 3, vT0)
    a.i("v_lshl_add_u32 v%d, v%d, 5, v%d", vYoff, vT0 + 1, vT0 + 3)
    a.i("s_lshl_b32 s%d, s%d, 9", sT0, sW4)
    a.i("s_lshl_b32 s%d, s%d, 11", sT1, sP)
    a.i("s_add_u32 s%d, s%d, s%d", sT0, sT0, sT1)
    a.i("v_add_u32 v%d, s%d, v%d", vYoff, sT0, vYoff)
    a.i("s_waitcnt lgkmcnt(0)")
    ts(21)
    a.i("s_cmp_eq_u32 s%d, 0", sBr)
    a.i("s_cselect_b64 s[16:17], s[16:17], s[26:27]")
    a.i("s_cselect_b64 s[22:23], s[22:23], s[32:33]")
    a.i("s_cselect_b64 s[24:25], s[24:25], s[34:35]")
    if p.tags:
        a.i("s_lshl_b32 s%d, s%d, 7", sT0, sBr)
        a.i("s_load_dword s%d, s[%d:%d], s%d offset:0x90000", sTag, sWsP, sWsP + 1, sT0)
    srd(sX, sXp, None, 1024)
    srd(sWq, sWqp, None, 512 * 8192)

    sQrel = 10
    if p.rot:
        a.i("s_lshl_b32 s%d, s%d, 16", sQrel, sSplit)
        a.i("s_mov_b32 s%d, s%d", sCnt, sQoff)
        a.i("s_add_u32 s%d, s%d, s%d", sQoff, sCnt, sQrel)

    def wqload(j):
        if p.rot:
            s = j % QD
            a.i("buffer_load_dwordx4 v[%d:%d], v%d, s[%d:%d], s%d offen%s", vWq + 4 * s, vWq + 4 * s + 3, vWqOff, sWq, sWq + 3, sQoff, p.wqflags)
            vm.issue("wq%d" % j)
            if j != NWQ - 1:
                a.i("s_add_u32 s%d, s%d, 8192", sQrel, sQrel)
                a.i("s_and_b32 s%d, s%d, 0x3ffff", sQrel, sQrel)
                a.i("s_add_u32 s%d, s%d, s%d", sQoff, sCnt, sQrel)
            return
        if p.nowq:
            vm.issue("wq%d" % j)
            a.i("buffer_load_dwordx4 v[%d:%d], v%d, s[%d:%d], 0 offen", vWq + 4 * (j % QD), vWq + 4 * (j % QD) + 3, vT0 + 2, sX, sX + 3)
            return
        s = j % QD
        a.i("buffer_load_dwordx4 v[%d:%d], v%d, s[%d:%d], s%d offen%s", vWq + 4 * s, vWq + 4 * s + 3, vWqOff, sWq, sWq + 3, sQoff, p.wqflags)
        vm.issue("wq%d" % j)
        if j != NWQ - 1:
            a.i("s_add_u32 s%d, s%d, 8192", sQoff, sQoff)
    if p.xdw:
        a.i("v_lshl_add_u32 v%d, v%d, 2, v%d", vT0 + 2, vT0 + 1, vT0 + 2)
        a.i("buffer_load_dword v%d, v%d, s[%d:%d], 0 offen", vXr, vT0 + 2, sX, sX + 3)
        vm.issue("x%d" % (NX - 1))
    else:
        for j in range(NX):
            if p.rot:
                a.i("s_add_u32 s%d, s%d, %d", sT0, sSplit, j)
                a.i("s_and_b32 s%d, s%d, 3", sT0, sT0)
                a.i("s_lshl_b32 s%d, s%d, 4", sT0, sT0)
                a.i("buffer_load_dwordx4 v[%d:%d], v%d, s[%d:%d], s%d offen", vXr + 4 * j, vXr + 4 * j + 3, vT0 + 2, sX, sX + 3, sT0)
            else:
                a.i("buffer_load_dwordx4 v[%d:%d], v%d, s[%d:%d], 0 offen offset:%d", vXr + 4 * j, vXr + 4 * j + 3, vT0 + 2, sX, sX + 3, 16 * j)
            vm.issue("x%d" % j)
    for j in range(QD):
        wqload(j)
    nq = QD
    if p.late and QD == NWQ:
        a.i("s_barrier")
    srd(sWs, sWsP, None, WSREC)
    a.i("s_lshl_b32 s%d, s%d, %d", sT1, sP, 4 if p.tags else 3)
    a.i("s_add_u32 s%d, s%d, 0x80000", sT1, sT1)
    a.i("v_mov_b32 v%d, s%d", vMlA, sT1)
    a.i("s_lshl_b32 s%d, s%d, 17", sT0, sHead)
    srd(sWo, sWop, sT0, 131072)
    srd(sDbg, sDbgP, None, 256)
    srd(sOut, sOutP, None, 2048)
    a.i("s_mov_b32 s%d, 0x05040100", sPlo)
    a.i("s_mov_b32 s%d, 0x07060302", sPhi)
    a.i("v_lshlrev_b32 v%d, 11, v%d", vWoOff, vT0)
    a.i("v_lshl_add_u32 v%d, v%d, 4, v%d", vWoOff, vT0 + 1, vWoOff)
    a.i("s_lshl_b32 s%d, s%d, 8", sT0, sW4)
    a.i("v_add_u32 v%d, s%d, v%d", vWoOff, sT0, vWoOff)
    vA = vAcc
    for e in range(8):
        a.i("v_mov_b32 v%d, 0", vA + e)
    vm.maybe_wait("x%d" % (NX - 1))
    for m in range(NWQ // 2):
        vm.wait("wq%d" % (2 * m + 1))
        if m == 0:
            ts(22)
        if m == 8:
            ts(23)
        s0 = vWq + 4 * ((2 * m) % QD)
        s1 = vWq + 4 * ((2 * m + 1) % QD)
        xr = vXr + m
        if p.xdw:
            xr = vXr + 1 + (m % 2)
            a.i("v_mov_b32_dpp v%d, v%d row_newbcast:%d row_mask:0xf bank_mask:0xf", xr, vXr, m)
        for d in range(4):
            a.i("v_perm_b32 v%d, v%d, v%d, s%d", vT0 + 2 * (d % 2), s1 + d, s0 + d, sPlo)
            a.i("v_perm_b32 v%d, v%d, v%d, s%d", vT0 + 2 * (d % 2) + 1, s1 + d, s0 + d, sPhi)
            a.i("v_dot2_f32_bf16 v%d, v%d, v%d, v%d", vA + 2 * d, vT0 + 2 * (d % 2), xr, vA + 2 * d)
            a.i("v_dot2_f32_bf16 v%d, v%d, v%d, v%d", vA + 2 * d + 1, vT0 + 2 * (d % 2) + 1, xr, vA + 2 * d + 1)
        for _ in range(2):
            if nq < NWQ:
                wqload(nq); nq += 1
                if nq == NWQ and p.late:
                    a.i("s_barrier")
    ts(24)
    reduce_scatter(vA)
    a.i("v_lshrrev_b32 v%d, 4, v%d", vT0, vLane)
    a.i("v_and_b32 v%d, 15, v%d", vT0 + 1, vLane)
    a.i("v_lshlrev_b32 v%d, 3, v%d", vT0, vT0)
    a.i("v_lshl_add_u32 v%d, v%d, 5, v%d", vT0, vT0 + 1, vT0)
    a.i("s_lshl_b32 s%d, s%d, 9", sT0, sW4)
    a.i("s_add_u32 s%d, s%d, %d", sT0, sT0, L_QP)
    a.i("v_add_u32 v%d, s%d, v%d", vT0, sT0, vT0)
    a.i("ds_write_b64 v%d, v[%d:%d]", vT0, vA, vA + 1)
    if p.zearly:
        a.i("v_mov_b32 v%d, %d", vT0 + 2, L_ZF)
        a.i("v_mov_b32 v%d, 0", vT0 + 3)
        a.i("ds_write_b32 v%d, v%d", vT0 + 2, vT0 + 3)
    a.i("s_waitcnt lgkmcnt(0)")
    ts(25)
    a.i("s_barrier")
    ts(1)
    ts(26)
    a.i("s_lshl_b32 s%d, s%d, 7", sC, sBr)
    if p.tags:
        a.i("s_mul_i32 s%d, s%d, 0x9E3779B1", sTag, sTag)
        a.i("s_add_u32 s%d, s%d, 0x7F4A7C15", sTag, sTag)
    if not p.zearly and not p.tags:
        a.i("s_cmp_lg_u32 s%d, 0", sWave)
        a.i("s_cbranch_scc1 L_noz")
        for e in range(4):
            a.i("v_mov_b32 v%d, 0", vT0 + e)
        a.i("v_lshlrev_b32 v%d, 5, v%d", vT0 + 4, vLane)
        a.i("s_lshl_b32 s%d, s%d, 11", sT1, sP)
        if not p.nozs:
            a.i("buffer_store_dwordx4 v[%d:%d], v%d, s[%d:%d], s%d offen sc1", vT0, vT0 + 3, vT0 + 4, sWs, sWs + 3, sT1)
            a.i("buffer_store_dwordx4 v[%d:%d], v%d, s[%d:%d], s%d offen offset:16 sc1", vT0, vT0 + 3, vT0 + 4, sWs, sWs + 3, sT1)
        a.i("v_mov_b32 v%d, 0", vT0 + 6)
        a.i("v_mov_b32 v%d, 1", vT0 + 7)
        a.i("s_mov_b64 exec, 1")
        if not p.nozs:
            a.i("buffer_store_dwordx2 v[%d:%d], v%d, s[%d:%d], 0 offen sc1", vT0, vT0 + 1, vMlA, sWs, sWs + 3)
        a.i("s_waitcnt vmcnt(0)")
        if not p.noz:
            a.i("buffer_atomic_add v%d, v%d, s[%d:%d], s%d offen sc1", vT0 + 7, vT0 + 6, sDbg, sDbg + 3, sC)
        a.i("s_mov_b64 exec, -1")
        a.label("L_noz")
    a("; ---- wo prefetch: 128 rows x 128 columns per helper, rows interleaved in pairs for v_dot2")
    a.i("s_mov_b32 s%d, 0", sCur)
    NP = NWO // 2

    def wo_issue(m):
        b = vW + 8 * m
        if p.nowo:
            return
        a.i("buffer_load_dwordx4 v[%d:%d], v%d, s[%d:%d], s%d offen%s", b, b + 3, vWoOff, sWo, sWo + 3, sCur, p.woflags)
        a.i("buffer_load_dwordx4 v[%d:%d], v%d, s[%d:%d], s%d offen offset:1024%s", b + 4, b + 7, vWoOff, sWo, sWo + 3, sCur, p.woflags)
        a.i("s_add_u32 s%d, s%d, 8192", sCur, sCur)
    for m in range(min(p.PW, NP)):
        wo_issue(m)
    for m in range(NP):
        b = vW + 8 * m
        inflight = min(NP, m + p.PW) - (m + 1)
        a.i("s_waitcnt vmcnt(%d)", 2 * inflight)
        for d in range(4):
            a.i("v_perm_b32 v%d, v%d, v%d, s%d", vT0, b + 4 + d, b + d, sPlo)
            a.i("v_perm_b32 v%d, v%d, v%d, s%d", b + 4 + d, b + 4 + d, b + d, sPhi)
            a.i("v_mov_b32 v%d, v%d", b + d, vT0)
        if m + p.PW < NP:
            wo_issue(m + p.PW)
    if p.zearly and not p.noz:
        a.i("s_cmp_lg_u32 s%d, 0", sWave)
        a.i("s_cbranch_scc1 L_noz")
        a.i("v_mov_b32 v%d, %d", vT0 + 2, L_ZF)
        a.label("L_zfw")
        a.i("ds_read_b32 v%d, v%d", vT0 + 3, vT0 + 2)
        a.i("s_waitcnt lgkmcnt(0)")
        a.i("v_readfirstlane_b32 s%d, v%d", sT0, vT0 + 3)
        a.i("s_cmp_eq_u32 s%d, 0", sT0)
        a.i("s_cbranch_scc1 L_zfw")
        a.i("v_mov_b32 v%d, 0", vT0 + 6)
        a.i("v_mov_b32 v%d, 1", vT0 + 7)
        a.i("s_mov_b64 exec, 1")
        a.i("buffer_atomic_add v%d, v%d, s[%d:%d], s%d offen sc1", vT0 + 7, vT0 + 6, sDbg, sDbg + 3, sC)
        a.i("s_mov_b64 exec, -1")
        a.label("L_noz")
    if p.touchout:
        a.i("v_mov_b32 v%d, 0", vT0 + 2)
        a.i("s_lshl_b32 s%d, s%d, 10", sT0, sBr)
        a.i("s_mov_b64 exec, 1")
        a.i("buffer_load_dword v%d, v%d, s[%d:%d], s%d offen", vDum, vT0 + 2, sOut, sOut + 3, sT0)
        a.i("s_mov_b64 exec, -1")
        a.i("s_waitcnt vmcnt(0)")
    a.i("v_lshlrev_b32 v%d, 3, v%d", vOpA, vLane)
    a.i("v_add_u32 v%d, %d, v%d", vOpA, L_OP, vOpA)
    a.i("v_mov_b32 v%d, %d", vT0 + 7, L_ML)
    a.i("v_mov_b32 v%d, 0", vT0 + 6)
    a.i("v_mov_b32 v%d, 0x10000", vTk)
    for e in range(8):
        a.i("v_mov_b32 v%d, 0", vAcc + e)
    ts(2)
    a.i("s_barrier")
    ts(10)
    a.i("s_cmp_lg_u32 s%d, 0", sWave)
    a.i("s_cbranch_scc1 L_notk")
    if not p.fixfin:
        a.i("s_mov_b64 exec, 1")
        a.i("buffer_atomic_add v%d, v%d, s[%d:%d], s%d offen sc0 sc1", vTk, vT0 + 6, sDbg, sDbg + 3, sC)
        a.i("s_mov_b64 exec, -1")
    a.label("L_notk")
    for w in range(4):
        a.i("ds_read_b64 v[%d:%d], v%d offset:%d", vS + 2 * w, vS + 2 * w + 1, vOpA, 512 * w)
    a.i("ds_read_b128 v[%d:%d], v%d", vT0, vT0 + 3, vT0 + 7)
    a.i("ds_read_b128 v[%d:%d], v%d offset:16", vQ, vQ + 3, vT0 + 7)
    a.i("s_waitcnt lgkmcnt(0)")
    mc = [vT0, vT0 + 2, vQ, vQ + 2]
    a.i("v_max3_f32 v%d, v%d, v%d, v%d", vM, mc[0], mc[1], mc[2])
    a.i("v_max_f32 v%d, v%d, v%d", vM, vM, mc[3])
    for w in range(4):
        a.i("v_sub_f32 v%d, v%d, v%d", mc[w], mc[w], vM)
    for w in range(4):
        a.i("v_exp_f32 v%d, v%d", mc[w], mc[w])
    a.i("v_mul_f32 v%d, v%d, v%d", vL, mc[0], mc[0] + 1)
    for w in range(1, 4):
        a.i("v_fmac_f32 v%d, v%d, v%d", vL, mc[w], mc[w] + 1)
    a.i("v_pk_mul_f32 v[%d:%d], v[%d:%d], v[%d:%d] op_sel_hi:[1,0]", vS, vS + 1, vS, vS + 1, mc[0], mc[0] + 1)
    for w in range(1, 4):
        a.i("v_pk_fma_f32 v[%d:%d], v[%d:%d], v[%d:%d], v[%d:%d] op_sel_hi:[1,0,1]", vS, vS + 1, vS + 2 * w, vS + 2 * w + 1, mc[w], mc[w] + 1, vS, vS + 1)
    a.i("v_cvt_pk_bf16_f32 v%d, v%d, v%d", vS, vS, vS + 1)
    ts(11)
    a(".p2align 3")
    for m in range(16):
        t = vT0 + (m % 2)
        a.i("v_mov_b32_dpp v%d, v%d row_newbcast:%d row_mask:0xf bank_mask:0xf", t, vS, m)
        for d in range(4):
            a.i("v_dot2_f32_bf16 v%d, v%d, v%d, v%d", vAcc + 2 * d, vW + 8 * m + d, t, vAcc + 2 * d)
            a.i("v_dot2_f32_bf16 v%d, v%d, v%d, v%d", vAcc + 2 * d + 1, vW + 8 * m + 4 + d, t, vAcc + 2 * d + 1)
    ts(12)
    reduce_scatter(vAcc)
    if p.tags:
        a.i("v_cvt_pk_bf16_f32 v%d, v%d, v%d", vAcc, vAcc, vAcc + 1)
        a.i("v_mov_b32 v%d, s%d", vAcc + 1, sTag)
    else:
        a.i("v_max_u32 v%d, 1, v%d", vAcc, vAcc)
        a.i("v_max_u32 v%d, 1, v%d", vAcc + 1, vAcc + 1)
    a.i("buffer_store_dwordx2 v[%d:%d], v%d, s[%d:%d], 0 offen sc1", vAcc, vAcc + 1, vYoff, sWs, sWs + 3)
    a.i("s_cmp_lg_u32 s%d, 0", sWave)
    a.i("s_cbranch_scc1 L_done")
    if p.tags:
        a.i("v_mov_b32 v%d, v%d", vT0, vM)
        a.i("v_mov_b32 v%d, s%d", vT0 + 1, sTag)
        a.i("v_mov_b32 v%d, v%d", vT0 + 2, vL)
        a.i("v_mov_b32 v%d, s%d", vT0 + 3, sTag)
        a.i("s_mov_b64 exec, 1")
        a.i("buffer_store_dwordx4 v[%d:%d], v%d, s[%d:%d], 0 offen sc1", vT0, vT0 + 3, vMlA, sWs, sWs + 3)
        a.i("s_mov_b64 exec, -1")
        a.i("s_nop 1")
    else:
        a.i("v_max_u32 v%d, 1, v%d", vT0 + 2, vM)
        a.i("v_max_u32 v%d, 1, v%d", vT0 + 3, vL)
        a.i("s_mov_b64 exec, 1")
        a.i("buffer_store_dwordx2 v[%d:%d], v%d, s[%d:%d], 0 offen sc1", vT0 + 2, vT0 + 3, vMlA, sWs, sWs + 3)
        a.i("s_mov_b64 exec, -1")
    ts(13)
    a("; ---- the last 32 arrivals of a branch reduce 16 output columns each over all 128 partial projections")
    a.i("v_lshrrev_b32 v%d, 2, v%d", vT0, vLane)
    a.i("v_and_b32 v%d, 3, v%d", vT0 + 1, vLane)
    a.i("v_lshlrev_b32 v%d, 11, v%d", vYoff, vT0)
    a.i("v_lshl_add_u32 v%d, v%d, 4, v%d", vYoff, vT0 + 1, vYoff)
    a.i("v_lshlrev_b32 v%d, %d, v%d", vMlA, 4 if p.tags else 3, vT0)
    if p.fixfin:
        a.i("s_cmp_lg_u32 s%d, 3", sSplit)
        a.i("s_cbranch_scc1 L_done")
        a.i("s_mov_b32 s%d, s%d", sNext, sHead)
    else:
        a.i("s_waitcnt vmcnt(2)")
        a.i("v_readfirstlane_b32 s%d, v%d", sTk, vTk)
        a.i("s_lshr_b32 s%d, s%d, 16", sT0, sTk)
        a.i("s_cmp_lt_u32 s%d, %d", sT0, 128 - F)
        a.i("s_cbranch_scc1 L_done")
        a.i("s_sub_u32 s%d, s%d, %d", sNext, sT0, 128 - F)
    if not p.noz and not p.fixfin and not p.tags:
        a.i("s_and_b32 s%d, s%d, 0xffff", sT0, sTk)
        a.i("s_cmp_eq_u32 s%d, 128", sT0)
        a.i("s_cbranch_scc1 L_zok")
        a.i("s_mov_b32 s%d, 0x10000", sSpin)
        a.label("L_zspin")
        a.i("s_sub_u32 s%d, s%d, 1", sSpin, sSpin)
        a.i("s_cmp_eq_u32 s%d, 0", sSpin)
        a.i("s_cbranch_scc1 L_zok")
        a.i("s_mov_b64 exec, 1")
        a.i("buffer_load_dword v%d, v%d, s[%d:%d], s%d offen sc1", vTk, vT0 + 6, sDbg, sDbg + 3, sC)
        a.i("s_waitcnt vmcnt(0)")
        a.i("v_readfirstlane_b32 s%d, v%d", sTk, vTk)
        a.i("s_mov_b64 exec, -1")
        a.i("s_and_b32 s%d, s%d, 0xffff", sT0, sTk)
        a.i("s_cmp_eq_u32 s%d, 128", sT0)
        a.i("s_cbranch_scc0 L_zspin")
    a.label("L_zok")
    ts(14)
    vY = vW
    vMl = vW + 32
    a.i("s_lshl_b32 s%d, s%d, 18", sT0, sBr)
    a.i("s_lshl_b32 s%d, s%d, 6", sT1, sNext)
    a.i("s_add_u32 s%d, s%d, s%d", sQoff, sT0, sT1)
    a.i("s_lshl_b32 s%d, s%d, %d", sT0, sBr, 11 if p.tags else 10)
    a.i("s_add_u32 s%d, s%d, 0x80000", sCnt, sT0)
    if p.mlpoll:
        a.i("v_lshlrev_b32 v%d, 4, v%d", vT0 + 1, vLane)
        a.i("s_mov_b32 s%d, 0x10000", sSpin)
        a.label("L_poll1")
        a.i("buffer_load_dwordx4 v[%d:%d], v%d, s[%d:%d], s%d offen sc1", vMl, vMl + 3, vT0 + 1, sWs, sWs + 3, sCnt)
        a.i("s_waitcnt vmcnt(0)")
        a.i("v_min3_u32 v%d, v%d, v%d, v%d", vT0, vMl, vMl + 1, vMl + 2)
        a.i("v_min_u32 v%d, v%d, v%d", vT0, vT0, vMl + 3)
        a.i("v_cmp_eq_u32 vcc, 0, v%d", vT0)
        a.i("s_sub_u32 s%d, s%d, 1", sSpin, sSpin)
        a.i("s_cbranch_scc1 L_poll1ok")
        a.i("s_cbranch_vccz L_poll1ok")
        a.i("s_sleep %d", p.mlpoll)
        a.i("s_branch L_poll1")
        a.label("L_poll1ok")
    if p.tags:
        vMl = vW + 32
        vLo, vHi = vT0, vT0 + 1
        a.i("s_mov_b32 s%d, 0x10000", sSpin)
        a.label("L_poll")
        a.i("s_mov_b32 s%d, s%d", sCur, sQoff)
        for j in range(8):
            a.i("buffer_load_dwordx4 v[%d:%d], v%d, s[%d:%d], s%d offen offset:%d sc1", vMl + 4 * j, vMl + 4 * j + 3, vMlA, sWs, sWs + 3, sCnt, 256 * j)
        for j in range(8):
            a.i("buffer_load_dwordx4 v[%d:%d], v%d, s[%d:%d], s%d offen sc1", vY + 4 * j, vY + 4 * j + 3, vYoff, sWs, sWs + 3, sCur)
            if j != 7:
                a.i("s_add_u32 s%d, s%d, 32768", sCur, sCur)
        a.i("v_mov_b32 v%d, s%d", vLo, sTag)
        a.i("v_mov_b32 v%d, s%d", vHi, sTag)
        a.i("s_waitcnt vmcnt(8)")
        for j in range(8):
            a.i("v_min3_u32 v%d, v%d, v%d, v%d", vLo, vLo, vMl + 4 * j + 1, vMl + 4 * j + 3)
            a.i("v_max3_u32 v%d, v%d, v%d, v%d", vHi, vHi, vMl + 4 * j + 1, vMl + 4 * j + 3)
        for j in range(8):
            a.i("v_max_f32_dpp v%d, v%d, v%d row_ror:4 row_mask:0xf bank_mask:0xf", vS + j, vMl + 4 * j, vMl + 4 * j)
        for j in range(8):
            a.i("v_max_f32_dpp v%d, v%d, v%d row_ror:8 row_mask:0xf bank_mask:0xf", vS + j, vS + j, vS + j)
        for j in range(8):
            a.i("v_sub_f32 v%d, v%d, v%d", vS + j, vMl + 4 * j, vS + j)
        for j in range(8):
            a.i("v_exp_f32 v%d, v%d", vS + j, vS + j)
        for j in range(8):
            a.i("v_mul_f32 v%d, v%d, v%d", vMl + 4 * j + 2, vMl + 4 * j + 2, vS + j)
        for r in (4, 8):
            for j in range(8):
                a.i("v_add_f32_dpp v%d, v%d, v%d row_ror:%d row_mask:0xf bank_mask:0xf", vMl + 4 * j + 2, vMl + 4 * j + 2, vMl + 4 * j + 2, r)
        for j in range(8):
            a.i("v_rcp_f32 v%d, v%d", vMl + 4 * j + 2, vMl + 4 * j + 2)
        for j in range(8):
            a.i("v_mul_f32 v%d, v%d, v%d", vS + j, vS + j, vMl + 4 * j + 2)
        a.i("s_waitcnt vmcnt(0)")
        for j in range(8):
            a.i("v_min3_u32 v%d, v%d, v%d, v%d", vLo, vLo, vY + 4 * j + 1, vY + 4 * j + 3)
            a.i("v_max3_u32 v%d, v%d, v%d, v%d", vHi, vHi, vY + 4 * j + 1, vY + 4 * j + 3)
        a.i("v_cmp_ne_u32 vcc, v%d, v%d", vLo, vHi)
        a.i("s_sub_u32 s%d, s%d, 1", sSpin, sSpin)
        a.i("s_cbranch_scc1 L_pollok")
        a.i("s_cbranch_vccnz L_poll")
        a.label("L_pollok")
        ts(15)
        a.i("s_cmp_lg_u32 s%d, 0", sNext)
        a.i("s_cbranch_scc1 L_noep")
        a.i("s_lshl_b32 s%d, s%d, 7", sT0, sBr)
        a.i("s_add_u32 s%d, s%d, 0x90000", sT0, sT0)
        a.i("v_mov_b32 v%d, 0", vT0 + 2)
        a.i("v_mov_b32 v%d, s%d", vT0 + 3, sTag)
        a.i("s_mov_b64 exec, 1")
        a.i("buffer_store_dword v%d, v%d, s[%d:%d], s%d offen sc1", vT0 + 3, vT0 + 2, sWs, sWs + 3, sT0)
        a.i("s_mov_b64 exec, -1")
        a.label("L_noep")
        for j in range(8):
            y = vY + 4 * j
            a.i("v_lshlrev_b32 v%d, 16, v%d", vT0 + 4, y)
            a.i("v_and_b32 v%d, 0xffff0000, v%d", vT0 + 5, y)
            a.i("v_lshlrev_b32 v%d, 16, v%d", vT0 + 6, y + 2)
            a.i("v_and_b32 v%d, 0xffff0000, v%d", vT0 + 7, y + 2)
            for e in range(4):
                if j == 0:
                    a.i("v_mul_f32 v%d, v%d, v%d", vAcc + e, vS, vT0 + 4 + e)
                else:
                    a.i("v_fmac_f32 v%d, v%d, v%d", vAcc + e, vS + j, vT0 + 4 + e)
    else:
        a.i("s_mov_b32 s%d, 0x10000", sSpin)
        a.label("L_poll")
        a.i("s_mov_b32 s%d, s%d", sCur, sQoff)
        for j in range(8):
            a.i("buffer_load_dwordx2 v[%d:%d], v%d, s[%d:%d], s%d offen offset:%d sc1", vMl + 2 * j, vMl + 2 * j + 1, vMlA, sWs, sWs + 3, sCnt, 128 * j)
        for j in range(8):
            a.i("buffer_load_dwordx4 v[%d:%d], v%d, s[%d:%d], s%d offen sc1", vY + 4 * j, vY + 4 * j + 3, vYoff, sWs, sWs + 3, sCur)
            if j != 7:
                a.i("s_add_u32 s%d, s%d, 32768", sCur, sCur)
        a.i("s_waitcnt vmcnt(8)")
        a.i("v_min3_u32 v%d, v%d, v%d, v%d", vT0, vMl, vMl + 1, vMl + 2)
        for k in range(3, 15, 2):
            a.i("v_min3_u32 v%d, v%d, v%d, v%d", vT0, vT0, vMl + k, vMl + k + 1)
        a.i("v_min_u32 v%d, v%d, v%d", vT0, vT0, vMl + 15)
        if p.fastpoll:
            a.i("v_cmp_eq_u32 vcc, 0, v%d", vT0)
            a.i("s_sub_u32 s%d, s%d, 1", sSpin, sSpin)
            a.i("s_cbranch_scc1 L_mlok")
            a.i("s_cbranch_vccnz L_poll")
            a.label("L_mlok")
        for j in range(8):
            a.i("v_max_f32_dpp v%d, v%d, v%d row_ror:4 row_mask:0xf bank_mask:0xf", vS + j, vMl + 2 * j, vMl + 2 * j)
        for j in range(8):
            a.i("v_max_f32_dpp v%d, v%d, v%d row_ror:8 row_mask:0xf bank_mask:0xf", vS + j, vS + j, vS + j)
        for j in range(8):
            a.i("v_sub_f32 v%d, v%d, v%d", vS + j, vMl + 2 * j, vS + j)
        for j in range(8):
            a.i("v_exp_f32 v%d, v%d", vS + j, vS + j)
        for j in range(8):
            a.i("v_mul_f32 v%d, v%d, v%d", vMl + 2 * j + 1, vMl + 2 * j + 1, vS + j)
        for j in range(8):
            a.i("v_add_f32_dpp v%d, v%d, v%d row_ror:4 row_mask:0xf bank_mask:0xf", vMl + 2 * j + 1, vMl + 2 * j + 1, vMl + 2 * j + 1)
        for j in range(8):
            a.i("v_add_f32_dpp v%d, v%d, v%d row_ror:8 row_mask:0xf bank_mask:0xf", vMl + 2 * j + 1, vMl + 2 * j + 1, vMl + 2 * j + 1)
        for j in range(8):
            a.i("v_rcp_f32 v%d, v%d", vMl + 2 * j + 1, vMl + 2 * j + 1)
        for j in range(8):
            a.i("v_mul_f32 v%d, v%d, v%d", vS + j, vS + j, vMl + 2 * j + 1)
        a.i("s_waitcnt vmcnt(0)")
        for k in range(0, 32, 2):
            a.i("v_min3_u32 v%d, v%d, v%d, v%d", vT0, vT0, vY + k, vY + k + 1)
        a.i("v_cmp_eq_u32 vcc, 0, v%d", vT0)
        a.i("s_sub_u32 s%d, s%d, 1", sSpin, sSpin)
        a.i("s_cbranch_scc1 L_pollok")
        a.i("s_cbranch_vccnz L_poll")
        a.label("L_pollok")
        ts(15)
        for e in range(4):
            a.i("v_mul_f32 v%d, v%d, v%d", vAcc + e, vS, vY + e)
        for j in range(1, 8):
            for e in range(4):
                a.i("v_fmac_f32 v%d, v%d, v%d", vAcc + e, vS + j, vY + 4 * j + e)
    for r in (4, 8):
        for e in range(4):
            a.i("v_add_f32_dpp v%d, v%d, v%d row_ror:%d row_mask:0xf bank_mask:0xf", vAcc + e, vAcc + e, vAcc + e, r)
    for e in range(2):
        a.i("v_permlane32_swap_b32 v%d, v%d", vAcc + e, vAcc + 2 + e)
    for e in range(2):
        a.i("v_add_f32 v%d, v%d, v%d", vAcc + e, vAcc + e, vAcc + 2 + e)
    a.i("v_permlane16_swap_b32 v%d, v%d", vAcc, vAcc + 1)
    a.i("v_add_f32 v%d, v%d, v%d", vAcc, vAcc, vAcc + 1)
    a.i("v_lshrrev_b32 v%d, 4, v%d", vT0, vLane)
    a.i("v_and_b32 v%d, 3, v%d", vT0 + 1, vLane)
    a.i("v_lshl_add_u32 v%d, v%d, 2, v%d", vT0, vT0 + 1, vT0)
    a.i("v_lshlrev_b32 v%d, 1, v%d", vT0, vT0)
    a.i("v_cvt_pk_bf16_f32 v%d, v%d, v%d", vAcc, vAcc, vAcc)
    a.i("s_lshl_b32 s%d, s%d, 10", sT0, sBr)
    a.i("s_lshl_b32 s%d, s%d, 5", sT1, sNext)
    a.i("s_add_u32 s%d, s%d, s%d", sT0, sT0, sT1)
    a.i("s_mov_b32 exec_lo, 0x000f000f")
    a.i("s_mov_b32 exec_hi, 0x000f000f")
    a.i("buffer_store_short v%d, v%d, s[%d:%d], s%d offen%s", vAcc, vT0, sOut, sOut + 3, sT0, p.outflags)
    if p.diag == 4:
        a.i("s_waitcnt vmcnt(0)")
    ts(16)
    if p.diag == 7:
        a.i("s_memrealtime s[86:87]")
        a.i("s_waitcnt lgkmcnt(0)")
        a.i("s_sub_u32 s82, s82, s80")
        a.i("s_sub_u32 s84, s84, s80")
        a.i("s_sub_u32 s86, s86, s80")
        a.i("v_mov_b32 v%d, s82", vT0)
        a.i("v_mov_b32 v%d, s84", vT0 + 1)
        a.i("v_mov_b32 v%d, s86", vT0 + 2)
        a.i("v_mov_b32 v%d, s%d", vT0 + 3, sNext)
        a.i("v_mov_b32 v%d, 0", vT0 + 4)
        a.i("s_cmp_lg_u32 s%d, 31", sNext)
        a.i("s_cbranch_scc1 L_done")
        a.i("s_lshl_b32 s%d, s%d, 4", sT0, sBr)
        a.i("s_add_u32 s%d, s%d, 16", sT0, sT0)
        a.i("s_mov_b64 exec, 1")
        a.i("buffer_store_dwordx4 v[%d:%d], v%d, s[%d:%d], s%d offen", vT0, vT0 + 3, vT0 + 4, sDbg, sDbg + 3, sT0)
    a.label("L_done")
    diag_store("h")
    a.i("s_endpgm")

    a.label("L_stream")
    a.i("s_lshl_b32 s%d, s%d, %d", sT0, sW4, lg(T * 1024))
    stride = NS * T * 1024
    a.i("v_lshlrev_b32 v%d, 4, v%d", vOffKV, vLane)
    a.i("v_add_u32 v%d, s%d, v%d", vOffKV, sT0, vOffKV)
    for j in range(1, nOff):
        a.i("v_add_u32 v%d, %d, v%d", vOffKV + j, 4096 * j, vOffKV)
    a.i("s_lshl_b32 s%d, s%d, 22", sT0, sHead)
    a.i("s_lshl_b32 s%d, s%d, 20", sT1, sSplit)
    a.i("s_add_u32 s%d, s%d, s%d", sCur, sT0, sT1)
    a.i("s_waitcnt lgkmcnt(0)")
    a.i("s_cmp_eq_u32 s%d, 0", sBr)
    a.i("s_cselect_b64 s[18:19], s[18:19], s[28:29]")
    a.i("s_cselect_b64 s[20:21], s[20:21], s[30:31]")
    srd(sK, sKp, sCur, 1 << 20)
    srd(sV, sVp, sCur, 1 << 20)
    if p.zearly:
        srd(sWs, sWsP, None, WSREC)
        a.i("s_cmp_lg_u32 s%d, 4", sWave)
        a.i("s_cbranch_scc1 L_nozs")
        for e in range(4):
            a.i("v_mov_b32 v%d, 0", vT0 + 4 + e)
        a.i("v_lshlrev_b32 v%d, 5, v%d", vT0 + 2, vLane)
        a.i("s_lshl_b32 s%d, s%d, 11", sT1, sP)
        a.i("buffer_store_dwordx4 v[%d:%d], v%d, s[%d:%d], s%d offen sc1", vT0 + 4, vT0 + 7, vT0 + 2, sWs, sWs + 3, sT1)
        a.i("buffer_store_dwordx4 v[%d:%d], v%d, s[%d:%d], s%d offen offset:16 sc1", vT0 + 4, vT0 + 7, vT0 + 2, sWs, sWs + 3, sT1)
        a.i("s_lshl_b32 s%d, s%d, 3", sT1, sP)
        a.i("s_add_u32 s%d, s%d, 0x80000", sT1, sT1)
        a.i("v_mov_b32 v%d, 0", vT0 + 2)
        a.i("s_mov_b64 exec, 1")
        a.i("buffer_store_dwordx2 v[%d:%d], v%d, s[%d:%d], s%d offen sc1", vT0 + 4, vT0 + 5, vT0 + 2, sWs, sWs + 3, sT1)
        a.i("s_mov_b64 exec, -1")
        a.label("L_nozs")

    def kvload(j, soff, base=None):
        which, i = ("K", j) if j < T else ("V", j - T)
        srdb = sK if which == "K" else sV
        reg = (vK if base is None else base) + 4 * j
        a.i("buffer_load_dwordx4 v[%d:%d], v%d, s[%d:%d], %s offen offset:%d%s", reg, reg + 3,
            vOffKV + i // 4, srdb, srdb + 3, soff, (i % 4) * 1024, kvf)
    MASK = (1 << 20) - 1
    if p.stagger:
        a.i("s_mul_i32 s%d, s2, %d", sCur, p.stagger * stride)
        a.i("s_and_b32 s%d, s%d, 0x%x", sCur, sCur, MASK)
    else:
        a.i("s_mov_b32 s%d, 0", sCur)
    a.i("s_add_u32 s%d, s%d, %d", sNext, sCur, stride)
    a.i("s_and_b32 s%d, s%d, 0x%x", sNext, sNext, MASK)
    if p.single and p.late:
        for j in range(R):
            kvload(j, "s%d" % sCur, vB)
        a.i("s_barrier")
        for j in range(N):
            kvload(j, "s%d" % sNext)
    elif p.single:
        for j in range(N):
            kvload(j, "s%d" % sCur)
    elif p.pre:
        seq = [(j, sCur, vB) for j in range(R)] + [(j, sNext, None) for j in range(N)]
        for k, (j, so, base) in enumerate(seq):
            if k >= p.pre:
                a.i("s_waitcnt vmcnt(%d)", p.pre - 1)
            kvload(j, "s%d" % so, base)
    else:
        for j in range(R):
            kvload(j, "s%d" % sCur)
        if p.pf:
            assert T == 4
            a.i("s_lshl_b32 s%d, s%d, 12", sT0, sW4)
            a.i("v_lshlrev_b32 v%d, 6, v%d", vTk, vLane)
            a.i("v_add_u32 v%d, s%d, v%d", vTk, sT0, vTk)
            a.i("s_mov_b32 s%d, s%d", sT1, sNext)
            for k in range(p.pf):
                a.i("buffer_load_dword v%d, v%d, s[%d:%d], s%d offen%s", vDum, vTk, sK, sK + 3, sT1, p.pfflags)
                a.i("buffer_load_dword v%d, v%d, s[%d:%d], s%d offen%s", vDum, vTk, sV, sV + 3, sT1, p.pfflags)
                if k + 1 < p.pf:
                    a.i("s_add_u32 s%d, s%d, %d", sT1, sT1, stride)
                    a.i("s_and_b32 s%d, s%d, 0x%x", sT1, sT1, MASK)
    if p.diag:
        srd(sWs, sWsP, None, WSREC)
    a.i("s_mov_b32 s%d, %s", sC, f32hex(CLOG))
    a.i("s_lshl_b32 s%d, s%d, 9", sT0, sW4)
    a.i("s_add_u32 s%d, s%d, %d", sT0, sT0, L_OP)
    a.i("v_lshlrev_b32 v%d, 3, v%d", vOpA, vLane)
    a.i("v_add_u32 v%d, s%d, v%d", vOpA, sT0, vOpA)
    a.i("s_lshl_b32 s%d, s%d, 3", sT0, sW4)
    a.i("s_add_u32 s%d, s%d, %d", sT0, sT0, L_ML)
    a.i("v_mov_b32 v%d, s%d", vMlA, sT0)
    a.i("v_lshlrev_b32 v%d, 5, v%d", vT0 + 1, vT0 + 1)
    a.i("v_add_u32 v%d, %d, v%d", vQP, L_QP, vT0 + 1)
    if p.single:
        a.i("s_mov_b32 s79, s%d", sNext)
    if p.single and p.dry:
        a.i("s_mov_b32 s10, 1")
        a.i("s_mov_b64 exec, 0")
        a.i("s_branch L_loop")
        a.label("L_dryret")
        a.i("s_mov_b64 exec, -1")
        a.i("s_mov_b32 s10, 0")
    a.i("s_barrier")
    a.i("v_mov_b32 v%d, v%d", vT0 + 1, vQP)
    for w in range(4):
        a.i("ds_read_b128 v[%d:%d], v%d offset:%d", vQP + 8 * w, vQP + 8 * w + 3, vT0 + 1, w * 512)
        a.i("ds_read_b128 v[%d:%d], v%d offset:%d", vQP + 8 * w + 4, vQP + 8 * w + 7, vT0 + 1, w * 512 + 16)
    for e in range(8):
        a.i("v_mov_b32 v%d, 0", vAcc + e)
    a.i("v_mov_b32 v%d, 0xff800000", vMc)
    a.i("v_mov_b32 v%d, 0xff800000", vM)
    a.i("v_mov_b32 v%d, 0", vL)
    a.i("s_mov_b32 s%d, %d", sCnt, (NIT - 1 if p.late else NIT) if p.single else NIT - 2)
    a.i("s_waitcnt lgkmcnt(0)")
    for d in range(4):
        a.i("v_pk_add_f32 v[%d:%d], v[%d:%d], v[%d:%d]", vQP + 2 * d, vQP + 2 * d + 1, vQP + 2 * d, vQP + 2 * d + 1, vQP + 8 + 2 * d, vQP + 9 + 2 * d)
        a.i("v_pk_add_f32 v[%d:%d], v[%d:%d], v[%d:%d]", vQP + 16 + 2 * d, vQP + 17 + 2 * d, vQP + 16 + 2 * d, vQP + 17 + 2 * d, vQP + 24 + 2 * d, vQP + 25 + 2 * d)
    for d in range(4):
        a.i("v_pk_add_f32 v[%d:%d], v[%d:%d], v[%d:%d]", vQP + 2 * d, vQP + 2 * d + 1, vQP + 2 * d, vQP + 2 * d + 1, vQP + 16 + 2 * d, vQP + 17 + 2 * d)
    for d in range(4):
        a.i("v_cvt_pk_bf16_f32 v%d, v%d, v%d", vQ + d, vQP + 2 * d, vQP + 2 * d + 1)
    ts(1)

    def body(kind):
        bK, bV = (vB, vB + 4 * T) if kind == "pre" else (vK, vV)

        def wait(j):
            if kind == "pre":
                if j >= R - N + (N - min(N, p.pre)) or True:
                    n = None
                a.i("s_waitcnt vmcnt(%d)", (R - 1 - j) + N)
                return
            if kind == "first":
                n = (R - 1 - j) + max(0, j - (R - N)) + 2 * p.pf
            elif kind == "mid":
                n = N - 1
            else:
                n = min(R - 1, j + N - 1) - j
            a.i("s_waitcnt vmcnt(%d)", n)

        def issue(j):
            if kind == "pre":
                return
            k = j + N
            if k < R:
                if kind != "first":
                    kvload(k, "s%d" % sCur)
            elif kind != "last":
                kvload(k - R, "s%d" % sNext)
        for i in range(T):
            wait(i)
            k = bK + 4 * i
            a.i("v_dot2_f32_bf16 v%d, v%d, v%d, 0", vS + i, k, vQ)
            for d in range(1, 4):
                a.i("v_dot2_f32_bf16 v%d, v%d, v%d, v%d", vS + i, k + d, vQ + d, vS + i)
            issue(i)
        for r in (8, 4, 2, 1):
            for i in range(T):
                a.i("v_add_f32_dpp v%d, v%d, v%d row_ror:%d row_mask:0xf bank_mask:0xf", vS + i, vS + i, vS + i, r)
        a.i("v_max3_f32 v%d, v%d, v%d, v%d", vM, vM, vS, vS + 1)
        for i in range(2, T, 2):
            a.i("v_max3_f32 v%d, v%d, v%d, v%d", vM, vM, vS + i, vS + i + 1)
        a.i("v_mul_f32 v%d, s%d, v%d", vT0, sC, vM)
        a.i("v_sub_f32 v%d, v%d, v%d", vAl, vMc, vT0)
        a.i("v_mov_b32 v%d, v%d", vMc, vT0)
        a.i("v_exp_f32 v%d, v%d", vAl, vAl)
        for i in range(T):
            a.i("v_fma_f32 v%d, v%d, s%d, -v%d", vS + i, vS + i, sC, vMc)
        for i in range(T):
            a.i("v_exp_f32 v%d, v%d", vS + i, vS + i)
        a.i("v_mul_f32 v%d, v%d, v%d", vL, vL, vAl)
        for d in range(4):
            a.i("v_pk_mul_f32 v[%d:%d], v[%d:%d], v[%d:%d] op_sel:[0,%d] op_sel_hi:[1,%d]", vAcc + 2 * d, vAcc + 2 * d + 1,
                vAcc + 2 * d, vAcc + 2 * d + 1, vAl & ~1, (vAl & ~1) + 1, vAl & 1, vAl & 1)
        for i in range(T):
            a.i("v_add_f32 v%d, v%d, v%d", vL, vL, vS + i)
        for i in range(T):
            wait(T + i)
            vv = bV + 4 * i
            sp = (vS + i) & ~1
            hi = (vS + i) & 1
            for d in range(4):
                t = vT0 + 2 * d
                a.i("v_lshlrev_b32 v%d, 16, v%d", t, vv + d)
                a.i("v_and_b32 v%d, 0xffff0000, v%d", t + 1, vv + d)
            for d in range(4):
                t = vT0 + 2 * d
                a.i("v_pk_fma_f32 v[%d:%d], v[%d:%d], v[%d:%d], v[%d:%d] op_sel:[0,%d,0] op_sel_hi:[1,%d,1]", vAcc + 2 * d, vAcc + 2 * d + 1,
                    t, t + 1, sp, sp + 1, vAcc + 2 * d, vAcc + 2 * d + 1, hi, hi)
            issue(T + i)

    if p.single:
        sNr, sDry = 79, 10
        if p.late:
            a("; ---- tile 0 from the start-up buffer")
            body("pre")
            a.i("s_mov_b32 s%d, s%d", sCur, sNext)
            a.i("s_add_u32 s%d, s%d, %d", sNr, sNext, stride)
            a.i("s_and_b32 s%d, s%d, 0x%x", sNr, sNr, MASK)
            a.i("s_mov_b32 s%d, s%d", sNext, sNr)
        a("; ---- main loop: QK (v_dot2 + row reduction), online softmax, PV; %d loads stay in flight per wave" % N)
        a(".p2align 6")
        a.label("L_loop")
        body("mid")
        if p.dry:
            a.i("s_cmp_lg_u32 s%d, 0", sDry)
            a.i("s_cbranch_scc1 L_dryret")
        a.i("s_mov_b32 s%d, s%d", sCur, sNr)
        a.i("s_add_u32 s%d, s%d, %d", sNr, sNr, stride)
        a.i("s_and_b32 s%d, s%d, 0x%x", sNr, sNr, MASK)
        a.i("s_sub_u32 s%d, s%d, 1", sCnt, sCnt)
        a.i("s_cmp_eq_u32 s%d, 1", sCnt)
        a.i("s_cselect_b32 s%d, 0x100000, s%d", sNext, sNr)
        a.i("s_cmp_lg_u32 s%d, 0", sCnt)
        a.i("s_cbranch_scc1 L_loop")
    else:
        body("pre" if p.pre else "first")
        if p.zearly:
            a.i("s_cmp_lg_u32 s%d, 4", sWave)
            a.i("s_cbranch_scc1 L_nozf")
            a.i("v_mov_b32 v%d, %d", vT0, L_ZF)
            a.i("v_mov_b32 v%d, 1", vT0 + 1)
            a.i("ds_write_b32 v%d, v%d", vT0, vT0 + 1)
            a.label("L_nozf")
        a.i("s_mov_b32 s%d, s%d", sCur, sNext)
        a.i("s_add_u32 s%d, s%d, %d", sNext, sNext, stride)
        a.i("s_and_b32 s%d, s%d, 0x%x", sNext, sNext, MASK)
        a(".p2align 6")
        a.label("L_loop")
        body("mid")
        if p.diag == 6:
            for k, it in enumerate((1, 3, 7, 15, 31, 47)):
                a.i("s_cmp_lg_u32 s%d, %d", sCnt, NIT - 1 - it)
                a.i("s_cbranch_scc1 L_ps%d", k)
                a.i("s_memrealtime s[%d:%d]", sTS + 2 + 2 * k, sTS + 3 + 2 * k)
                a.label("L_ps%d" % k)
        a.i("s_mov_b32 s%d, s%d", sCur, sNext)
        a.i("s_add_u32 s%d, s%d, %d", sNext, sNext, stride)
        a.i("s_and_b32 s%d, s%d, 0x%x", sNext, sNext, MASK)
        a.i("s_sub_u32 s%d, s%d, 1", sCnt, sCnt)
        a.i("s_cmp_lg_u32 s%d, 0", sCnt)
        a.i("s_cbranch_scc1 L_loop")
        body("last")
    ts(2)
    ts(10)
    a.i("v_mov_b32 v%d, v%d", vT0, vMc)
    a.i("v_mov_b32 v%d, v%d", vT0 + 1, vMc)
    a.i("v_permlane32_swap_b32 v%d, v%d", vT0, vT0 + 1)
    a.i("v_max_f32 v%d, v%d, v%d", vT0, vT0, vT0 + 1)
    a.i("v_mov_b32 v%d, v%d", vT0 + 1, vT0)
    a.i("v_permlane16_swap_b32 v%d, v%d", vT0, vT0 + 1)
    a.i("v_max_f32 v%d, v%d, v%d", vT0 + 2, vT0, vT0 + 1)
    a.i("v_sub_f32 v%d, v%d, v%d", vAl, vMc, vT0 + 2)
    a.i("v_exp_f32 v%d, v%d", vAl, vAl)
    a.i("v_mul_f32 v%d, v%d, v%d", vL, vL, vAl)
    for d in range(4):
        a.i("v_pk_mul_f32 v[%d:%d], v[%d:%d], v[%d:%d] op_sel:[0,%d] op_sel_hi:[1,%d]", vAcc + 2 * d, vAcc + 2 * d + 1,
            vAcc + 2 * d, vAcc + 2 * d + 1, vAl & ~1, (vAl & ~1) + 1, vAl & 1, vAl & 1)
    a.i("v_mov_b32 v%d, v%d", vT0 + 1, vL)
    a.i("v_permlane32_swap_b32 v%d, v%d", vL, vT0 + 1)
    a.i("v_add_f32 v%d, v%d, v%d", vL, vL, vT0 + 1)
    a.i("v_mov_b32 v%d, v%d", vT0 + 1, vL)
    reduce_scatter(vAcc)
    a.i("v_permlane16_swap_b32 v%d, v%d", vL, vT0 + 1)
    a.i("v_add_f32 v%d, v%d, v%d", vT0 + 3, vL, vT0 + 1)
    a.i("ds_write_b64 v%d, v[%d:%d]", vOpA, vAcc, vAcc + 1)
    a.i("s_mov_b64 exec, 1")
    a.i("ds_write_b64 v%d, v[%d:%d]", vMlA, vT0 + 2, vT0 + 3)
    a.i("s_waitcnt lgkmcnt(0)")
    ts(11)
    a.i("s_barrier")
    diag_store("s")
    a.label("L_end")
    a.i("s_endpgm")
    a.label("L_code_end")

    descr(a, NAME + "_kernel", NV, 96)
    return a.text()


def parse(argv):
    ap = argparse.ArgumentParser()
    ap.add_argument("-T", type=int, default=4)
    ap.add_argument("-N", type=int, default=6)
    ap.add_argument("--QD", type=int, default=12)
    ap.add_argument("--stagger", type=int, default=0)
    ap.add_argument("--PW", type=int, default=1)
    ap.add_argument("--pre", type=int, default=0)
    ap.add_argument("--nowq", type=int, default=0)
    ap.add_argument("--nowo", type=int, default=0)
    ap.add_argument("--touch", type=int, default=0)
    ap.add_argument("--pf", type=int, default=0)
    ap.add_argument("--pfflags", default="nt")
    ap.add_argument("--rot", type=int, default=0)
    ap.add_argument("--noz", type=int, default=0)
    ap.add_argument("--fixfin", type=int, default=0)
    ap.add_argument("--mlpoll", type=int, default=0)
    ap.add_argument("--nozs", type=int, default=0)
    ap.add_argument("--zearly", type=int, default=0)
    ap.add_argument("--single", type=int, default=0)
    ap.add_argument("--dry", type=int, default=0)
    ap.add_argument("--tags", type=int, default=0)
    ap.add_argument("--fastpoll", type=int, default=0)
    ap.add_argument("--touchout", type=int, default=0)
    ap.add_argument("--outflags", default="")
    ap.add_argument("--xdw", type=int, default=0)
    ap.add_argument("--late", type=int, default=0)
    ap.add_argument("--minlds", type=int, default=0)
    ap.add_argument("--kvflags", default="nt")
    ap.add_argument("--wqflags", default="")
    ap.add_argument("--woflags", default="")
    ap.add_argument("--diag", type=int, default=0)
    ap.add_argument("-o", default="/dev/stdout")
    p = ap.parse_args(argv)
    for k in ("kvflags", "wqflags", "woflags", "pfflags", "outflags"):
        s = getattr(p, k).strip().replace("+", " ")
        if s == "none":
            s = ""
        setattr(p, k, " " + s if s else "")
    return p


if __name__ == "__main__":
    p = parse(sys.argv[1:])
    open(p.o, "w").write(gen(p))
```
